```python
import torch

def _softmax(x, axis=-1):
    return torch.softmax(x, dim=axis)

def _gelu(x):
    return torch.nn.functional.gelu(x, approximate='tanh')

def _silu(x):
    return torch.nn.functional.silu(x)

def _sigmoid(x):
    return torch.sigmoid(x)

def _layernorm(x, axis=-1, eps=1e-05):
    m = x.mean(dim=axis, keepdim=True)
    v = x.var(dim=axis, keepdim=True, unbiased=False)
    return (x - m) / torch.sqrt(v + eps)

def _scatter_add(tgt, idx, src, axis=0):
    return tgt.clone().index_add_(axis, idx, src)

def _segment_sum(src, seg, n):
    out = torch.zeros((n,) + src.shape[1:], dtype=src.dtype)
    return out.index_add_(0, seg, src)

def _pad(x, pw):
    flat = tuple((v for pair in reversed(pw) for v in pair))
    return torch.nn.functional.pad(x, flat)
kernel_name = 'gated_mix__memory_aug_recurrent_mem_tr__dense_activation_silu__prompt'

def setup_inputs():

    _w = lambda a: (lambda t: t.to(torch.bfloat16) if t.is_floating_point() else t)(torch.as_tensor(a))

    def _A_setup():
        B, S, Dm = (1, 2048, 1024)
        H, Dh = (32, 128)
        M, seg = (8, 32)
        seg = min(seg, S)
        S = S // seg * seg
        return {'x': _w((lambda *s: torch.randn(*s, dtype=torch.bfloat16) * 0.1)(B, S, Dm)), 'mem0': _w((lambda *s: torch.randn(*s, dtype=torch.bfloat16) * 0.8)(B, M, Dm)), 'Wq': _w((lambda *s: torch.randn(*s, dtype=torch.bfloat16) * 6.4)(Dm, H, Dh) * Dm ** (-0.5)), 'Wk': _w((lambda *s: torch.randn(*s, dtype=torch.bfloat16) * 6.4)(Dm, H, Dh) * Dm ** (-0.5)), 'Wv': _w((lambda *s: torch.randn(*s, dtype=torch.bfloat16) * 0.8)(Dm, H, Dh) * Dm ** (-0.5)), 'Wo': _w((lambda *s: torch.randn(*s, dtype=torch.bfloat16) * 0.8)(H, Dh, Dm) * (H * Dh) ** (-0.5)), 'seg_len': seg}
    _A_in = _A_setup()

    def _B_setup():
        B, S, D, F = (1, 2048, 1024, 3584)
        return {'x': _w((lambda *s: torch.randn(*s, dtype=torch.bfloat16) * 0.1)(B, S, D)), 'w1': _w((lambda *s: torch.randn(*s, dtype=torch.bfloat16) * 3.2)(D, F) * D ** (-0.5)), 'w2': _w((lambda *s: torch.randn(*s, dtype=torch.bfloat16) * 3.2)(F, D) * F ** (-0.5))}
    _B_in = _B_setup()
    return {'A_x': _A_in['x'], 'A_mem0': _A_in['mem0'], 'A_Wq': _A_in['Wq'], 'A_Wk': _A_in['Wk'], 'A_Wv': _A_in['Wv'], 'A_Wo': _A_in['Wo'], 'A_seg_len': _A_in['seg_len'], 'B_x': _B_in['x'], 'B_w1': _B_in['w1'], 'B_w2': _B_in['w2'], 'gate_w': _w((lambda *s: torch.randn(*s, dtype=torch.bfloat16) * 0.1)(1024) * 16.0)}

def reference(A_x, A_mem0, A_Wq, A_Wk, A_Wv, A_Wo, A_seg_len, B_x, B_w1, B_w2, gate_w):

    def _A_ref(x, mem0, Wq, Wk, Wv, Wo, seg_len):
        B, S, Dm = x.shape
        H, Dh = (Wq.shape[1], Wq.shape[2])
        M = mem0.shape[1]
        scale = Dh ** (-0.5)
        n_seg = S // seg_len
        L = M + seg_len
        idx = torch.arange(L)
        mask = (idx[:, None] < M) | (idx[:, None] >= idx[None, :])
        mem = mem0
        outs = []
        for s in range(n_seg):
            xs = x[:, s * seg_len:(s + 1) * seg_len, :].clone()
            h = torch.concatenate([mem, xs], axis=1)
            q = torch.einsum('btd,dhe->bhte', h, Wq)
            k = torch.einsum('btd,dhe->bhte', h, Wk)
            v = torch.einsum('btd,dhe->bhte', h, Wv)
            scores = torch.einsum('bhqe,bhke->bhqk', q, k) * scale
            scores = torch.where(mask[None, None], scores, -1000000000.0)
            p = _softmax(scores, axis=-1)
            o = torch.einsum('bhqk,bhke->bhqe', p, v)
            o = torch.einsum('bhte,hed->btd', o, Wo)
            mem = o[:, :M, :].clone()
            outs.append(o[:, M:, :])
        return torch.concatenate(outs, axis=1)

    def _B_ref(x, w1, w2):
        h = torch.einsum('bsd,df->bsf', x, w1)
        h = _silu(h)
        out = torch.einsum('bsf,fd->bsd', h, w2)
        return out
    x = A_x
    g = _sigmoid((x * gate_w).sum(-1, keepdims=True))
    a = _A_ref(x, A_mem0, A_Wq, A_Wk, A_Wv, A_Wo, A_seg_len)
    b = _B_ref(x, B_w1, B_w2)
    return g * a + (1 - g) * b
```

```python
class Asm:
    def __init__(self):
        self.lines = []
        self.uid = 0
    def __call__(self, s):
        for ln in s.split('\n'):
            ln = ln.strip()
            if not ln:
                continue
            if ln.endswith(':') or ln.startswith('.'):
                self.lines.append(ln)
            else:
                self.lines.append('  ' + ln)
    def c(self, s):
        self.lines.append('  ; ' + s)
    def label(self, base):
        self.uid += 1
        return f'L_{base}_{self.uid}'
    def text(self):
        return '\n'.join(self.lines) + '\n'

def v(n, cnt=1):
    return f'v{n}' if cnt == 1 else f'v[{n}:{n+cnt-1}]'
def a(n, cnt=1):
    return f'a{n}' if cnt == 1 else f'a[{n}:{n+cnt-1}]'
def s(n, cnt=1):
    return f's{n}' if cnt == 1 else f's[{n}:{n+cnt-1}]'

class R:
    def __init__(self, kind, n, cnt=1):
        self.kind, self.n, self.cnt = kind, n, cnt
    def __str__(self):
        return v(self.n, self.cnt) if self.kind == 'v' else a(self.n, self.cnt)
    def sub(self, off, cnt=1):
        assert off + cnt <= self.cnt, (off, cnt, self.cnt)
        return R(self.kind, self.n + off, cnt)
    def __getitem__(self, i):
        return self.sub(i, 1)

def hx(x):
    return hex(x & 0xffffffff)

def srd(A, dst, base_s, nbytes, off=None):
    if off:
        A(f's_add_u32 s{dst}, s{base_s}, {hx(off)}')
        A(f's_addc_u32 s{dst+1}, s{base_s+1}, 0')
    else:
        A(f's_mov_b32 s{dst}, s{base_s}')
        A(f's_mov_b32 s{dst+1}, s{base_s+1}')
    A(f's_mov_b32 s{dst+2}, {hx(nbytes)}')
    A(f's_mov_b32 s{dst+3}, 0x20000')
```

```python
from asmlib import *
from layout import *
from gemm16 import S_WS, S_XD, S_WD, S_WAVE, G_T0, G_T1, G_T2, G_TB, G_C0, G_M0, G_N0, G_NK, G_OB, G_XO, G_WO, V_L16

def attention(A, wait_progress):
    Q, K, V, KMr, VMr = 20, 52, 84, 116, 132
    S00, S01, S11, SM0, SM1 = 148, 152, 156, 160, 164
    BX0, BX1, BM0, BM1 = 168, 172, 176, 178
    T = 180
    O = 'a'
    VKM, VVM, VMASK = 4, 5, 6
    SEG, HD, SOFF, SC = G_M0, G_N0, G_XO, G_C0
    A(f's_mul_i32 s{G_T0}, s{S_WAVE}, s{G_NK}'); A(f's_add_u32 s{HD}, s{HD}, s{G_T0}')
    A(f'v_lshlrev_b32 v{V_L16}, 4, v1')
    A('v_and_b32 v2, 15, v1'); A('v_lshrrev_b32 v3, 4, v1')
    A('v_and_b32 v7, 7, v1'); A(f'v_lshlrev_b32 v{VKM}, 4, v7'); A(f'v_lshl_add_u32 v{VKM}, v3, 7, v{VKM}')
    A('v_and_b32 v7, 1, v3'); A(f'v_lshlrev_b32 v{VVM}, 7, v7'); A(f'v_lshl_add_u32 v{VVM}, v2, 3, v{VVM}')
    A('v_lshlrev_b32 v7, 2, v3')
    for r in range(4):
        A(f'v_add_u32 v8, {r}, v7'); A(f'v_cmp_le_u32 s[{60+2*r}:{61+2*r}], v8, v2')
    A('v_cmp_gt_u32 s[68:69], 2, v3')
    A(f's_mov_b32 s{SC}, 0x3db504f3')
    A(f's_mov_b32 s{SC+1}, 0x3fb8aa3b')
    A(f'v_mov_b32 v{VMASK}, 0xff800000')
    loop = A.label('att')
    A(f'{loop}:')
    wait_progress()
    A(f's_lshl_b32 s{SOFF}, s{SEG}, 18'); A(f's_lshl_b32 s{G_T0}, s{HD}, 12'); A(f's_add_u32 s{SOFF}, s{SOFF}, s{G_T0}')
    A(f's_lshl_b32 s{G_WO}, s{SEG}, 16'); A(f's_lshl_b32 s{G_T0}, s{HD}, 11'); A(f's_add_u32 s{G_WO}, s{G_WO}, s{G_T0}')
    def ld4(reg, voff, soff, off): A(f'buffer_load_dwordx4 v[{reg}:{reg+3}], v{voff}, s[{S_WS}:{S_WS+3}], s{soff} offen offset:{off} sc1')
    for tb in range(2):
        A(f's_add_u32 s{G_T1}, s{SOFF}, {hx(KX + tb * 131072)}')
        for c in range(4): ld4(K + 16 * tb + 4 * c, V_L16, G_T1, 1024 * c)
        A(f's_add_u32 s{G_T1}, s{SOFF}, {hx(QX + tb * 131072)}')
        for c in range(4): ld4(Q + 16 * tb + 4 * c, V_L16, G_T1, 1024 * c)
    A(f's_add_u32 s{G_T1}, s{G_WO}, {hx(KM)}')
    for c in range(4): ld4(KMr + 4 * c, VKM, G_T1, 512 * c)
    A(f's_add_u32 s{G_T1}, s{G_WO}, {hx(VM)}')
    for e in range(8):
        A(f'buffer_load_dwordx2 v[{VMr+2*e}:{VMr+2*e+1}], v{VVM}, s[{S_WS}:{S_WS+3}], s{G_T1} offen offset:{256*e} sc1')
    A(f's_lshl_b32 s{G_T1}, s{SEG}, 18'); A(f's_lshl_b32 s{G_T0}, s{HD}, 13'); A(f's_add_u32 s{G_T1}, s{G_T1}, s{G_T0}'); A(f's_add_u32 s{G_T1}, s{G_T1}, {hx(VX)}')
    for e in range(4): ld4(V + 4 * e, V_L16, G_T1, 1024 * e)
    A(f's_add_u32 s{G_T1}, s{G_T1}, 4096')
    for e in range(4): ld4(V + 16 + 4 * e, V_L16, G_T1, 1024 * e)
    def mm(d, a_, b_, c):
        A(f'v_mfma_f32_16x16x32_bf16 v[{d}:{d+3}], v[{a_}:{a_+3}], v[{b_}:{b_+3}], ' + ('0' if c == 0 else f'v[{d}:{d+3}]'))
    A('s_waitcnt vmcnt(28)')
    for c in range(4): mm(S00, K + 4 * c, Q + 4 * c, c)
    A('s_waitcnt vmcnt(20)')
    for c in range(4):
        mm(S01, K + 4 * c, Q + 16 + 4 * c, c); mm(S11, K + 16 + 4 * c, Q + 16 + 4 * c, c)
    A('s_waitcnt vmcnt(16)')
    for c in range(4):
        mm(SM0, KMr + 4 * c, Q + 4 * c, c); mm(SM1, KMr + 4 * c, Q + 16 + 4 * c, c)
    A('s_nop 7')
    def rnd(regs):
        for i in range(0, len(regs), 2):
            A(f'v_cvt_pk_bf16_f32 v{T}, v{regs[i]}, v{regs[i+1]}')
            A(f'v_lshlrev_b32 v{regs[i]}, 16, v{T}'); A(f'v_and_b32 v{regs[i+1]}, 0xffff0000, v{T}')
    allr = list(range(S00, S00 + 20))
    rnd(allr)
    for i in range(0, 20, 2): A(f'v_pk_mul_f32 v[{allr[i]}:{allr[i]+1}], v[{allr[i]}:{allr[i]+1}], s[{SC}:{SC+1}] op_sel_hi:[1,0]')
    rnd(allr)
    for r in range(4):
        A(f'v_cndmask_b32 v{S00+r}, v{VMASK}, v{S00+r}, s[{60+2*r}:{61+2*r}]')
        A(f'v_cndmask_b32 v{S11+r}, v{VMASK}, v{S11+r}, s[{60+2*r}:{61+2*r}]')
        A(f'v_cndmask_b32 v{SM0+r}, v{VMASK}, v{SM0+r}, s[68:69]')
        A(f'v_cndmask_b32 v{SM1+r}, v{VMASK}, v{SM1+r}, s[68:69]')
    sets = [list(range(S00, S00 + 4)) + list(range(SM0, SM0 + 4)), list(range(S01, S01 + 8)) + list(range(SM1, SM1 + 4))]
    def reduce(op, op3, t0):
        for q, regs in enumerate(sets):
            t = t0 + 2 * q
            if op3:
                A(f'{op3} v{t}, v{regs[0]}, v{regs[1]}, v{regs[2]}')
                i = 3
                while i + 1 < len(regs): A(f'{op3} v{t}, v{t}, v{regs[i]}, v{regs[i+1]}'); i += 2
                if i < len(regs): A(f'{op} v{t}, v{t}, v{regs[i]}')
            else:
                A(f'{op} v{t}, v{regs[0]}, v{regs[1]}')
                for r in regs[2:]: A(f'{op} v{t}, v{t}, v{r}')
        for sw in ('v_permlane16_swap_b32', 'v_permlane32_swap_b32'):
            A(f'v_mov_b32 v{t0+1}, v{t0}'); A(f'v_mov_b32 v{t0+3}, v{t0+2}'); A('s_nop 1')
            A(f'{sw} v{t0}, v{t0+1}'); A(f'{sw} v{t0+2}, v{t0+3}')
            A(f'{op} v{t0}, v{t0}, v{t0+1}'); A(f'{op} v{t0+2}, v{t0+2}, v{t0+3}')
    reduce('v_max_f32', 'v_max3_f32', T)
    for q, regs in enumerate(sets):
        for r in regs: A(f'v_sub_f32 v{r}, v{r}, v{T+2*q}')
    for q, regs in enumerate(sets):
        for r in regs: A(f'v_mul_f32 v{r}, s{SC+1}, v{r}')
    for q, regs in enumerate(sets):
        for r in regs: A(f'v_exp_f32 v{r}, v{r}')
    A('s_nop 0')
    reduce('v_add_f32', None, T)
    A(f'v_rcp_f32 v{T}, v{T}'); A(f'v_rcp_f32 v{T+2}, v{T+2}'); A('s_nop 0')
    for q, regs in enumerate(sets):
        for i in range(0, len(regs), 2):
            A(f'v_pk_mul_f32 v[{regs[i]}:{regs[i]+1}], v[{regs[i]}:{regs[i]+1}], v[{T+2*q}:{T+2*q+1}] op_sel_hi:[1,0]')
    def cv(d, s_): A(f'v_cvt_pk_bf16_f32 v{d}, v{s_}, v{s_+1}')
    cv(BX0, S00); cv(BX0 + 1, S00 + 2); A(f'v_mov_b32 v{BX0+2}, 0'); A(f'v_mov_b32 v{BX0+3}, 0')
    cv(BX1, S01); cv(BX1 + 1, S01 + 2); cv(BX1 + 2, S11); cv(BX1 + 3, S11 + 2)
    cv(BM0, SM0); cv(BM0 + 1, SM0 + 2); cv(BM1, SM1); cv(BM1 + 1, SM1 + 2)
    A('s_waitcnt vmcnt(0)')
    for q, (bx, bm) in enumerate(((BX0, BM0), (BX1, BM1))):
        for e in range(8):
            d = 32 * q + 4 * e
            A(f'v_mfma_f32_16x16x16_bf16 a[{d}:{d+3}], v[{VMr+2*e}:{VMr+2*e+1}], v[{bm}:{bm+1}], 0')
        for e in range(8):
            d = 32 * q + 4 * e
            A(f'v_mfma_f32_16x16x32_bf16 a[{d}:{d+3}], v[{V+4*e}:{V+4*e+3}], v[{bx}:{bx+3}], a[{d}:{d+3}]')
    A(f's_add_u32 s{G_T1}, s{SOFF}, {hx(OO)}')
    n = 0
    for q in range(2):
        if q: A(f's_add_u32 s{G_T1}, s{G_T1}, 131072')
        else: A('s_nop 1')
        for c in range(4):
            d = 32 * q + 8 * c; t = Q + 8 * (n % 2); u = K + 4 * (n % 4); n += 1
            for r in range(8): A(f'v_accvgpr_read_b32 v{t+r}, a{d+r}')
            for r in range(4): cv(u + r, t + 2 * r)
            A(f'buffer_store_dwordx4 v[{u}:{u+3}], v{V_L16}, s[{S_WS}:{S_WS+3}], s{G_T1} offen offset:{1024*c} sc1')
    A(f's_add_u32 s{HD}, s{HD}, 1')
    A(f's_sub_u32 s{G_NK}, s{G_NK}, 1'); A(f's_cmp_lg_u32 s{G_NK}, 0')
    A(f's_cbranch_scc1 {loop}')

def gate(A):
    X, W, P = 20, 28, 44
    A(f's_mul_i32 s{G_T0}, s{S_WAVE}, s{G_NK}'); A(f's_add_u32 s{G_M0}, s{G_M0}, s{G_T0}')
    A(f'v_lshlrev_b32 v{V_L16}, 4, v1')
    for h in range(2):
        A(f'buffer_load_dwordx4 v[{X+4*h}:{X+4*h+3}], v{V_L16}, s[{S_WD}:{S_WD+3}], 0 offen offset:{1024*h}')
    A('v_cmp_eq_u32 vcc, 63, v1'); A(f'v_mov_b32 v4, {hx(OOB)}'); A('v_mov_b32 v5, 0'); A('v_cndmask_b32 v4, v4, v5, vcc')
    A('s_waitcnt vmcnt(0)')
    for p in range(8):
        A(f'v_lshlrev_b32 v{W+2*p}, 16, v{X+p}'); A(f'v_and_b32 v{W+2*p+1}, 0xffff0000, v{X+p}')
    A(f's_mov_b32 s{G_C0}, 0xbfb8aa3b')
    loop = A.label('gate')
    A(f'{loop}:')
    A(f's_lshl_b32 s{G_T0}, s{G_M0}, 11')
    for h in range(2):
        A(f'buffer_load_dwordx4 v[{X+4*h}:{X+4*h+3}], v{V_L16}, s[{S_XD}:{S_XD+3}], s{G_T0} offen offset:{1024*h}')
    A('s_waitcnt vmcnt(0)')
    for p in range(8):
        A(f'v_lshlrev_b32 v{P+2*p}, 16, v{X+p}'); A(f'v_and_b32 v{P+2*p+1}, 0xffff0000, v{X+p}')
    for p in range(8): A(f'v_pk_mul_f32 v[{P+2*p}:{P+2*p+1}], v[{P+2*p}:{P+2*p+1}], v[{W+2*p}:{W+2*p+1}]')
    for p in range(8): A(f'v_cvt_pk_bf16_f32 v{X+p}, v{P+2*p}, v{P+2*p+1}')
    for p in range(8):
        A(f'v_lshlrev_b32 v{P+2*p}, 16, v{X+p}'); A(f'v_and_b32 v{P+2*p+1}, 0xffff0000, v{X+p}')
    for st in (8, 4, 2):
        for p in range(0, st, 2): A(f'v_pk_add_f32 v[{P+p}:{P+p+1}], v[{P+p}:{P+p+1}], v[{P+st+p}:{P+st+p+1}]')
    A(f'v_add_f32 v{P}, v{P}, v{P+1}')
    for sh in (1, 2, 4, 8):
        A('s_nop 1'); A(f'v_add_f32_dpp v{P}, v{P}, v{P} row_shr:{sh} row_mask:0xf bank_mask:0xf bound_ctrl:1')
    A('s_nop 1'); A(f'v_add_f32_dpp v{P}, v{P}, v{P} row_bcast:15 row_mask:0xa bank_mask:0xf')
    A('s_nop 1'); A(f'v_add_f32_dpp v{P}, v{P}, v{P} row_bcast:31 row_mask:0xc bank_mask:0xf')
    A(f'v_cvt_pk_bf16_f32 v{P}, v{P}, v{P}'); A(f'v_and_b32 v{P}, 0xffff0000, v{P}')
    A(f'v_mul_f32 v{P}, s{G_C0}, v{P}'); A(f'v_exp_f32 v{P}, v{P}'); A('s_nop 0')
    A(f'v_add_f32 v{P}, 1.0, v{P}'); A(f'v_rcp_f32 v{P}, v{P}'); A('s_nop 0')
    A(f'v_cvt_pk_bf16_f32 v{P}, v{P}, v{P}'); A(f'v_and_b32 v{P}, 0xffff0000, v{P}')
    A(f's_lshl_b32 s{G_T0}, s{G_M0}, 2'); A(f's_add_u32 s{G_T0}, s{G_T0}, {hx(GG)}')
    A(f'buffer_store_dword v{P}, v4, s[{S_WS}:{S_WS+3}], s{G_T0} offen sc1')
    A(f's_add_u32 s{G_M0}, s{G_M0}, 1')
    A(f's_sub_u32 s{G_NK}, s{G_NK}, 1'); A(f's_cmp_lg_u32 s{G_NK}, 0')
    A(f's_cbranch_scc1 {loop}')
```

```python
from asmlib import *
from layout import *

S_WS, S_XD, S_WD, S_OD, S_DBG = 4, 8, 12, 16, 20
S_WAVE = 28
G_XO, G_XS, G_WO, G_WS, G_NK, G_OB, G_OTS, G_ROW = 32, 33, 34, 35, 36, 37, 38, 39
G_LX, G_LW, G_T0, G_T1, G_T2, G_TB = 40, 41, 42, 43, 44, 45
G_C0, G_M0, G_N0 = 46, 48, 49
V_XG, V_WG, V_XA, V_WA, V_L16, V_T = 4, 8, 12, 14, 18, 20
ACC = 64
L_X, L_W = 0, 65536

class Reads:
    def __init__(self, A):
        self.A, self.q = A, []
    def issue(self, key, text):
        self.A(text); self.q.append(key)
    def need(self, keys):
        idx = [i for i, k in enumerate(self.q) if k in keys]
        if not idx: return
        n = len(self.q) - 1 - max(idx)
        self.A(f's_waitcnt lgkmcnt({min(n, 15)})')
        self.q = self.q[len(self.q) - min(n, 15):]
    def drain(self):
        self.A('s_waitcnt lgkmcnt(0)'); self.q = []

class Gemm:
    def __init__(self, A, NTB=8, NFB=4, WT=2, WF=4, opts=()):
        self.A = A
        self.NTB, self.NFB, self.WT, self.WF = NTB, NFB, WT, WF
        assert WT * WF == 8
        self.TM, self.TN = 16 * NTB * WT, 16 * NFB * WF
        self.NX, self.NW = self.TM // 64, self.TN // 64
        self.opts = set(opts)
        self.dbl = NTB + NFB <= 8
        self.stamp = lambda k: None

    def acc(self, tb, fb): return ACC + 4 * (tb * self.NFB + fb)
    def xr(self, par, tb):
        b = 4 * ((par if self.dbl else 0) * self.NTB + tb)
        return b
    def wr(self, par, fb):
        return 4 * ((2 if self.dbl else 1) * self.NTB + par * self.NFB + fb)

    def wave_ids(self):
        A = self.A
        A(f's_lshr_b32 s{G_T0}, s{S_WAVE}, {self.WF.bit_length() - 1}')
        A(f's_and_b32 s{G_T1}, s{S_WAVE}, {self.WF - 1}')

    def setup(self, xt):
        A = self.A
        NX, NW, TN = self.NX, self.NW, self.TN
        T = V_T
        self.wave_ids()
        A(f's_mul_i32 s{G_LX}, s{S_WAVE}, {NX * 1024}')
        A(f's_mul_i32 s{G_LW}, s{S_WAVE}, {NW * 1024}'); A(f's_add_u32 s{G_LW}, s{G_LW}, {L_W}')
        A(f'v_lshlrev_b32 v{V_L16}, 4, v1')
        if xt == 'rm':
            A(f'v_lshrrev_b32 v{T+2}, 4, v1'); A(f'v_and_b32 v{T+3}, 7, v1'); A(f'v_lshrrev_b32 v{T+1}, 3, v1')
            for i in range(NX):
                A(f's_mul_i32 s{G_T2}, s{S_WAVE}, {NX}'); A(f's_add_u32 s{G_T2}, s{G_T2}, {i}')
                A(f's_and_b32 s{G_TB}, s{G_T2}, 1'); A(f's_lshl_b32 s{G_TB}, s{G_TB}, 2')
                A(f'v_or_b32 v{T}, s{G_TB}, v{T+2}'); A(f'v_xor_b32 v{T}, v{T}, v{T+3}'); A(f'v_lshlrev_b32 v{T}, 4, v{T}')
                A(f'v_lshl_add_u32 v{T}, v{T+1}, 11, v{T}')
                A(f's_lshl_b32 s{G_T2}, s{G_T2}, 14')
                A(f'v_add_u32 v{V_XG+i}, s{G_T2}, v{T}')
            A(f's_mul_i32 s{G_T2}, s{G_T0}, {self.NTB * 2048}')
            A(f'v_bfe_u32 v{T+1}, v1, 1, 3'); A(f'v_and_b32 v{T+3}, 15, v1')
            for s2 in range(2):
                A(f'v_add_u32 v{T}, {4*s2}, v{T+2}'); A(f'v_xor_b32 v{T}, v{T}, v{T+1}'); A(f'v_lshlrev_b32 v{T}, 4, v{T}')
                A(f'v_lshl_add_u32 v{T}, v{T+3}, 7, v{T}')
                A(f'v_add_u32 v{V_XA+s2}, s{G_T2}, v{T}')
        else:
            if NX >= 2:
                for i in range(NX // 2):
                    A(f's_mul_i32 s{G_T2}, s{S_WAVE}, {NX // 2}'); A(f's_add_u32 s{G_T2}, s{G_T2}, {i}')
                    A(f's_mul_i32 s{G_T2}, s{G_T2}, s{G_TB}')
                    A(f'v_add_u32 v{V_XG+i}, s{G_T2}, v{V_L16}')
            else:
                A(f's_lshr_b32 s{G_T2}, s{S_WAVE}, 1'); A(f's_mul_i32 s{G_T2}, s{G_T2}, s{G_TB}')
                A(f's_and_b32 s{G_TB}, s{S_WAVE}, 1'); A(f's_lshl_b32 s{G_TB}, s{G_TB}, 10'); A(f's_add_u32 s{G_T2}, s{G_T2}, s{G_TB}')
                A(f'v_add_u32 v{V_XG}, s{G_T2}, v{V_L16}')
            A(f's_mul_i32 s{G_T2}, s{G_T0}, {self.NTB * 2048}')
            A(f'v_add_u32 v{V_XA}, s{G_T2}, v{V_L16}')
        RPI = 512 // TN; LPR = 64 // RPI
        sh = LPR.bit_length() - 1
        A(f'v_lshrrev_b32 v{T+3}, {sh}, v1'); A(f'v_and_b32 v{T+4}, {LPR-1}, v1')
        for i in range(NW):
            A(f's_mul_i32 s{G_T2}, s{S_WAVE}, {NW * RPI}'); A(f's_add_u32 s{G_T2}, s{G_T2}, {i * RPI}')
            A(f'v_add_u32 v{T}, s{G_T2}, v{T+3}')
            if xt == 'rm':
                A(f'v_and_b32 v{T+1}, 3, v{T}'); A(f'v_bfe_u32 v{T+2}, v{T}, 3, 1'); A(f'v_lshl_or_b32 v{T+1}, v{T+2}, 2, v{T+1}')
            else:
                A(f'v_and_b32 v{T+1}, 7, v{T}')
            if TN < 128: A(f'v_lshrrev_b32 v{T+1}, 1, v{T+1}')
            A(f'v_lshlrev_b32 v{T+1}, 1, v{T+1}'); A(f'v_xor_b32 v{T+1}, v{T+1}, v{T+4}')
            A(f'v_mul_lo_u32 v{T}, v{T}, s{G_ROW}')
            A(f'v_lshl_add_u32 v{V_WG+i}, v{T+1}, 4, v{T}')
        rb = TN * 2
        A(f'v_bfe_u32 v{T}, v1, 2, 2')
        A(f'v_lshrrev_b32 v{T+1}, 4, v1')
        A(f'v_lshl_add_u32 v{T+2}, v{T+1}, {3 if xt == "rm" else 2}, v{T}')
        A(f'v_mul_u32_u24 v{T+2}, {rb}, v{T+2}')
        A(f'v_and_b32 v{T+3}, 3, v1'); A(f'v_lshl_add_u32 v{T+2}, v{T+3}, 3, v{T+2}')
        A(f'v_add_u32 v{T+2}, {L_W}, v{T+2}')
        A(f'v_and_b32 v{T+1}, 1, v{T+1}'); A(f'v_lshl_or_b32 v{T}, v{T+1}, 2, v{T}')
        if TN < 128: A(f'v_lshrrev_b32 v{T}, 1, v{T}')
        for fb in range(self.NFB):
            A(f's_mul_i32 s{G_T2}, s{G_T1}, {self.NFB}'); A(f's_add_u32 s{G_T2}, s{G_T2}, {fb}')
            A(f'v_xor_b32 v{T+1}, s{G_T2}, v{T}')
            A(f'v_lshl_add_u32 v{V_WA+fb}, v{T+1}, 5, v{T+2}')

    def dma(self, xt, buf):
        g = []
        if xt == 'rm':
            for i in range(self.NX):
                g.append([f's_add_u32 m0, s{G_LX}, {L_X + buf * 32768 + i * 1024}', 's_nop 0',
                          f'buffer_load_dwordx4 v{V_XG+i}, s[{S_XD}:{S_XD+3}], s{G_XO} offen lds'])
        else:
            for i in range(self.NX):
                pre = [f's_add_u32 m0, s{G_LX}, {L_X + buf * 32768 + (i >> 1) * 2048}', 's_nop 0'] if i % 2 == 0 else []
                g.append(pre + [f'buffer_load_dwordx4 v{V_XG + (i >> 1)}, s[{S_XD}:{S_XD+3}], s{G_XO} offen offset:{(i & 1) * 1024} sc1 lds'])
        for i in range(self.NW):
            g.append([f's_add_u32 m0, s{G_LW}, {buf * 32768 + i * 1024}', 's_nop 0',
                      f'buffer_load_dwordx4 v{V_WG+i}, s[{S_WD}:{S_WD+3}], s{G_WO} offen lds'])
        return g

    def advance(self):
        A = self.A
        A(f's_add_u32 s{G_XO}, s{G_XO}, s{G_XS}'); A(f's_add_u32 s{G_WO}, s{G_WO}, s{G_WS}')

    def rd_x(self, xt, buf, s2, par, tb):
        r = self.xr(par, tb)
        if xt == 'rm': t = f'ds_read_b128 a[{r}:{r+3}], v{V_XA+s2} offset:{L_X + buf * 32768 + tb * 2048}'
        else: t = f'ds_read_b128 a[{r}:{r+3}], v{V_XA} offset:{L_X + buf * 32768 + tb * 2048 + s2 * 1024}'
        return (('x', par if self.dbl else 0, tb), t)
    def rd_w(self, xt, buf, s2, par, fb):
        rb = self.TN * 2
        hs = (4 if xt == 'rm' else 16) * rb
        r = self.wr(par, fb)
        return [(('w', par, fb, h), f'ds_read_b64_tr_b16 a[{r+2*h}:{r+2*h+1}], v{V_WA+fb} offset:{buf * 32768 + s2 * 32 * rb + h * hs}') for h in range(2)]

    def substep(self, xt, orient, buf, s2, first, mode):
        A, R = self.A, self.R
        par = s2
        nbuf, ns2 = (buf, 1) if s2 == 0 else (buf ^ 1, 0)
        ahead = not (s2 == 1 and mode == 'last')
        wreads = sum((self.rd_w(xt, nbuf, ns2, par ^ 1, fb) for fb in range(self.NFB)), []) if ahead else []
        xreads = [self.rd_x(xt, nbuf, ns2, par ^ 1, tb) for tb in range(self.NTB)] if ahead else []
        free = wreads + (xreads if self.dbl else [])
        nm = self.NTB * self.NFB
        sync_at = min(self.NFB, nm - 1) if (s2 == 1 and ahead) else 0
        dma = self.pending if s2 == 0 else []
        n = 0
        for tb in range(self.NTB):
            R.need({('x', par if self.dbl else 0, tb)} | ({('w', par, fb, h) for fb in range(self.NFB) for h in range(2)} if tb == 0 else set()))
            for fb in range(self.NFB):
                d = self.acc(tb, fb)
                x, w = self.xr(par, tb), self.wr(par, fb)
                a_, b_ = (w, x) if orient == 'kq' else (x, w)
                c = '0' if first else f'v[{d}:{d+3}]'
                A(f'v_mfma_f32_16x16x32_bf16 v[{d}:{d+3}], a[{a_}:{a_+3}], a[{b_}:{b_+3}], {c}')
                n += 1
                if n == sync_at:
                    R.drain()
                    A('s_waitcnt vmcnt(0)')
                    A('s_barrier')
                    if mode == 'mid':
                        self.advance()
                        g = self.dma(xt, buf)
                        k = (len(g) + 1) // 2
                        dma, self.next_pending = g[:k], g[k:]
                    else:
                        self.next_pending = []
                if n < sync_at: continue
                left = nm - n
                inplace = (not self.dbl) and xreads and fb == self.NFB - 1
                if inplace:
                    R.issue(*xreads[tb])
                elif free:
                    k = 1 if len(free) <= max(left - self.NFB, 1) else -(-len(free) // max(left - self.NFB, 1))
                    if left == 0: k = len(free)
                    for rd in free[:k]: R.issue(*rd)
                    free = free[k:]
                elif dma and (n % 2 == 0 or left <= len(dma)):
                    for ln in dma[0]: A(ln)
                    dma = dma[1:]
        for rd in free: R.issue(*rd)
        for grp in dma:
            for ln in grp: A(ln)
        if s2 == 1: self.pending = self.next_pending if ahead else []
        else: self.pending = []

    def stage(self, xt, orient, buf, first=False, mode='mid'):
        self.substep(xt, orient, buf, 0, first, mode)
        self.substep(xt, orient, buf, 1, False, mode)

    def mainloop(self, xt, orient):
        A = self.A
        self.R = R = Reads(A)
        for ln in sum(self.dma(xt, 0), []): A(ln)
        self.advance()
        for ln in sum(self.dma(xt, 1), []): A(ln)
        A(f's_waitcnt vmcnt({self.NX + self.NW})')
        A('s_barrier')
        self.stamp(1)
        for fb in range(self.NFB):
            for rd in self.rd_w(xt, 0, 0, 0, fb): R.issue(*rd)
        for tb in range(self.NTB): R.issue(*self.rd_x(xt, 0, 0, 0, tb))
        loop = A.label('kloop')
        self.pending = []
        self.stage(xt, orient, 0, True)
        self.stage(xt, orient, 1)
        A(f's_sub_u32 s{G_NK}, s{G_NK}, 2')
        state = list(R.q)
        A(f'{loop}:')
        self.stage(xt, orient, 0)
        self.stage(xt, orient, 1)
        assert R.q == state
        A(f's_sub_u32 s{G_NK}, s{G_NK}, 1')
        A(f's_cmp_lg_u32 s{G_NK}, 0')
        A(f's_cbranch_scc1 {loop}')
        self.stage(xt, orient, 0, mode='prelast')
        self.stage(xt, orient, 1, mode='last')
        A('s_nop 7')

    def epi_frag(self, orient, silu=False):
        A = self.A
        self.wave_ids()
        n = 0
        if orient == 'kq': outer = [(tb, [(self.acc(tb, 2*c), self.acc(tb, 2*c+1), c) for c in range(self.NFB // 2)]) for tb in range(self.NTB)]
        else: outer = [(s, [(self.acc(2*s, fb), self.acc(2*s+1, fb), fb) for fb in range(self.NFB)]) for s in range(self.NTB // 2)]
        A(f's_mul_i32 s{G_TB}, s{G_T1}, {len(outer[0][1]) * 1024}'); A(f's_add_u32 s{G_TB}, s{G_TB}, s{G_OB}')
        A(f's_mul_i32 s{G_T2}, s{G_T0}, {len(outer)}'); A(f's_mul_i32 s{G_T2}, s{G_T2}, s{G_OTS}'); A(f's_add_u32 s{G_T2}, s{G_T2}, s{G_TB}')
        for o, inner in outer:
            if o: A(f's_add_u32 s{G_T2}, s{G_T2}, s{G_OTS}')
            if silu:
                regs = [d + r for (d0, d1, _) in inner for d in (d0, d1) for r in range(4)]
                m = len(regs); P, U = V_T, V_T + 8
                assert m <= 16 and all(regs[i + 1] == regs[i] + 1 for i in range(0, m, 2))
                for p in range(m // 2): A(f'v_cvt_pk_bf16_f32 v{P+p}, v{regs[2*p]}, v{regs[2*p+1]}')
                for p in range(m // 2):
                    A(f'v_lshlrev_b32 v{regs[2*p]}, 16, v{P+p}'); A(f'v_and_b32 v{regs[2*p+1]}, 0xffff0000, v{P+p}')
                for p in range(m // 2): A(f'v_pk_mul_f32 v[{U+2*p}:{U+2*p+1}], v[{regs[2*p]}:{regs[2*p+1]}], s[{G_C0}:{G_C0+1}]')
                for p in range(m): A(f'v_exp_f32 v{U+p}, v{U+p}')
                for p in range(m // 2): A(f'v_pk_add_f32 v[{U+2*p}:{U+2*p+1}], v[{U+2*p}:{U+2*p+1}], 1.0 op_sel_hi:[1,0]')
                for p in range(m): A(f'v_rcp_f32 v{U+p}, v{U+p}')
                for p in range(m // 2): A(f'v_pk_mul_f32 v[{regs[2*p]}:{regs[2*p+1]}], v[{regs[2*p]}:{regs[2*p+1]}], v[{U+2*p}:{U+2*p+1}]')
            for d0, d1, c in inner:
                T = V_T + 24 + 4 * (n % 4); n += 1
                A(f'v_cvt_pk_bf16_f32 v{T}, v{d0}, v{d0+1}'); A(f'v_cvt_pk_bf16_f32 v{T+1}, v{d0+2}, v{d0+3}')
                A(f'v_cvt_pk_bf16_f32 v{T+2}, v{d1}, v{d1+1}'); A(f'v_cvt_pk_bf16_f32 v{T+3}, v{d1+2}, v{d1+3}')
                A(f'buffer_store_dwordx4 v[{T}:{T+3}], v{V_L16}, s[{S_WS}:{S_WS+3}], s{G_T2} offen offset:{c*1024} sc1')

    def epi_final(self):
        A = self.A
        NTB, NC = self.NTB, self.NFB // 2
        self.wave_ids()
        A(f's_mul_i32 s{G_T2}, s{G_T0}, {NTB * 16}'); A(f's_add_u32 s{G_M0}, s{G_M0}, s{G_T2}')
        A(f's_mul_i32 s{G_T2}, s{G_T1}, {self.NFB * 16}'); A(f's_add_u32 s{G_N0}, s{G_N0}, s{G_T2}')
        A(f's_lshl_b32 s{G_T2}, s{G_M0}, 11'); A(f's_lshl_b32 s{G_TB}, s{G_N0}, 5'); A(f's_add_u32 s{G_OB}, s{G_T2}, s{G_TB}')
        A(f's_add_u32 s{G_OB}, s{G_OB}, {hx(BB)}')
        A(f's_lshl_b32 s{G_T2}, s{G_M0}, 2'); A(f's_add_u32 s{G_T2}, s{G_T2}, {hx(GG)}')
        VG, VO, VB = 4, 12, 20
        A('v_and_b32 v2, 15, v1'); A('v_lshlrev_b32 v3, 2, v2')
        for tb in range(NTB):
            A(f'buffer_load_dword v{VG+tb}, v3, s[{S_WS}:{S_WS+3}], s{G_T2} offen offset:{64*tb} sc1')
        def bload(tb):
            for c in range(NC):
                r = VB + 4 * ((tb % 4) * NC + c)
                A(f'buffer_load_dwordx4 v[{r}:{r+3}], v{V_L16}, s[{S_WS}:{S_WS+3}], s{G_OB} offen offset:{1024*c} sc1')
            A(f's_add_u32 s{G_OB}, s{G_OB}, 32768')
        ahead = min(3, NTB)
        for tb in range(ahead): bload(tb)
        A('v_lshlrev_b32 v12, 11, v2'); A('v_bfe_u32 v3, v1, 4, 1'); A('v_lshl_add_u32 v12, v3, 5, v12')
        A('v_lshrrev_b32 v3, 5, v1'); A('v_lshl_add_u32 v12, v3, 4, v12')
        A(f's_lshl_b32 s{G_T2}, s{G_M0}, 11'); A(f's_lshl_b32 s{G_TB}, s{G_N0}, 1'); A(f's_add_u32 s{G_T2}, s{G_T2}, s{G_TB}')
        T = 52
        out = [('g',)] * NTB + sum(([('b', tb)] * NC for tb in range(ahead)), [])
        for tb in range(NTB):
            last = max(i for i, k in enumerate(out) if k == ('b', tb))
            A(f's_waitcnt vmcnt({len(out) - 1 - last})')
            A(f'v_sub_f32 v14, 1.0, v{VG+tb}'); A('v_cvt_pk_bf16_f32 v14, v14, v14'); A('v_and_b32 v14, 0xffff0000, v14')
            A(f'v_mov_b32 v16, v{VG+tb}')
            for c in range(NC):
                d = self.acc(tb, 2 * c); r = VB + 4 * ((tb % 4) * NC + c)
                for p in range(4):
                    a0 = d + 2 * p
                    A(f'v_cvt_pk_bf16_f32 v{T}, v{a0}, v{a0+1}')
                    A(f'v_lshlrev_b32 v{a0}, 16, v{T}'); A(f'v_and_b32 v{a0+1}, 0xffff0000, v{T}')
                    A(f'v_pk_mul_f32 v[{a0}:{a0+1}], v[{a0}:{a0+1}], v[16:17] op_sel_hi:[1,0]')
                    A(f'v_lshlrev_b32 v{T+2}, 16, v{r+p}'); A(f'v_and_b32 v{T+3}, 0xffff0000, v{r+p}')
                    A(f'v_pk_mul_f32 v[{T+2}:{T+3}], v[{T+2}:{T+3}], v[14:15] op_sel_hi:[1,0]')
                    A(f'v_cvt_pk_bf16_f32 v{T}, v{a0}, v{a0+1}'); A(f'v_cvt_pk_bf16_f32 v{T+1}, v{T+2}, v{T+3}')
                    A(f'v_lshlrev_b32 v{a0}, 16, v{T}'); A(f'v_and_b32 v{a0+1}, 0xffff0000, v{T}')
                    A(f'v_lshlrev_b32 v{T+2}, 16, v{T+1}'); A(f'v_and_b32 v{T+3}, 0xffff0000, v{T+1}')
                    A(f'v_pk_add_f32 v[{a0}:{a0+1}], v[{a0}:{a0+1}], v[{T+2}:{T+3}]')
                    A(f'v_cvt_pk_bf16_f32 v{T+4+p}, v{a0}, v{a0+1}')
                A('s_nop 1')
                A(f'v_permlane16_swap_b32 v{T+4}, v{T+6}'); A(f'v_permlane16_swap_b32 v{T+5}, v{T+7}')
                A(f'buffer_store_dwordx4 v[{T+4}:{T+7}], v12, s[{S_OD}:{S_OD+3}], s{G_T2} offen offset:{64*c}')
                out.append(('s', tb))
                A('s_nop 0')
            if tb + ahead < NTB:
                bload(tb + ahead); out += [('b', tb + ahead)] * NC
            A(f's_add_u32 s{G_T2}, s{G_T2}, 32768')
```

```python
KX   = 0x0000000
VX   = 0x1000000
QX   = 0x2000000
HH   = 0x3000000
OO   = 0x4000000
BB   = 0x5000000
KM   = 0x5400000
VM   = 0x5800000
GG   = 0x5C00000
FLG  = 0x5C10000
RA   = 0x5D00000
RB2  = 0x5D40000
RC   = 0x5E00000
RB1  = 0x6000000
STAMP= 0x6800000
WS_BYTES = 0x10000000
SENT = 0xFFFFFFFF
OOB  = 0x80000000
DBG_TICKET = 0
DBG_INIT   = 8
DBG_MODE   = 9
DBG_NEXT   = 10
DBG_GATE   = 11
DBG_QUEUE  = 12
DBG_ERR    = 15
DBG_KV, DBG_Q, DBG_H, DBG_B = 16, 24, 32, 40
DBG_O      = 48
KA_X, KA_MEM0, KA_WQ, KA_WK, KA_WV, KA_WO, KA_SEG, KA_BX, KA_W1, KA_W2, KA_GW, KA_OUT, KA_DBG, KA_WS = [8*i for i in range(14)]
```

```python
from asmlib import *
from layout import *

S_WS, S_T0, S_T1, S_T2, S_DBG = 4, 8, 12, 16, 20
S_X, S_J, S_H, S_B, S_WAVE, S_STEP, S_SENT, S_TO = 24, 25, 26, 27, 28, 29, 30, 31
S_A, S_B2, S_C, S_B1, S_B1BASE, S_KV, S_KM, S_TMP = 32, 33, 34, 35, 36, 37, 38, 39
S_TMP2, S_TMP3 = 40, 41
S_CLR = 42
S_ST = 60
NSTEP = 64
TIMEOUT = 1 << 18

L_QK  = 0
QK_WS, QK_RS = 2176, 272
L_V   = 8704
L_S3  = 12800
S3_WS, S3_RS = 1152, 144
L_MISC= 17408
L_KV  = 18432
L_ST1 = 32768
L_ST3 = 131072

class Rec:
    def __init__(self, A, stamps=False, plain=True, abort='L_abort', opts=()):
        self.A, self.stamps, self.abort = A, stamps, abort
        self.pl = '' if plain else ' sc1'
        self.nst = 0
        self.kvwait = 'kvwait' in opts
        self.opts = set(opts) | {'cfirst', 'nomask', 'ackB1'}
        self.absstep = 40
        self.late = ()

    def stamp(self, k):
        if not self.stamps or self.stamps == 'pro': return
        if self.stamps == 'light' and k != 11: return
        A = self.A
        A(f's_mem{"real" if self.stamps == "abs" else ""}time s[{S_ST+2}:{S_ST+3}]')
        A('s_waitcnt lgkmcnt(0)')
        if self.stamps == 'abs':
            if k == 11:
                A(f's_memrealtime s[{S_ST}:{S_ST+1}]'); A('s_waitcnt lgkmcnt(0)')
                A(f's_mov_b32 s{S_ST+4+10}, s{S_ST}'); A(f's_mov_b32 s{S_ST+4+11}, s{S_ST+2}')
                return
            A(f's_cmp_eq_u32 s{S_STEP}, {self.absstep + (1 if k in self.late else 0)}')
            A(f's_cselect_b32 s{S_ST+4+k}, s{S_ST+2}, s{S_ST+4+k}')
            return
        A(f's_sub_u32 s{S_TMP3}, s{S_ST+2}, s{S_ST}')
        A(f's_add_u32 s{S_ST+4+k}, s{S_ST+4+k}, s{S_TMP3}')
        A(f's_mov_b32 s{S_ST}, s{S_ST+2}')

    def check(self, regs, t, ok, retry):
        A = self.A
        regs = list(regs)
        A(f'v_max3_u32 v{t}, v{regs[0]}, v{regs[1]}, v{regs[2]}')
        i = 3
        while i + 1 < len(regs):
            A(f'v_max3_u32 v{t}, v{t}, v{regs[i]}, v{regs[i+1]}'); i += 2
        if i < len(regs):
            A(f'v_max_u32 v{t}, v{t}, v{regs[i]}')
        A(f'v_cmp_eq_u32 vcc, s{S_SENT}, v{t}')
        A(f's_cbranch_vccz {ok}')
        if self.stamps: A(f's_add_u32 s{S_ST+16}, s{S_ST+16}, 1')
        A(f's_add_u32 s{S_TO}, s{S_TO}, 1')
        A(f's_cmp_lt_u32 s{S_TO}, {TIMEOUT}')
        A(f's_cbranch_scc1 {retry}')
        A(f's_branch {self.abort}')

    def gather(self, loads, t, between=None, name='g'):
        A = self.A
        wait, ok = A.label(name + 'wait'), A.label(name + 'ok')
        for ins, _ in loads: A(ins)
        if between: between()
        A(f'{wait}:')
        A('s_waitcnt vmcnt(0)')
        regs = [r for _, r in loads]
        A(f'v_max3_u32 v{t}, v{regs[0]}, v{regs[1]}, v{regs[2]}')
        i = 3
        while i + 1 < len(regs):
            A(f'v_max3_u32 v{t}, v{t}, v{regs[i]}, v{regs[i+1]}'); i += 2
        if i < len(regs):
            A(f'v_max_u32 v{t}, v{t}, v{regs[i]}')
        A(f'v_cmp_eq_u32 vcc, s{S_SENT}, v{t}')
        A(f's_cbranch_vccz {ok}')
        for ins, r in loads:
            if 'nomask' in self.opts:
                A(ins)
            else:
                A(f'v_cmpx_eq_u32 vcc, s{S_SENT}, v{r}')
                A(ins)
                A('s_mov_b64 exec, -1')
        if self.stamps: A(f's_add_u32 s{S_ST+16}, s{S_ST+16}, 1')
        A(f's_add_u32 s{S_TO}, s{S_TO}, 1')
        A(f's_cmp_lt_u32 s{S_TO}, {TIMEOUT}')
        A(f's_cbranch_scc1 {wait}')
        A(f's_branch {self.abort}')
        A(f'{ok}:')

    def delay(self, key):
        for o in self.opts:
            if o.startswith(key + '='):
                n = int(o.split('=')[1])
                while n > 0:
                    self.A(f's_nop {min(n, 16) - 1}'); n -= 16

    def ring(self, dst, base, step_add, xstride, sstride):
        A = self.A
        if 'fresh' in self.opts:
            base = {RA: 0x8000000, RB2: 0x8800000, RC: 0x9000000}[base]; xstride *= 16
            A(f's_add_u32 s{S_TMP}, s{S_STEP}, {step_add & 63}')
            A(f's_and_b32 s{S_TMP}, s{S_TMP}, 63')
        else:
            A(f's_add_u32 s{S_TMP}, s{S_STEP}, {step_add & 3}')
            A(f's_and_b32 s{S_TMP}, s{S_TMP}, 3')
        A(f's_mul_i32 s{S_TMP}, s{S_TMP}, {hx(sstride)}')
        A(f's_mul_i32 s{dst}, s{S_X}, {hx(xstride)}')
        A(f's_add_u32 s{dst}, s{dst}, s{S_TMP}')
        A(f's_add_u32 s{dst}, s{dst}, {hx(base)}')

    def ringB1(self, dst, step_add):
        A = self.A
        A(f's_add_u32 s{S_TMP}, s{S_STEP}, {step_add & 3}')
        A(f's_and_b32 s{S_TMP}, s{S_TMP}, 3')
        A(f's_lshl_b32 s{S_TMP}, s{S_TMP}, 18')
        A(f's_add_u32 s{dst}, s{S_B1BASE}, s{S_TMP}')

    def lanes(self):
        A = self.A
        A('v_and_b32 v1, 63, v0')
        A('v_and_b32 v2, 15, v1')
        A('v_lshrrev_b32 v3, 4, v1')

    def load_weights(self, stage):
        A = self.A
        nm = 3 if stage == 1 else 1
        bufsz = nm * 4096
        rowb = 8192 if stage == 1 else 2048
        VG, VL, VT = 4, 5, 8
        SL = S_TMP2
        A(f'v_lshrrev_b32 v{VG}, 2, v1')
        A(f'v_mul_u32_u24 v{VG}, {rowb}, v{VG}')
        A(f'v_and_b32 v6, 3, v1')
        A(f'v_lshl_add_u32 v{VG}, v6, 4, v{VG}')
        if stage == 1:
            A(f's_lshl_b32 s{S_TMP}, s{S_H}, 8')
            A(f's_lshl_b32 s{S_TMP3}, s{S_B}, 6')
            A(f's_add_u32 s{S_TMP}, s{S_TMP}, s{S_TMP3}')
            A(f's_lshl_b32 s{S_TMP3}, s{S_WAVE}, 21')
            A(f's_add_u32 s{S_TMP}, s{S_TMP}, s{S_TMP3}')
            A(f's_mul_i32 s{SL}, s{S_WAVE}, 24576')
            A(f's_add_u32 s{SL}, s{SL}, {L_ST1}')
        else:
            A(f's_lshl_b32 s{S_TMP}, s{S_X}, 21')
            A(f's_sub_u32 s{S_TMP3}, s{S_WAVE}, 4')
            A(f's_lshl_b32 s{SL}, s{S_TMP3}, 13')
            A(f's_add_u32 s{SL}, s{SL}, {L_ST3}')
            A(f's_lshl_b32 s{S_TMP3}, s{S_TMP3}, 19')
            A(f's_add_u32 s{S_TMP}, s{S_TMP}, s{S_TMP3}')
            A(f's_lshl_b32 s{S_TMP3}, s{S_J}, 6')
            A(f's_add_u32 s{S_TMP}, s{S_TMP}, s{S_TMP3}')
        A(f'v_add_u32 v{VG}, s{S_TMP}, v{VG}')
        A('v_lshrrev_b32 v6, 1, v3')
        A('v_and_b32 v7, 1, v3')
        if stage == 1:
            A('v_lshlrev_b32 v6, 4, v6'); A('v_lshl_add_u32 v6, v7, 2, v6')
        else:
            A('v_lshlrev_b32 v6, 3, v6'); A('v_lshl_add_u32 v6, v7, 4, v6')
        A('v_lshrrev_b32 v7, 2, v2')
        A('v_add_u32 v6, v6, v7')
        A('v_lshlrev_b32 v6, 6, v6')
        A('v_and_b32 v7, 3, v2')
        A('v_lshl_add_u32 v6, v7, 3, v6')
        A(f'v_add_u32 v{VL}, s{SL}, v6')
        srds = [S_T0, S_T1, S_T2]
        def issue(u):
            for m in range(nm):
                for n in range(4):
                    A(f's_add_u32 m0, s{SL}, {(u & 1) * bufsz + m * 4096 + n * 1024}')
                    A(f's_mov_b32 s{S_TMP}, {hx((64 * u + 16 * n) * rowb)}')
                    A(f'buffer_load_dwordx4 v{VG}, s[{srds[m]}:{srds[m]+3}], s{S_TMP} offen lds')
        def dest(f, d):
            if stage == 3 or f < 8: return ('a', 8 * f + d)
            return ('v', 64 + 8 * (f - 8) + d)
        phs = 512 if stage == 1 else 256
        issue(0); issue(1)
        for u in range(4):
            A(f's_waitcnt vmcnt({4 * nm if u < 3 else 0})')
            for m in range(nm):
                k = 0
                for tau in range(2):
                    for dh in range(2):
                        for ph in range(2):
                            off = (u & 1) * bufsz + m * 4096 + dh * 2048 + ph * phs + tau * 32
                            A(f'ds_read_b64_tr_b16 v[{VT+2*k}:{VT+2*k+1}], v{VL} offset:{off}'); k += 1
                A('s_waitcnt lgkmcnt(0)')
                if m == nm - 1 and u + 2 < 4:
                    issue(u + 2)
                k = 0
                for tau in range(2):
                    f = u * 2 * nm + 2 * m + tau
                    for dh in range(2):
                        for ph in range(2):
                            for z in range(2):
                                kind, n = dest(f, 4 * dh + ph + 2 * z)
                                if kind == 'a': A(f'v_accvgpr_write_b32 a{n}, v{VT+2*k+z}')
                                else: A(f'v_mov_b32 v{n}, v{VT+2*k+z}')
                            k += 1

    def wfrag(self, stage, f):
        if stage == 3 or f < 8: return a(8 * f, 8)
        return v(64 + 8 * (f - 8), 8)

    def idx_reg(self, r):
        A = self.A
        A(f'v_and_b32 v{r}, 8, v1')
        A(f'v_cmp_eq_u32 vcc, 0, v{r}')
        A(f'v_mov_b32 v{r}, 0xeeee')
        A(f'v_mov_b32 v6, 0x4444')
        A(f'v_cndmask_b32 v{r}, v{r}, v6, vcc')

    def combine(self, da, db):
        A = self.A
        for r in range(4): A(f'v_permlane32_swap_b32 v{da+r}, v{db+r}')
        for r in range(0, 4, 2): A(f'v_pk_add_f32 v[{da+r}:{da+r+1}], v[{da+r}:{da+r+1}], v[{db+r}:{db+r+1}]')

    def s1(self):
        A = self.A
        VIDX, VG, VWQ, VWV, VT = 4, 5, 7, 8, 9
        VA, VD = 12, 28
        srd(A, S_T0, 46, 1024 * 8192); srd(A, S_T1, 48, 1024 * 8192); srd(A, S_T2, 50, 1024 * 8192)
        self.load_weights(1)
        self.pst(2)
        self.idx_reg(VIDX)
        srd(A, S_T0, 52, 8 * 2048)
        A('v_and_b32 v6, 7, v1'); A('v_lshlrev_b32 v6, 11, v6')
        A('v_lshrrev_b32 v9, 3, v1'); A('v_lshl_add_u32 v6, v9, 4, v6')
        A(f's_lshl_b32 s{S_TMP}, s{S_WAVE}, 9')
        A(f'v_add_u32 v6, s{S_TMP}, v6')
        for u in range(4):
            A(f'buffer_load_dwordx4 v[{VA+4*u}:{VA+4*u+3}], v6, s[{S_T0}:{S_T0+3}], 0 offen offset:{128*u}')
        A(f'v_lshlrev_b32 v{VG}, 4, v1')
        A(f's_lshl_b32 s{S_TMP}, s{S_WAVE}, 12')
        A(f'v_add_u32 v{VG}, s{S_TMP}, v{VG}')
        A('v_and_b32 v6, 1, v3'); A(f'v_mul_u32_u24 v{VWQ}, {4*QK_RS}, v6')
        A('v_lshrrev_b32 v6, 5, v1'); A(f'v_lshl_add_u32 v6, v6, 4, v2')
        A(f'v_lshl_add_u32 v{VWQ}, v6, 2, v{VWQ}')
        A(f's_mul_i32 s{S_TMP}, s{S_WAVE}, {QK_WS}')
        A(f'v_add_u32 v{VWQ}, s{S_TMP}, v{VWQ}')
        A(f's_lshl_b32 s{S_TMP}, s{S_WAVE}, 10'); A(f's_add_u32 s{S_TMP}, s{S_TMP}, {L_V}')
        A(f'v_lshl_add_u32 v{VWV}, v1, 4, s{S_TMP}')
        for r in range(24): A(f'v_mov_b32 v{VD+r}, 0')
        A('s_barrier')
        A('s_barrier')
        A('s_waitcnt vmcnt(0)')
        loop, mm, retry = A.label('s1loop'), A.label('s1mm'), A.label('s1retry')
        self.stamp0()
        A(f's_branch {mm}')
        A(f'{loop}:')
        A('s_barrier')
        self.stamp(0)
        for r in range(24): A(f'v_mov_b32 v{VD+r}, 0')
        self.delay('dB2')
        self.gather([(f'buffer_load_dwordx4 v[{VA+4*u}:{VA+4*u+3}], v{VG}, s[{S_WS}:{S_WS+3}], s{S_B2} offen offset:{1024*u} sc1', VA + 4*u + 3)
                     for u in range(4)], VT, name='b2')
        A(f'{mm}:')
        self.stamp(1)
        def sm(t, u):
            A(f'v_smfmac_f32_16x16x64_bf16 v[{VD+4*t}:{VD+4*t+3}], v[{VA+4*u}:{VA+4*u+3}], {self.wfrag(1, 6*u+t)}, v{VIDX}')
        def comb(da, db):
            return ([f'v_permlane32_swap_b32 v{da+r}, v{db+r}' for r in range(4)] +
                    [f'v_pk_add_f32 v[{da+r}:{da+r+1}], v[{da+r}:{da+r+1}], v[{db+r}:{db+r+1}]' for r in (0, 2)])
        for u in range(4):
            sm(0, u); sm(1, u)
            if u == 0: A('s_barrier')
        fill = comb(VD, VD + 4) + [f'ds_write2_b32 v{VWQ}, v{VD}, v{VD+1} offset0:0 offset1:68',
                                   f'ds_write2_b32 v{VWQ}, v{VD+2}, v{VD+3} offset0:136 offset1:204']
        seq = [(t, u) for u in range(4) for t in (2, 3)]
        for n, (t, u) in enumerate(seq):
            sm(t, u)
            if n >= 3:
                for ln in fill[:2]: A(ln)
                fill = fill[2:]
        assert not fill
        sm(4, 0); sm(5, 0); sm(4, 1)
        fill = comb(VD + 8, VD + 12) + [f'ds_write2_b32 v{VWQ}, v{VD+8}, v{VD+9} offset0:32 offset1:100',
                                        f'ds_write2_b32 v{VWQ}, v{VD+10}, v{VD+11} offset0:168 offset1:236']
        for ln in fill: A(ln)
        A('s_waitcnt lgkmcnt(0)')
        A('s_barrier')
        sm(5, 1); sm(4, 2); sm(5, 2); sm(4, 3); sm(5, 3)
        self.stamp(2)
        A('s_nop 7')
        self.combine(VD + 16, VD + 20)
        A(f'ds_write_b128 v{VWV}, v[{VD+16}:{VD+19}]')
        A('s_waitcnt lgkmcnt(0)')
        A('s_barrier')
        A(f's_cmp_eq_u32 s{S_STEP}, {NSTEP-1}')
        A(f's_cbranch_scc1 L_rec_done')
        A(f's_add_u32 s{S_STEP}, s{S_STEP}, 1')
        self.ring(S_B2, RB2, 0, 65536, 16384)
        A('s_barrier')
        A('s_barrier')
        self.z2()
        self.stamp(3)
        A(f's_branch {loop}')

    def pst(self, k):
        if self.stamps != 'pro': return
        self.A(f's_memrealtime s[{S_ST}:{S_ST+1}]'); self.A('s_waitcnt lgkmcnt(0)'); self.A(f's_mov_b32 s{S_ST+4+k}, s{S_ST}')

    def poll_ge(self, soff, target):
        A = self.A
        loop, ok = A.label('poll'), A.label('pollok')
        A(f's_mov_b32 s{S_TMP3}, 0')
        A('v_mov_b32 v8, 0')
        A(f'{loop}:')
        A(f'buffer_load_dword v6, v8, s[{S_DBG}:{S_DBG+3}], s{soff} offen sc1')
        A('s_waitcnt vmcnt(0)')
        A(f'v_cmp_le_u32 vcc, {target}, v6')
        A(f's_cbranch_vccnz {ok}')
        A('s_sleep 4')
        A(f's_add_u32 s{S_TMP3}, s{S_TMP3}, 1')
        A(f's_cmp_lt_u32 s{S_TMP3}, {TIMEOUT}')
        A(f's_cbranch_scc1 {loop}')
        A(f's_branch {self.abort}')
        A(f'{ok}:')

    def z2(self):
        if self.opts & {'kvz', 'kmz', 'clrz'}: self.A('s_barrier')

    def stamp0(self):
        self.pst(5)
        if not self.stamps or self.stamps == 'pro': return
        A = self.A
        for k in range(4, 17): A(f's_mov_b32 s{S_ST+k}, 0')
        if self.stamps == 'light':
            A(f's_memrealtime s[{S_ST}:{S_ST+1}]'); A('s_waitcnt lgkmcnt(0)'); A(f's_mov_b32 s{S_ST+4}, s{S_ST}'); A(f's_mov_b32 s{S_ST+6}, s98')
        A(f's_memtime s[{S_ST}:{S_ST+1}]')
        A('s_waitcnt lgkmcnt(0)')

    def s3_setup(self):
        A = self.A
        srd(A, S_T0, 54, 4096 * 2048)
        self.load_weights(3)
        self.pst(2)
        self.idx_reg(4)
        A('v_lshlrev_b32 v5, 4, v1')
        A(f's_sub_u32 s{S_TMP2}, s{S_WAVE}, 4')
        A(f's_lshl_b32 s{S_TMP}, s{S_TMP2}, 12')
        A(f'v_add_u32 v5, s{S_TMP}, v5')
        A('v_and_b32 v6, 1, v3'); A(f'v_mul_u32_u24 v7, {4*S3_RS}, v6')
        A('v_lshrrev_b32 v6, 5, v1'); A(f'v_lshl_add_u32 v6, v6, 4, v2')
        A(f'v_lshl_add_u32 v7, v6, 2, v7')
        A(f's_mul_i32 s{S_TMP}, s{S_TMP2}, {S3_WS}'); A(f's_add_u32 s{S_TMP}, s{S_TMP}, {L_S3}')
        A(f'v_add_u32 v7, s{S_TMP}, v7')
        for r in range(8): A(f'v_mov_b32 v{28+r}, 0')

    def s3_body(self, st):
        A = self.A
        VA, VD = 12, 28
        retry, ok = A.label('s3retry'), A.label('s3ok')
        for r in range(8): A(f'v_mov_b32 v{VD+r}, 0')
        self.delay('dA')
        self.gather([(f'buffer_load_dwordx4 v[{VA+4*u}:{VA+4*u+3}], v5, s[{S_WS}:{S_WS+3}], s{S_A} offen offset:{1024*u} sc1', VA + 4*u + 3)
                     for u in range(4)], 9, name='a')
        self.stamp(st)
        for u in range(4):
            for t in range(2):
                A(f'v_smfmac_f32_16x16x64_bf16 v[{VD+4*t}:{VD+4*t+3}], v[{VA+4*u}:{VA+4*u+3}], {self.wfrag(3, 2*u+t)}, v4')
        A('s_nop 7')
        self.combine(VD, VD + 4)
        A(f'ds_write2_b32 v7, v{VD}, v{VD+1} offset0:0 offset1:36')
        A(f'ds_write2_b32 v7, v{VD+2}, v{VD+3} offset0:72 offset1:108')
        A('s_waitcnt lgkmcnt(0)')
        A('s_barrier')
        self.stamp(st + 1)

    def w4(self):
        A = self.A
        VRQ, VCX, VCM, VG1, VG2, VG3, VGM, VRV, VAO, VLN = 36, 37, 38, 39, 40, 41, 42, 43, 44, 45
        KX0, KX1, VX0, VX1 = 48, 52, 56, 60
        P = 64
        RR = 96
        D0, D1, DM = 100, 104, 108
        G = 112
        VM0, VM1 = 128, 130
        ONE = 132
        BX, BM = 136, 140
        O0, O1, SU = 144, 148, 152
        T = 156
        SC = 46
        A('; ---- wave 4')
        self.s3_setup()
        A('v_and_b32 v6, 7, v2'); A(f'v_mul_u32_u24 v{VRQ}, {QK_RS}, v6')
        A('v_lshrrev_b32 v6, 3, v2'); A(f'v_lshl_add_u32 v{VRQ}, v6, 7, v{VRQ}')
        A(f'v_lshl_add_u32 v{VRQ}, v3, 4, v{VRQ}')
        A(f's_lshl_b32 s{S_TMP}, s{S_J}, 11')
        A(f'v_lshl_add_u32 v{VCX}, v1, 4, s{S_TMP}')
        for k, r in ((1, VG1), (2, VG2), (3, VG3)):
            A(f's_xor_b32 s{S_TMP2}, s{S_J}, {k}'); A(f's_lshl_b32 s{S_TMP2}, s{S_TMP2}, 11')
            A(f'v_lshl_add_u32 v{r}, v1, 4, s{S_TMP2}')
        A('v_and_b32 v6, 1, v3'); A('v_lshlrev_b32 v6, 3, v6'); A('v_add_u32 v6, v6, v2')
        A(f's_add_u32 s{S_TMP2}, s{S_TMP}, 1024')
        A(f'v_lshl_add_u32 v{VCM}, v6, 4, s{S_TMP2}')
        A('v_and_b32 v6, 0x28, v1'); A('v_cmp_eq_u32 vcc, 0x20, v6')
        A(f'v_mov_b32 v6, {hx(OOB)}'); A(f'v_cndmask_b32 v{VCM}, v6, v{VCM}, vcc')
        A(f'v_lshlrev_b32 v6, 4, v2'); A(f'v_lshl_add_u32 v6, v3, 2, v6')
        A(f'v_add_u32 v{VGM}, 1024, v6')
        A(f'v_lshlrev_b32 v6, 4, v2'); A(f'v_lshl_add_u32 v6, v3, 2, v6'); A(f'v_add_u32 v{VRV}, {L_V}, v6')
        A(f'v_lshlrev_b32 v6, 7, v3'); A(f'v_lshl_add_u32 v6, v2, 4, v6')
        A(f's_lshl_b32 s{S_TMP}, s{S_J}, 9'); A(f'v_add_u32 v{VAO}, s{S_TMP}, v6')
        A('v_cmp_gt_u32 vcc, 8, v2'); A(f'v_mov_b32 v6, {hx(OOB)}'); A('s_nop 0')
        A(f'v_cndmask_b32 v{VAO}, v6, v{VAO}, vcc')
        A(f'v_lshlrev_b32 v{VLN}, 4, v1')
        for r in range(4): A(f'v_mov_b32 v{ONE+r}, 0x3f803f80')
        A(f'v_mov_b32 v{VM0+1}, 0'); A(f'v_mov_b32 v{VM1+1}, 0'); A(f'v_mov_b32 v{BM+1}, 0')
        A(f's_mov_b32 s{SC}, 0x3e0293ee')
        for k in range(4):
            A(f's_xor_b32 s{48+k}, s{S_J}, {k}'); A(f's_lshl_b32 s{48+k}, s{48+k}, 11')
        A('s_barrier')
        A('s_barrier')
        self.stamp0()
        loop = A.label('w4loop')
        A(f'{loop}:')
        A(f's_and_b32 s{S_TMP}, s{S_STEP}, 1'); A(f's_lshl_b32 s{S_TMP}, s{S_TMP}, 12')
        A(f'v_add_u32 v6, s{S_TMP}, v{VLN}')
        for k, r in enumerate((KX0, KX1, VX0, VX1)):
            A(f'ds_read_b128 v[{r}:{r+3}], v6 offset:{L_KV + 1024*k}')
        self.ring(S_C, RC, 0, 262144, 65536)
        self.ring(S_A, RA, 0, 65536, 16384)
        for k in range(4): A(f's_add_u32 s{52+k}, s{48+k}, s{S_C}')
        A('s_waitcnt lgkmcnt(0)')
        A('s_barrier')
        A('s_barrier')
        self.stamp(0)
        A(f's_cmp_eq_u32 s{S_STEP}, {NSTEP-1}')
        A(f's_cbranch_scc1 L_rec_done_y2')
        for w in range(4):
            A(f'ds_read_b128 v[{P+8*w}:{P+8*w+3}], v{VRQ} offset:{L_QK + w*QK_WS}')
            A(f'ds_read_b128 v[{P+8*w+4}:{P+8*w+7}], v{VRQ} offset:{L_QK + w*QK_WS + 64}')
        def pk(d, x, y): A(f'v_pk_add_f32 v[{d}:{d+1}], v[{x}:{x+1}], v[{y}:{y+1}]')
        A('s_waitcnt lgkmcnt(4)')
        for r in range(0, 8, 2): pk(P + r, P + r, P + 8 + r)
        A('s_waitcnt lgkmcnt(0)')
        for r in range(0, 8, 2): pk(P + 16 + r, P + 16 + r, P + 24 + r)
        for r in range(0, 8, 2): pk(P + r, P + r, P + 16 + r)
        for r in range(4): A(f'v_cvt_pk_bf16_f32 v{RR+r}, v{P+2*r}, v{P+2*r+1}')
        A('s_nop 1')
        A(f'v_mfma_f32_16x16x32_bf16 v[{D0}:{D0+3}], v[{KX0}:{KX0+3}], v[{RR}:{RR+3}], 0')
        A(f'v_mfma_f32_16x16x32_bf16 v[{D1}:{D1+3}], v[{KX1}:{KX1+3}], v[{RR}:{RR+3}], 0')
        A(f'v_mfma_f32_16x16x32_bf16 v[{DM}:{DM+3}], v[{RR}:{RR+3}], v[{RR}:{RR+3}], 0')
        A('s_nop 6')
        for r in range(4): A(f'v_mov_b32_dpp v{D0+r}, v{D1+r} row_shr:8 row_mask:0xf bank_mask:0xc')
        A(f'buffer_store_dwordx4 v[{D0}:{D0+3}], v{VCX}, s[{S_WS}:{S_WS+3}], s{S_C} offen{self.pl}')
        A(f'buffer_store_dwordx4 v[{DM}:{DM+3}], v{VCM}, s[{S_WS}:{S_WS+3}], s{S_C} offen{self.pl}')
        self.stamp(1)
        A('s_barrier')
        for w in range(4):
            for t in range(2):
                A(f'ds_read2_b32 v[{P+4*w+2*t}:{P+4*w+2*t+1}], v{VRV} offset0:{0} offset1:{64}' if (w == 0 and t == 0) else
                  f'ds_read2st64_b32 v[{P+4*w+2*t}:{P+4*w+2*t+1}], v{VRV} offset0:{4*w+2*t} offset1:{4*w+2*t+1}')
        def vmem_rows():
            A('s_waitcnt lgkmcnt(0)')
            pk(P, P, P + 4); pk(P + 2, P + 2, P + 6); pk(P + 8, P + 8, P + 12); pk(P + 10, P + 10, P + 14)
            pk(P, P, P + 8); pk(P + 2, P + 2, P + 10)
            A(f'v_cvt_pk_bf16_f32 v{VM0}, v{P}, v{P+1}')
            A(f'v_cvt_pk_bf16_f32 v{VM1}, v{P+2}, v{P+3}')
        cl = [(f'buffer_load_dwordx4 v[{G+4*k}:{G+4*k+3}], v{r}, s[{S_WS}:{S_WS+3}], s{S_C} offen sc1', G + 4*k + 3) for k, r in enumerate((VG1, VG2, VG3))]
        cl += [(f'buffer_load_dword v{G+12+k}, v{VGM}, s[{S_WS}:{S_WS+3}], s{52+k} offen sc1', G + 12 + k) for k in range(4)]
        if 'cfirst' in self.opts:
            vmem_rows(); self.delay('dC')
            if 'ackC' in self.opts: A('s_waitcnt vmcnt(0)')
            self.gather(cl, 9, name='c')
        else:
            self.delay('dC'); self.gather(cl, 9, between=vmem_rows, name='c')
        self.stamp(2)
        pk(D0, D0, G); pk(D0 + 2, D0 + 2, G + 2); pk(G + 4, G + 4, G + 8); pk(G + 6, G + 6, G + 10)
        pk(G + 12, G + 12, G + 14)
        pk(D0, D0, G + 4); pk(D0 + 2, D0 + 2, G + 6)
        A(f'v_add_f32 v{G+12}, v{G+12}, v{G+13}')
        SM = G + 12
        A(f'v_max3_f32 v{T}, v{D0}, v{D0+1}, v{D0+2}')
        A(f'v_max3_f32 v{T}, v{T}, v{D0+3}, v{SM}')
        A('s_nop 1')
        A(f'v_max_f32_dpp v{T}, v{T}, v{T} row_ror:8 row_mask:0xf bank_mask:0xf')
        A(f'v_mov_b32 v{T+1}, v{T}'); A('s_nop 1')
        A(f'v_permlane16_swap_b32 v{T}, v{T+1}')
        A(f'v_max_f32 v{T}, v{T}, v{T+1}')
        A(f'v_mov_b32 v{T+1}, v{T}'); A('s_nop 1')
        A(f'v_permlane32_swap_b32 v{T}, v{T+1}')
        A(f'v_max_f32 v{T}, v{T}, v{T+1}')
        A(f'v_mul_f32 v{T}, s{SC}, v{T}')
        for r in range(4): A(f'v_fma_f32 v{D0+r}, v{D0+r}, s{SC}, -v{T}')
        A(f'v_fma_f32 v{SM}, v{SM}, s{SC}, -v{T}')
        A(f'v_exp_f32 v{SM}, v{SM}')
        for r in range(4): A(f'v_exp_f32 v{D0+r}, v{D0+r}')
        A(f'v_mov_b32_dpp v{T+1}, v{SM} row_shl:8 row_mask:0xf bank_mask:0xf')
        A(f'v_cvt_pk_bf16_f32 v{BX}, v{D0}, v{D0+1}')
        A(f'v_cvt_pk_bf16_f32 v{BX+1}, v{D0+2}, v{D0+3}')
        A(f'v_cvt_pk_bf16_f32 v{BM}, v{SM}, v{T+1}')
        A(f'v_mov_b32_dpp v{BX+2}, v{BX} row_shl:8 row_mask:0xf bank_mask:0xf')
        A(f'v_mov_b32_dpp v{BX+3}, v{BX+1} row_shl:8 row_mask:0xf bank_mask:0xf')
        A('s_nop 0')
        A(f'v_mfma_f32_16x16x16_bf16 v[{SU}:{SU+3}], v[{ONE}:{ONE+1}], v[{BM}:{BM+1}], 0')
        A(f'v_mfma_f32_16x16x16_bf16 v[{O0}:{O0+3}], v[{VM0}:{VM0+1}], v[{BM}:{BM+1}], 0')
        A(f'v_mfma_f32_16x16x16_bf16 v[{O1}:{O1+3}], v[{VM1}:{VM1+1}], v[{BM}:{BM+1}], 0')
        A(f'v_mfma_f32_16x16x32_bf16 v[{SU}:{SU+3}], v[{ONE}:{ONE+3}], v[{BX}:{BX+3}], v[{SU}:{SU+3}]')
        A(f'v_mfma_f32_16x16x32_bf16 v[{O0}:{O0+3}], v[{VX0}:{VX0+3}], v[{BX}:{BX+3}], v[{O0}:{O0+3}]')
        A(f'v_mfma_f32_16x16x32_bf16 v[{O1}:{O1+3}], v[{VX1}:{VX1+3}], v[{BX}:{BX+3}], v[{O1}:{O1+3}]')
        A('s_nop 5')
        A(f'v_rcp_f32 v{T}, v{SU}')
        A('s_nop 0')
        for r in range(0, 4, 2): A(f'v_pk_mul_f32 v[{O0+r}:{O0+r+1}], v[{O0+r}:{O0+r+1}], v[{T}:{T+1}] op_sel_hi:[1,0]')
        for r in range(0, 4, 2): A(f'v_pk_mul_f32 v[{O1+r}:{O1+r+1}], v[{O1+r}:{O1+r+1}], v[{T}:{T+1}] op_sel_hi:[1,0]')
        for r in range(4): A(f'v_cvt_pk_bf16_f32 v{RR+r}, v{O0+2*r}, v{O0+2*r+1}')
        A(f'buffer_store_dwordx4 v[{RR}:{RR+3}], v{VAO}, s[{S_WS}:{S_WS+3}], s{S_A} offen{self.pl}')
        A('s_barrier')
        self.stamp(3)
        self.s3_body(4)
        self.z2()
        A(f's_add_u32 s{S_STEP}, s{S_STEP}, 1')
        A('s_barrier')
        self.stamp(6)
        A(f's_branch {loop}')

    def kv_prefetch(self, step_add, VK, VV):
        A = self.A
        A(f's_add_u32 s{S_TMP}, s{S_STEP}, {step_add}')
        A(f's_min_u32 s{S_TMP}, s{S_TMP}, {NSTEP-1}')
        A(f's_lshl_b32 s{S_KV}, s{S_TMP}, 18')
        A(f's_add_u32 s{S_TMP}, s{S_STEP}, {step_add}')
        A(f's_and_b32 s{S_TMP}, s{S_TMP}, 1'); A(f's_lshl_b32 s{S_TMP}, s{S_TMP}, 12')
        for k, r in enumerate((VK, VK + 1, VV, VV + 1)):
            A(f's_add_u32 m0, s{S_TMP}, {L_KV + 1024*k}')
            A('s_nop 0')
            A(f'buffer_load_dwordx4 v{r}, s[{S_WS}:{S_WS+3}], s{S_KV} offen sc1 lds')

    def w5(self):
        A = self.A
        VK, VV, VRK, VRV, VKM, VVM, VPR = 36, 38, 40, 41, 42, 43, 44
        P, PV, OK_, OV = 48, 80, 96, 100
        A('; ---- wave 5')
        self.s3_setup()
        A(f's_lshl_b32 s{S_TMP2}, s{S_H}, 12'); A(f's_lshl_b32 s{S_TMP}, s{S_B}, 10'); A(f's_add_u32 s{S_TMP2}, s{S_TMP2}, s{S_TMP}')
        A(f'v_lshl_add_u32 v{VK}, v1, 4, s{S_TMP2}'); A(f'v_add_u32 v{VK+1}, 131072, v{VK}')
        A(f's_lshl_b32 s{S_TMP2}, s{S_TMP2}, 1'); A(f's_add_u32 s{S_TMP2}, s{S_TMP2}, {hx(VX)}')
        A(f'v_lshl_add_u32 v{VV}, v1, 4, s{S_TMP2}'); A(f'v_add_u32 v{VV+1}, 1024, v{VV}')
        if self.kvwait:
            A(f's_mov_b32 s{S_TMP2}, {4*DBG_KV}'); self.poll_ge(S_TMP2, 64)
        self.kv_prefetch(0, VK, VV); self.kv_prefetch(1, VK, VV)
        A('v_and_b32 v6, 7, v1'); A(f'v_mul_u32_u24 v{VRK}, {QK_RS}, v6'); A(f'v_add_u32 v{VRK}, 128, v{VRK}')
        A('v_bfe_u32 v6, v1, 3, 2'); A(f'v_lshl_add_u32 v{VRK}, v6, 4, v{VRK}')
        A(f's_lshl_b32 s{S_TMP2}, s{S_H}, 11'); A(f's_lshl_b32 s{S_TMP}, s{S_B}, 9'); A(f's_add_u32 s{S_TMP2}, s{S_TMP2}, s{S_TMP}')
        A(f's_add_u32 s{S_TMP}, s{S_TMP2}, {hx(KM)}')
        A(f'v_lshl_add_u32 v{VKM}, v1, 4, s{S_TMP}')
        A('v_cmp_gt_u32 vcc, 32, v1'); A(f'v_mov_b32 v6, {hx(OOB)}'); A('s_nop 0')
        A(f'v_cndmask_b32 v{VKM}, v6, v{VKM}, vcc')
        A(f'v_lshlrev_b32 v{VRV}, 4, v1'); A(f'v_add_u32 v{VRV}, {L_V}, v{VRV}')
        A(f's_add_u32 s{S_TMP}, s{S_TMP2}, {hx(VM)}')
        A(f'v_lshl_add_u32 v{VVM}, v1, 3, s{S_TMP}')
        A(f's_lshl_b32 s{S_TMP}, s{S_X}, 5'); A(f's_add_u32 s{S_TMP}, s{S_TMP}, s{S_J}'); A(f's_lshl_b32 s{S_TMP}, s{S_TMP}, 7')
        A(f's_add_u32 s{S_TMP}, s{S_TMP}, {hx(FLG)}')
        A(f'v_mov_b32 v{VPR}, s{S_TMP}')
        A('v_cmp_eq_u32 vcc, 0, v1'); A(f'v_mov_b32 v6, {hx(OOB)}'); A('s_nop 0')
        A(f'v_cndmask_b32 v{VPR}, v6, v{VPR}, vcc')
        A('s_waitcnt vmcnt(0)')
        A('s_barrier')
        A('s_barrier')
        self.stamp0()
        def pk(d, x, y): A(f'v_pk_add_f32 v[{d}:{d+1}], v[{x}:{x+1}], v[{y}:{y+1}]')
        def prepare():
            for w in range(4):
                A(f'ds_read_b128 v[{P+8*w}:{P+8*w+3}], v{VRK} offset:{L_QK + w*QK_WS}')
                A(f'ds_read_b128 v[{P+8*w+4}:{P+8*w+7}], v{VRK} offset:{L_QK + w*QK_WS + 64}')
            for w in range(4):
                A(f'ds_read_b128 v[{PV+4*w}:{PV+4*w+3}], v{VRV} offset:{1024*w}')
            A(f's_lshl_b32 s{S_KM}, s{S_STEP}, 16')
            A('s_waitcnt lgkmcnt(0)')
            for r in range(0, 8, 2): pk(P + r, P + r, P + 8 + r)
            for r in range(0, 8, 2): pk(P + 16 + r, P + 16 + r, P + 24 + r)
            for r in range(0, 8, 2): pk(P + r, P + r, P + 16 + r)
            for r in range(4): A(f'v_cvt_pk_bf16_f32 v{OK_+r}, v{P+2*r}, v{P+2*r+1}')
            pk(PV, PV, PV + 4); pk(PV + 2, PV + 2, PV + 6); pk(PV + 8, PV + 8, PV + 12); pk(PV + 10, PV + 10, PV + 14)
            pk(PV, PV, PV + 8); pk(PV + 2, PV + 2, PV + 10)
            A(f'v_cvt_pk_bf16_f32 v{OV}, v{PV}, v{PV+1}'); A(f'v_cvt_pk_bf16_f32 v{OV+1}, v{PV+2}, v{PV+3}')
        def publish():
            A(f'buffer_store_dwordx4 v[{OK_}:{OK_+3}], v{VKM}, s[{S_WS}:{S_WS+3}], s{S_KM} offen sc1')
            A(f'buffer_store_dwordx2 v[{OV}:{OV+1}], v{VVM}, s[{S_WS}:{S_WS+3}], s{S_KM} offen sc1')
        def progress(val):
            A(f'v_mov_b32 v6, {val}')
            A(f'buffer_store_dword v6, v{VPR}, s[{S_WS}:{S_WS+3}], 0 offen sc1')
        loop, last, first = A.label('w5loop'), A.label('w5last'), A.label('w5first')
        A(f's_mov_b32 s{S_TMP}, 0')
        A('s_barrier')
        A(f's_branch {first}')
        A(f'{loop}:')
        A('s_barrier')
        A(f's_sub_u32 s{S_TMP}, s{S_STEP}, 1')
        if self.kvwait:
            skip = A.label('kvok')
            A(f's_add_u32 s{S_TMP2}, s{S_STEP}, 1'); A(f's_and_b32 s{S_TMP}, s{S_TMP2}, 0x47')
            A(f's_cmp_lg_u32 s{S_TMP}, 0'); A(f's_cbranch_scc1 {skip}')
            A(f's_lshr_b32 s{S_TMP2}, s{S_TMP2}, 1'); A(f's_add_u32 s{S_TMP2}, s{S_TMP2}, {4*DBG_KV}')
            self.poll_ge(S_TMP2, 64)
            A(f'{skip}:')
        if 'nokv' not in self.opts and 'kvz' not in self.opts: self.kv_prefetch(1, VK, VV)
        A(f's_sub_u32 s{S_TMP}, s{S_STEP}, 1')
        if 'nokm' not in self.opts and 'kmz' not in self.opts:
            progress(f's{S_TMP}')
            publish()
        A(f'{first}:')
        self.ring(S_A, RA, 0, 65536, 16384)
        A('s_barrier')
        A('s_barrier')
        prepare()
        A(f's_cmp_eq_u32 s{S_STEP}, {NSTEP-1}')
        A(f's_cbranch_scc1 {last}')
        A('s_barrier')
        self.stamp(3)
        self.s3_body(4)
        self.z2()
        if 'kvz' in self.opts: self.kv_prefetch(2, VK, VV)
        if 'kmz' in self.opts:
            progress(f's{S_STEP}')
            publish()
        A(f's_add_u32 s{S_STEP}, s{S_STEP}, 1')
        A('s_barrier')
        self.stamp(6)
        A(f's_branch {loop}')
        A(f'{last}:')
        publish()
        A('s_waitcnt vmcnt(0)')
        progress(NSTEP)
        A('s_branch L_rec_done')

    def b1_offsets(self, regs):
        A = self.A
        A(f's_lshr_b32 s{S_TMP2}, s{S_J}, 3'); A(f's_lshl_b32 s{S_TMP2}, s{S_TMP2}, 14')
        A(f's_and_b32 s{S_TMP}, s{S_J}, 7'); A(f's_lshl_b32 s{S_TMP}, s{S_TMP}, 10')
        A(f's_add_u32 s{S_TMP2}, s{S_TMP2}, s{S_TMP}')
        for k, r in enumerate(regs):
            A(f's_xor_b32 s{S_TMP}, s{S_X}, {k}'); A(f's_lshl_b32 s{S_TMP}, s{S_TMP}, 16')
            A(f's_add_u32 s{S_TMP}, s{S_TMP}, s{S_TMP2}')
            A(f'v_lshl_add_u32 v{r}, v1, 4, s{S_TMP}')

    def w6(self):
        A = self.A
        VR, VB, VM2 = 36, 37, 41
        P, G, O = 48, 64, 76
        A('; ---- wave 6')
        self.s3_setup()
        A('v_and_b32 v6, 7, v1'); A(f'v_mul_u32_u24 v{VR}, {S3_RS}, v6')
        A('v_lshrrev_b32 v8, 3, v1'); A(f'v_lshl_add_u32 v{VR}, v8, 4, v{VR}')
        self.b1_offsets([VB, VB + 1, VB + 2, VB + 3])
        A(f'v_lshlrev_b32 v{VM2}, 4, v6')
        A(f'v_lshrrev_b32 v9, 1, v8'); A(f'v_lshl_add_u32 v{VM2}, v9, 7, v{VM2}')
        A(f'v_and_b32 v9, 1, v8'); A(f'v_lshl_add_u32 v{VM2}, v9, 3, v{VM2}')
        A(f's_lshl_b32 s{S_TMP}, s{S_J}, 9'); A(f'v_add_u32 v{VM2}, s{S_TMP}, v{VM2}')
        A('s_barrier')
        A('s_barrier')
        self.read_b1base()
        self.stamp0()
        loop = A.label('w6loop')
        A(f'{loop}:')
        self.ring(S_A, RA, 0, 65536, 16384)
        self.ring(S_B2, RB2, 1, 65536, 16384)
        self.ringB1(S_B1, 0)
        A('s_barrier')
        A('s_barrier')
        A('s_barrier')
        A(f's_cmp_eq_u32 s{S_STEP}, {NSTEP-1}')
        A(f's_cbranch_scc1 L_rec_done')
        A('s_barrier')
        self.stamp(3)
        self.s3_body(4)
        for w in range(4):
            A(f'ds_read_b128 v[{P+4*w}:{P+4*w+3}], v{VR} offset:{L_S3 + w*S3_WS}')
        def pk(d, x, y): A(f'v_pk_add_f32 v[{d}:{d+1}], v[{x}:{x+1}], v[{y}:{y+1}]')
        A('s_waitcnt lgkmcnt(0)')
        pk(P, P, P + 4); pk(P + 2, P + 2, P + 6); pk(P + 8, P + 8, P + 12); pk(P + 10, P + 10, P + 14)
        pk(P, P, P + 8); pk(P + 2, P + 2, P + 10)
        A(f'buffer_store_dwordx4 v[{P}:{P+3}], v{VB}, s[{S_WS}:{S_WS+3}], s{S_B1} offen sc1')
        self.z2()
        self.stamp(6)
        self.delay('dB1')
        if 'ackB1' in self.opts: A('s_waitcnt vmcnt(0)')
        self.gather([(f'buffer_load_dwordx4 v[{G+4*k}:{G+4*k+3}], v{VB+1+k}, s[{S_WS}:{S_WS+3}], s{S_B1} offen sc1', G + 4*k + 3) for k in range(3)], 9, name='b1')
        self.stamp(7)
        pk(P, P, G); pk(P + 2, P + 2, G + 2); pk(G + 4, G + 4, G + 8); pk(G + 6, G + 6, G + 10)
        pk(P, P, G + 4); pk(P + 2, P + 2, G + 6)
        A(f'v_cvt_pk_bf16_f32 v{O}, v{P}, v{P+1}'); A(f'v_cvt_pk_bf16_f32 v{O+1}, v{P+2}, v{P+3}')
        A(f'buffer_store_dwordx2 v[{O}:{O+1}], v{VM2}, s[{S_WS}:{S_WS+3}], s{S_B2} offen{self.pl}')
        A(f's_add_u32 s{S_STEP}, s{S_STEP}, 1')
        A('s_barrier')
        self.stamp(8)
        A(f's_branch {loop}')

    def read_b1base(self):
        A = self.A
        A(f'v_mov_b32 v6, {L_MISC+8}')
        A('ds_read_b32 v6, v6')
        A('s_waitcnt lgkmcnt(0)')
        A(f'v_readfirstlane_b32 s{S_TMP}, v6')
        A('s_nop 3')
        A(f's_add_u32 s{S_B1BASE}, s{S_B1BASE}, s{S_TMP}')

    def w7(self):
        A = self.A
        VS, VA_, VC0, VC1, VB, VPR = 36, 40, 41, 42, 43, 44
        A('; ---- wave 7')
        self.s3_setup()
        for r in range(4): A(f'v_mov_b32 v{VS+r}, s{S_SENT}')
        A(f's_lshl_b32 s{S_TMP}, s{S_J}, 9'); A(f'v_lshl_add_u32 v{VA_}, v1, 4, s{S_TMP}')
        A('v_cmp_gt_u32 vcc, 32, v1'); A(f'v_mov_b32 v6, {hx(OOB)}'); A('s_nop 0')
        A(f'v_cndmask_b32 v{VA_}, v6, v{VA_}, vcc')
        A(f's_lshl_b32 s{S_TMP}, s{S_J}, 11'); A(f'v_lshl_add_u32 v{VC0}, v1, 4, s{S_TMP}')
        A(f'v_add_u32 v{VC1}, 1024, v{VC0}')
        self.b1_offsets([VB])
        def clr(sreg, vreg, pol):
            A(f'buffer_store_dwordx4 v[{VS}:{VS+3}], v{vreg}, s[{S_WS}:{S_WS+3}], s{sreg} offen{pol}')
        for slot in range(64 if 'fresh' in self.opts else 4):
            A(f's_mov_b32 s{S_STEP}, {slot}')
            self.ring(S_A, RA, 0, 65536, 16384); clr(S_A, VA_, self.pl)
            self.ring(S_A, RB2, 0, 65536, 16384); clr(S_A, VA_, self.pl)
            self.ring(S_A, RC, 0, 262144, 65536); clr(S_A, VC0, self.pl); clr(S_A, VC1, self.pl)
        A(f's_lshl_b32 s{S_TMP}, s{S_X}, 5'); A(f's_add_u32 s{S_TMP}, s{S_TMP}, s{S_J}'); A(f's_lshl_b32 s{S_TMP}, s{S_TMP}, 7')
        A(f's_add_u32 s{S_TMP}, s{S_TMP}, {hx(FLG)}')
        A(f'v_mov_b32 v{VPR}, s{S_TMP}'); A('v_mov_b32 v6, 0')
        A(f'buffer_store_dword v6, v{VPR}, s[{S_WS}:{S_WS+3}], 0 offen sc1')
        A('s_waitcnt vmcnt(0)')
        self.pst(3)
        A('s_mov_b32 s46, -1'); A('s_mov_b32 s47, -1')
        for slot in range(4):
            for par in range(2):
                A(f's_mov_b32 s{S_STEP}, {slot}')
                self.ringB1(S_A, 0)
                if par: A(f's_add_u32 s{S_A}, s{S_A}, 8192')
                A('s_memtime s[48:49]'); A('s_waitcnt lgkmcnt(0)')
                clr(S_A, VB, ' sc1')
                A('s_waitcnt vmcnt(0)')
                A('s_memtime s[50:51]'); A('s_waitcnt lgkmcnt(0)')
                A('s_sub_u32 s50, s50, s48')
                A(f's_min_u32 s{46+par}, s{46+par}, s50')
        self.pst(4)
        A(f's_mov_b32 s{S_STEP}, 0')
        A('s_cmp_lt_u32 s47, s46')
        A(f's_cselect_b32 s{S_TMP}, 1, 0'); A(f's_or_b32 s{S_TMP}, s{S_TMP}, 0x10000')
        A(f'v_mov_b32 v6, s{S_TMP}'); A(f'v_mov_b32 v8, {4*DBG_INIT}')
        A('v_cmp_eq_u32 vcc, 0, v1'); A(f'v_mov_b32 v9, {hx(OOB)}'); A('s_nop 0')
        A('v_cndmask_b32 v8, v9, v8, vcc')
        A(f'buffer_atomic_add v6, v8, s[{S_DBG}:{S_DBG+3}], 0 offen')
        A('s_barrier')
        retry, ok = A.label('initretry'), A.label('initok')
        A(f'v_mov_b32 v8, {4*DBG_INIT}')
        A(f'{retry}:')
        A(f'buffer_load_dword v6, v8, s[{S_DBG}:{S_DBG+3}], 0 offen sc1')
        A('s_waitcnt vmcnt(0)')
        A(f'v_readfirstlane_b32 s{S_TMP2}, v6')
        A('s_nop 3')
        A(f's_lshr_b32 s{S_TMP}, s{S_TMP2}, 16')
        A(f's_cmp_eq_u32 s{S_TMP}, 128')
        A(f's_cbranch_scc1 {ok}')
        A(f's_add_u32 s{S_TO}, s{S_TO}, 1')
        A(f's_cmp_lt_u32 s{S_TO}, {TIMEOUT}')
        A(f's_cbranch_scc1 {retry}')
        A(f's_branch {self.abort}')
        A(f'{ok}:')
        A(f's_and_b32 s{S_TMP2}, s{S_TMP2}, 0xffff')
        A(f's_cmp_gt_u32 s{S_TMP2}, 64')
        A(f's_cselect_b32 s{S_TMP}, 8192, 0')
        A(f'v_mov_b32 v6, s{S_TMP}'); A(f'v_mov_b32 v8, {L_MISC+8}')
        A('ds_write_b32 v8, v6')
        A('s_waitcnt lgkmcnt(0)')
        A('s_barrier')
        A(f's_add_u32 s{S_B1BASE}, s{S_B1BASE}, s{S_TMP}')
        self.stamp0()
        loop = A.label('w7loop')
        A(f'{loop}:')
        self.ring(S_A, RA, 0, 65536, 16384)
        self.ring(S_CLR, RA, -1, 65536, 16384)
        self.ring(S_CLR + 1, RC, -1, 262144, 65536)
        self.ring(S_CLR + 2, RB2, -1, 65536, 16384)
        self.ringB1(S_CLR + 3, -2)
        def clears():
            if 'fresh' not in self.opts:
                clr(S_CLR, VA_, self.pl); clr(S_CLR + 1, VC0, self.pl); clr(S_CLR + 1, VC1, self.pl)
                clr(S_CLR + 2, VA_, self.pl)
            clr(S_CLR + 3, VB, ' sc1')
        A('s_barrier')
        if 'clrz' not in self.opts: clears()
        A('s_barrier')
        A('s_barrier')
        A(f's_cmp_eq_u32 s{S_STEP}, {NSTEP-1}')
        A(f's_cbranch_scc1 L_rec_done')
        A('s_barrier')
        self.stamp(3)
        self.s3_body(4)
        self.z2()
        if 'clrz' in self.opts: clears()
        A(f's_add_u32 s{S_STEP}, s{S_STEP}, 1')
        A('s_barrier')
        self.stamp(6)
        A(f's_branch {loop}')

    def emit(self):
        A = self.A
        A(f's_lshl_b32 s{S_H}, s{S_X}, 3'); A(f's_lshr_b32 s{S_TMP}, s{S_J}, 2'); A(f's_add_u32 s{S_H}, s{S_H}, s{S_TMP}')
        A(f's_and_b32 s{S_B}, s{S_J}, 3')
        A(f's_mov_b32 s{S_STEP}, 0'); A(f's_mov_b32 s{S_TO}, 0'); A(f's_mov_b32 s{S_SENT}, {hx(SENT)}')
        A(f's_add_u32 s{S_TMP}, s{S_WS}, {hx(RB1 + 0x1fffff)}')
        A(f's_and_b32 s{S_TMP}, s{S_TMP}, 0xffe00000')
        A(f's_sub_u32 s{S_B1BASE}, s{S_TMP}, s{S_WS}')
        self.pst(1)
        if self.stamps == 'pro': A(f's_mov_b32 s{S_ST+4}, s98')
        self.lanes()
        l4, l5, l6, l7 = A.label('w4'), A.label('w5'), A.label('w6'), A.label('w7')
        A(f's_cmp_eq_u32 s{S_WAVE}, 4'); A(f's_cbranch_scc1 {l4}')
        A(f's_cmp_eq_u32 s{S_WAVE}, 5'); A(f's_cbranch_scc1 {l5}')
        A(f's_cmp_eq_u32 s{S_WAVE}, 6'); A(f's_cbranch_scc1 {l6}')
        A(f's_cmp_eq_u32 s{S_WAVE}, 7'); A(f's_cbranch_scc1 {l7}')
        self.late = (3,); self.s1()
        A(f'{l4}:'); self.late = (6,); self.w4()
        A(f'{l5}:'); self.late = (6,); self.w5()
        A(f'{l6}:'); self.late = (8,); self.w6()
        A(f'{l7}:'); self.late = (6,); self.w7()
        A('L_rec_done_y2:')
        A('s_barrier')
        A('L_rec_done:')
        if self.stamps:
            self.stamp(11)
            if self.stamps == 'light':
                A(f's_memrealtime s[{S_ST}:{S_ST+1}]'); A('s_waitcnt lgkmcnt(0)'); A(f's_mov_b32 s{S_ST+5}, s{S_ST}')
            A(f's_lshl_b32 s{S_TMP}, s{S_X}, 5'); A(f's_add_u32 s{S_TMP}, s{S_TMP}, s{S_J}'); A(f's_lshl_b32 s{S_TMP}, s{S_TMP}, 3')
            A(f's_add_u32 s{S_TMP}, s{S_TMP}, s{S_WAVE}'); A(f's_lshl_b32 s{S_TMP}, s{S_TMP}, 6'); A(f's_add_u32 s{S_TMP}, s{S_TMP}, {hx(STAMP)}')
            A(f'v_mov_b32 v8, s{S_TMP}')
            A(f's_mov_b32 s{S_ST+3}, s{S_B1BASE}')
            for k in range(14):
                A(f'v_mov_b32 v6, s{S_ST+3+k}')
                A(f'buffer_store_dword v6, v8, s[{S_WS}:{S_WS+3}], 0 offen offset:{4*k}')
```

```python
from layout import *
MAXT = 16
MODE = 'v1'
KINDS = {1: ('K', 'big'), 2: ('V', 'big'), 3: ('Q', 'big'), 4: ('H', 'big'), 5: ('F', 'big'), 6: ('O', 'big'), 7: ('A', None), 8: ('G', None),
         9: ('K', 'half'), 10: ('V', 'half'), 11: ('O', 'q128'), 12: ('O', 'q64'), 13: ('F', 'half'), 14: ('O', 'half'), 15: ('F', 'q128')}
KID = {v: k for k, v in KINDS.items()}
TM = {'big': 256, 'half': 256, 'q128': 128, 'q64': 64}
TN = {'big': 256, 'half': 128, 'q128': 128, 'q64': 64}
def w(idx, target): return (idx << 24) | target
def sig(idx, n): return ((4 * idx) << 8) | n
def task(name, shape, m0, n0, extra=0):
    waits, s = [], 0
    area = TM[shape] * TN[shape] // 4096 if shape else 0
    if name in 'KV': s = sig(DBG_KV + m0 // 256, area // 8)
    elif name == 'Q': s = sig(DBG_Q + m0 // 256, 1)
    elif name == 'H': s = sig(DBG_H + m0 // 256, 1)
    elif name == 'F': waits = [w(DBG_H + m0 // 256, 14), w(DBG_GATE, 8)]; s = sig(DBG_B + m0 // 256, area)
    elif name == 'G': s = sig(DBG_GATE, 1)
    elif name == 'A':
        waits = [w(DBG_Q + m0 // 8, 16), w(DBG_INIT, 128 << 16)]; s = sig(DBG_O + m0 // 4, 8 * extra)
    elif name == 'O':
        blocks = range(m0 // 128, (m0 + TM[shape] - 1) // 128 + 1)
        assert len(blocks) <= 2
        waits = [w(DBG_B + m0 // 256, 64)]
        waits += [w(DBG_O + b, 128) for b in blocks]
    waits += [0] * (3 - len(waits))
    return (KID[(name, shape)], m0, n0, extra, *waits, s)

_cache = {}
def table():
    if MODE not in _cache: _cache[MODE] = globals()['sched_' + MODE]()
    return _cache[MODE]

def patches(name, shape, ms, ns):
    return [task(name, shape, m, n) for m in ms for n in ns]

def sched_v1():
    L = [[] for _ in range(128)]
    def put(x, j, t): L[32 * x + j].append(t)
    for x in range(4):
        nm = 'K' if x < 2 else 'V'
        for j in range(32):
            put(x, j, task(nm, 'half', 256 * (j & 1), 2048 * (x & 1) + 128 * (j >> 1)))
            put(x, j, task(nm, 'big', 512 + 256 * (j & 3), 2048 * (x & 1) + 256 * (j >> 2)))
    rest = []
    for nm_i in range(4):
        nm = 'K' if nm_i < 2 else 'V'
        rest.append([task(nm, 'big', 1536 + 256 * (j & 1), 2048 * (nm_i & 1) + 256 * (j >> 1)) for j in range(16)])
    for x in range(4):
        for j in range(16): put(x, j, rest[x][j])
        for j in range(16, 32): put(x, j, task('Q', 'big', 256 * (j & 3), 1024 * x + 256 * ((j >> 2) & 3)))
    for x in range(4):
        for j in range(16): put(x, j, task('Q', 'big', 1024 + 256 * (j & 3), 1024 * x + 256 * (j >> 2)))
    hs = [task('H', 'big', 256 * m, 256 * n) for n in range(14) for m in range(8)]
    slots = [(x, j) for x in range(4) for j in range(16, 32)] + [(x, j) for x in range(4) for j in range(12)]
    for t, (x, j) in zip(hs, slots): put(x, j, t)
    for m in range(8): put(m & 3, 12 + (m >> 2), task('G', None, 256 * m, 0, 32))
    att = [task('A', None, s, 0, 4) for s in range(64)]
    fs = [task('F', 'big', 256 * m, 256 * n) for m in range(8) for n in range(4)]
    os_ = [task('O', 'q128', 128 * m, 128 * n) for m in range(16) for n in range(8)]
    free = [(x, j) for x in range(4) for j in range(32)]
    for i, t in enumerate(fs): put(i & 3, 24 + (i >> 2), t)
    for i, t in enumerate(att): put(i & 3, 12 + (i >> 2) % 4, t)
    order = [(x, j) for j in list(range(16, 24)) + list(range(12)) for x in range(4)]
    for i, t in enumerate(os_): put(*order[i % len(order)], t)
    return L

def sched_gtest():
    L = sched_v1()
    return L
```

```python
import sys
from asmlib import *
from layout import *
import gemm16 as G
from gemm16 import *
import att
import rec
import schedule as SC

NAME = 'gated_mix__memory_aug_recurrent_mem_tr__dense_activation_silu__prompt_kernel'
S_X, S_J = 24, 25
S_TAB, S_TASK, S_CODE = 70, 72, 80
S_IDX, S_TO = 82, 83
L_MISC = rec.L_MISC
TIMEOUT = 1 << 20

def load_ptr(A, dst, ka):
    A(f's_load_dwordx2 s[{dst}:{dst+1}], s[0:1], {ka}')

def executor(A, opts):
    stamps = 'stamps' in opts
    def tstamp(k):
        if not stamps: return
        f = A.label('nost')
        A(f's_cmp_lg_u32 s{S_WAVE}, 0'); A(f's_cbranch_scc1 {f}')
        A('s_memrealtime s[84:85]'); A('s_waitcnt lgkmcnt(0)')
        A(f's_lshl_b32 s86, s{S_J}, 4'); A(f's_add_u32 s86, s86, s{S_IDX}'); A('s_lshl_b32 s86, s86, 4'); A(f's_add_u32 s86, s86, {hx(STAMP + 0x20000 + 4*k)}')
        A('v_mov_b32 v2, s86'); A('v_mov_b32 v3, s84')
        A(f'buffer_store_dword v3, v2, s[{S_WS}:{S_WS+3}], 0 offen')
        A(f'{f}:')
    A('v_and_b32 v1, 63, v0')
    A(f's_getpc_b64 s[{S_TAB}:{S_TAB+1}]')
    A('L_pc:')
    A(f's_add_u32 s{S_TAB}, s{S_TAB}, L_table-L_pc'); A(f's_addc_u32 s{S_TAB+1}, s{S_TAB+1}, 0')
    A(f's_mul_i32 s{G_T0}, s{S_J}, {32 * SC.MAXT}'); A(f's_add_u32 s{S_TAB}, s{S_TAB}, s{G_T0}'); A(f's_addc_u32 s{S_TAB+1}, s{S_TAB+1}, 0')
    A(f's_mov_b32 s{S_IDX}, 0')
    A('L_task:')
    A(f's_lshl_b32 s{G_T0}, s{S_IDX}, 5')
    A(f's_load_dwordx8 s[{S_TASK}:{S_TASK+7}], s[{S_TAB}:{S_TAB+1}], s{G_T0}')
    A('s_waitcnt lgkmcnt(0)')
    A(f's_cmp_eq_u32 s{S_TASK}, 0'); A('s_cbranch_scc1 L_end')
    tstamp(0)
    go = A.label('go')
    A(f's_cmp_lg_u32 s{S_WAVE}, 0'); A(f's_cbranch_scc1 {go}')
    A(f's_or_b32 s{G_T0}, s{S_TASK+4}, s{S_TASK+5}'); A(f's_or_b32 s{G_T0}, s{G_T0}, s{S_TASK+6}')
    A(f's_cmp_eq_u32 s{G_T0}, 0'); A(f's_cbranch_scc1 {go}')
    A('v_mov_b32 v2, 0')
    for k in range(3): A(f'v_writelane_b32 v2, s{S_TASK+4+k}, {k}')
    A('v_lshrrev_b32 v3, 24, v2'); A('v_lshlrev_b32 v3, 2, v3'); A('v_and_b32 v2, 0xffffff, v2')
    A(f's_mov_b32 s{S_TO}, 0')
    poll = A.label('poll')
    A(f'{poll}:')
    A(f'buffer_load_dword v4, v3, s[{S_DBG}:{S_DBG+3}], 0 offen sc1')
    A('s_waitcnt vmcnt(0)')
    A('v_cmp_lt_u32 vcc, v4, v2')
    A(f's_cbranch_vccz {go}')
    A('s_sleep 8')
    A(f's_add_u32 s{S_TO}, s{S_TO}, 1'); A(f's_cmp_lt_u32 s{S_TO}, {TIMEOUT >> 2}'); A(f's_cbranch_scc1 {poll}')
    A('s_branch L_abort')
    A(f'{go}:')
    A('s_barrier')
    tstamp(1)
    A(f's_mov_b32 s{G_M0}, s{S_TASK+1}'); A(f's_mov_b32 s{G_N0}, s{S_TASK+2}')
    kinds = sorted(set(t[0] for lst in SC.table() for t in lst))
    for k in kinds:
        A(f's_cmp_eq_u32 s{S_TASK}, {k}'); A(f's_cbranch_scc1 L_t{k}')
    A('s_branch L_abort')

    def xmat(ptr_ka, row, nbytes, base, ots16, vtype):
        load_ptr(A, S_CODE, ptr_ka); load_ptr(A, S_CODE + 4, KA_X); A('s_waitcnt lgkmcnt(0)')
        srd(A, S_WD, S_CODE, nbytes); srd(A, S_XD, S_CODE + 4, 2048 * 2048)
        A(f's_lshl_b32 s{G_XO}, s{G_M0}, 11'); A(f's_mov_b32 s{G_XS}, 128')
        A(f's_lshl_b32 s{G_WO}, s{G_N0}, 1'); A(f's_mov_b32 s{G_ROW}, {row}'); A(f's_mov_b32 s{G_WS}, {row * 64}'); A(f's_mov_b32 s{G_NK}, 8')
        if vtype:
            A(f's_mov_b32 s{G_OTS}, 262144'); A(f's_lshl_b32 s{G_OB}, s{G_M0}, 13'); A(f's_lshl_b32 s{G_T0}, s{G_N0}, 6')
        else:
            A(f's_mov_b32 s{G_OTS}, {ots16}'); A(f's_mul_i32 s{G_OB}, s{G_M0}, {ots16 // 16}'); A(f's_lshl_b32 s{G_T0}, s{G_N0}, 5')
        A(f's_add_u32 s{G_OB}, s{G_OB}, s{G_T0}'); A(f's_add_u32 s{G_OB}, s{G_OB}, {hx(base)}')
    def fmat(ptr_ka, K, base):
        load_ptr(A, S_CODE, ptr_ka); A('s_waitcnt lgkmcnt(0)')
        srd(A, S_WD, S_CODE, K * 2048); srd(A, S_XD, S_WS, WS_BYTES)
        A(f's_mov_b32 s{G_TB}, {K * 32}'); A(f's_mul_i32 s{G_XO}, s{G_M0}, {K * 2}'); A(f's_add_u32 s{G_XO}, s{G_XO}, {hx(base)}'); A(f's_mov_b32 s{G_XS}, 2048')
        A(f's_lshl_b32 s{G_WO}, s{G_N0}, 1'); A(f's_mov_b32 s{G_ROW}, 2048'); A(f's_mov_b32 s{G_WS}, {2048 * 64}'); A(f's_mov_b32 s{G_NK}, {K // 128}')

    shapes = {'big': (8, 4, 2, 4), 'half': (4, 4, 4, 2), 'q128': (4, 2, 2, 4), 'q64': (1, 2, 4, 2)}
    gens = {n: Gemm(A, *p, opts=opts) for n, p in shapes.items()}
    shared = {}
    def body(shape, xt, orient, epi):
        key = (shape, xt, orient)
        if key in shared:
            A(f's_branch {shared[key][0]}'); shared[key][1].append(epi); return
        lab = f'L_body_{shape}_{xt}_{orient}'
        shared[key] = (lab, [epi])
        A(f's_branch {lab}')
    for k in kinds:
        A(f'L_t{k}:')
        name, shape = SC.KINDS[k]
        if name == 'K': xmat(KA_WK, 8192, 1024 * 8192, KX, 131072, False); body(shape, 'rm', 'kq', 'plain')
        elif name == 'Q': xmat(KA_WQ, 8192, 1024 * 8192, QX, 131072, False); body(shape, 'rm', 'kq', 'plain')
        elif name == 'V': xmat(KA_WV, 8192, 1024 * 8192, VX, 262144, True); body(shape, 'rm', 'v', 'plain')
        elif name == 'H': xmat(KA_W1, 7168, 1024 * 7168, HH, 112 * 1024, False); body(shape, 'rm', 'kq', 'silu')
        elif name == 'F':
            fmat(KA_W2, 3584, HH)
            A(f's_mov_b32 s{G_OTS}, 32768'); A(f's_lshl_b32 s{G_OB}, s{G_M0}, 11'); A(f's_lshl_b32 s{G_T0}, s{G_N0}, 5')
            A(f's_add_u32 s{G_OB}, s{G_OB}, s{G_T0}'); A(f's_add_u32 s{G_OB}, s{G_OB}, {hx(BB)}')
            body(shape, 'fm', 'kq', 'plain')
        elif name == 'O':
            fmat(KA_WO, 4096, OO)
            load_ptr(A, S_CODE, KA_OUT); A('s_waitcnt lgkmcnt(0)'); srd(A, S_OD, S_CODE, 2048 * 2048)
            body(shape, 'fm', 'kq', 'final')
        elif name == 'A':
            A(f's_mov_b32 s{G_NK}, s{S_TASK+3}')
            def wait_progress():
                loop, ok = A.label('pw'), A.label('pwok')
                A(f's_lshl_b32 s{G_T0}, s{G_N0}, 9'); A(f's_add_u32 s{G_T0}, s{G_T0}, {hx(FLG)}')
                A('v_and_b32 v7, 3, v1'); A('v_lshlrev_b32 v7, 7, v7')
                A(f's_mov_b32 s{S_TO}, 0')
                A(f'{loop}:')
                A(f'buffer_load_dword v8, v7, s[{S_WS}:{S_WS+3}], s{G_T0} offen sc1')
                A('s_waitcnt vmcnt(0)')
                A(f'v_cmp_ge_u32 vcc, s{G_M0}, v8')
                A(f's_cbranch_vccz {ok}')
                A('s_sleep 8')
                A(f's_add_u32 s{S_TO}, s{S_TO}, 1'); A(f's_cmp_lt_u32 s{S_TO}, {TIMEOUT >> 2}'); A(f's_cbranch_scc1 {loop}')
                A('s_branch L_abort')
                A(f'{ok}:')
            att.attention(A, wait_progress if 'noprog' not in opts else (lambda: None))
            A('s_branch L_done')
        elif name == 'G':
            load_ptr(A, S_CODE, KA_GW); load_ptr(A, S_CODE + 4, KA_X); A('s_waitcnt lgkmcnt(0)')
            srd(A, S_WD, S_CODE, 2048); srd(A, S_XD, S_CODE + 4, 2048 * 2048)
            A(f's_mov_b32 s{G_NK}, s{S_TASK+3}')
            att.gate(A)
            A('s_branch L_done')
    for (shape, xt, orient), (lab, epis) in shared.items():
        g = gens[shape]
        A(f'{lab}:')
        g.setup(xt)
        g.mainloop(xt, orient)
        tstamp(2)
        epis = sorted(set(epis))
        kind_of = {e: [k for k in kinds if SC.KINDS[k][1] == shape and
                       {'K': 'plain', 'Q': 'plain', 'V': 'plain', 'F': 'plain', 'H': 'silu', 'O': 'final'}.get(SC.KINDS[k][0]) == e] for e in epis}
        labs = {e: A.label('epi_' + e) for e in epis}
        for e in epis[1:]:
            for k in kind_of[e]:
                A(f's_cmp_eq_u32 s{S_TASK}, {k}'); A(f's_cbranch_scc1 {labs[e]}')
        for e in epis:
            A(f'{labs[e]}:')
            if e == 'plain': g.epi_frag(orient)
            elif e == 'silu':
                A(f's_mov_b32 s{G_C0}, 0xbfb8aa3b'); A(f's_mov_b32 s{G_C0+1}, 0xbfb8aa3b')
                g.epi_frag(orient, True)
            else: g.epi_final()
            A('s_branch L_done')
    A('L_done:')
    A('s_waitcnt vmcnt(0)')
    A('s_barrier')
    tstamp(3)
    nxt = A.label('nosig')
    A(f's_cmp_lg_u32 s{S_WAVE}, 0'); A(f's_cbranch_scc1 {nxt}')
    A(f's_cmp_eq_u32 s{S_TASK+7}, 0'); A(f's_cbranch_scc1 {nxt}')
    A(f's_lshr_b32 s{G_T0}, s{S_TASK+7}, 8'); A(f's_and_b32 s{G_T1}, s{S_TASK+7}, 0xff')
    A(f'v_mov_b32 v2, s{G_T0}'); A(f'v_mov_b32 v3, s{G_T1}'); A(f'v_mov_b32 v4, {hx(OOB)}'); A('v_cmp_eq_u32 vcc, 0, v1'); A('s_nop 1')
    A('v_cndmask_b32 v2, v4, v2, vcc')
    A(f'buffer_atomic_add v3, v2, s[{S_DBG}:{S_DBG+3}], 0 offen')
    A(f'{nxt}:')
    A(f's_add_u32 s{S_IDX}, s{S_IDX}, 1')
    A('s_branch L_task')

def build(opts=()):
    opts = list(opts)
    A = Asm()
    A.lines += open('header.txt').read().rstrip('\n').split('\n')
    A.lines.append('; @launch grid=(256,1,1) block=(512,1,1) lds=163840')
    A('.amdgcn_target "amdgcn-amd-amdhsa--gfx950"')
    A('.text'); A(f'.globl {NAME}'); A('.p2align 8'); A(f'.type {NAME},@function'); A(f'{NAME}:')
    A('s_cmp_ge_u32 s2, 256'); A('s_cbranch_scc1 L_end')
    if 'stamps' in opts or 'light' in opts: A('s_memrealtime s[98:99]')
    A(f's_load_dwordx4 s[56:59], s[0:1], {KA_DBG}')
    A(f's_getreg_b32 s{S_X}, hwreg(HW_REG_XCC_ID, 0, 4)')
    A('v_lshrrev_b32 v1, 6, v0'); A('s_nop 0'); A(f'v_readfirstlane_b32 s{S_WAVE}, v1')
    A('s_waitcnt lgkmcnt(0)')
    srd(A, S_WS, 58, WS_BYTES); srd(A, S_DBG, 56, 256)
    tk = A.label('tk')
    A(f's_cmp_lg_u32 s{S_WAVE}, 0'); A(f's_cbranch_scc1 {tk}')
    A(f's_lshl_b32 s{G_T0}, s{S_X}, 2')
    A(f'v_mov_b32 v2, s{G_T0}'); A(f'v_mov_b32 v3, {hx(OOB)}'); A('v_cmp_eq_u32 vcc, 0, v0'); A('v_mov_b32 v1, 1'); A('s_nop 0')
    A('v_cndmask_b32 v2, v3, v2, vcc')
    A(f'buffer_atomic_add v1, v2, s[{S_DBG}:{S_DBG+3}], 0 offen sc0')
    A('s_waitcnt vmcnt(0)')
    A(f'v_readfirstlane_b32 s{G_T0}, v1'); A('s_nop 1')
    A(f'v_mov_b32 v1, s{G_T0}'); A(f'v_mov_b32 v2, {L_MISC}')
    A('ds_write_b32 v2, v1'); A('s_waitcnt lgkmcnt(0)')
    A(f'{tk}:')
    A('s_barrier')
    A(f'v_mov_b32 v2, {L_MISC}'); A('ds_read_b32 v1, v2'); A('s_waitcnt lgkmcnt(0)')
    A(f'v_readfirstlane_b32 s{S_J}, v1'); A('s_nop 3')
    A('s_barrier')
    A(f's_cmp_ge_u32 s{S_J}, 32'); A('s_cbranch_scc1 L_end')
    A(f's_cmp_lt_u32 s{S_X}, 4'); A('s_cbranch_scc1 L_rec')
    A(f's_sub_u32 s{S_X}, s{S_X}, 4'); A(f's_lshl_b32 s{S_X}, s{S_X}, 5'); A(f's_add_u32 s{S_J}, s{S_J}, s{S_X}')
    executor(A, opts)
    A('L_rec:')
    if 'norec' not in opts:
        A(f's_load_dwordx4 s[44:47], s[0:1], {KA_MEM0}')
        A(f's_load_dwordx4 s[48:51], s[0:1], {KA_WK}')
        A(f's_load_dwordx2 s[54:55], s[0:1], {KA_WO}')
        A('s_waitcnt lgkmcnt(0)')
        A('s_mov_b32 s52, s44'); A('s_mov_b32 s53, s45')
        ro = [o for o in opts] + ([] if 'nokvwait' in opts else ['kvwait'])
        rec.Rec(A, 'light' if 'stamps' in opts or 'light' in opts else False, True, opts=ro).emit()
    A('s_branch L_end')
    A('L_abort:')
    A(f'v_mov_b32 v1, 1'); A(f'v_mov_b32 v2, {4*DBG_ERR}')
    A(f'buffer_atomic_add v1, v2, s[{S_DBG}:{S_DBG+3}], 0 offen')
    A('L_end:')
    A('s_endpgm')
    A('.p2align 6')
    A('.type L_table,@object')
    A('L_table:')
    for lst in SC.table():
        assert len(lst) < SC.MAXT
        for t in lst + [(0,) * 8] * (SC.MAXT - len(lst)):
            A.lines.append('.long ' + ','.join(str(w) for w in t))
    A('.size L_table, .-L_table')
    A('.section .rodata,"a"'); A('.p2align 6'); A(f'.amdhsa_kernel {NAME}')
    for k in ('next_free_vgpr 256', 'next_free_sgpr 102', 'accum_offset 192', 'group_segment_fixed_size 0', 'kernarg_size 112',
              'user_sgpr_count 2', 'user_sgpr_kernarg_segment_ptr 1', 'system_sgpr_workgroup_id_x 1', 'float_denorm_mode_32 3'):
        A.lines.append('  .amdhsa_' + k)
    A('.end_amdhsa_kernel')
    return A.text()

if __name__ == '__main__':
    opts = sys.argv[2:]
    for o in opts:
        if o.startswith('sched='): SC.MODE = o[6:]
    open(sys.argv[1], 'w').write(build(opts))
```

```python
from asmlib import *
from layout import *
from gemm16 import S_WS, S_XD, S_WD, S_WAVE, G_T0, G_T1, G_T2, G_TB, G_C0, G_M0, G_N0, G_NK, G_OB, G_XO, G_WO, V_L16

def attention(A, wait_progress):
    Q, K, V, KMr, VMr = 20, 52, 84, 116, 132
    S00, S01, S11, SM0, SM1 = 148, 152, 156, 160, 164
    BX0, BX1, BM0, BM1 = 168, 172, 176, 178
    T = 180
    O = 'a'
    VKM, VVM, VMASK = 4, 5, 6
    SEG, HD, SOFF, SC = G_M0, G_N0, G_XO, G_C0
    A(f's_mul_i32 s{G_T0}, s{S_WAVE}, s{G_NK}'); A(f's_add_u32 s{HD}, s{HD}, s{G_T0}')
    A(f'v_lshlrev_b32 v{V_L16}, 4, v1')
    A('v_and_b32 v2, 15, v1'); A('v_lshrrev_b32 v3, 4, v1')
    A('v_and_b32 v7, 7, v1'); A(f'v_lshlrev_b32 v{VKM}, 4, v7'); A(f'v_lshl_add_u32 v{VKM}, v3, 7, v{VKM}')
    A('v_and_b32 v7, 1, v3'); A(f'v_lshlrev_b32 v{VVM}, 7, v7'); A(f'v_lshl_add_u32 v{VVM}, v2, 3, v{VVM}')
    A('v_lshlrev_b32 v7, 2, v3')
    for r in range(4):
        A(f'v_add_u32 v8, {r}, v7'); A(f'v_cmp_le_u32 s[{60+2*r}:{61+2*r}], v8, v2')
    A('v_cmp_gt_u32 s[84:85], 2, v3')
    A(f's_mov_b32 s{SC}, 0x3db504f3')
    A(f's_mov_b32 s{SC+1}, 0x3fb8aa3b')
    A(f'v_mov_b32 v{VMASK}, 0xff800000')
    def ld4(reg, voff, soff, off): A(f'buffer_load_dwordx4 v[{reg}:{reg+3}], v{voff}, s[{S_WS}:{S_WS+3}], s{soff} offen offset:{off} sc1')
    def load_kqx():
        A(f's_lshl_b32 s{G_T2}, s{SEG}, 18'); A(f's_lshl_b32 s{G_T0}, s{HD}, 12'); A(f's_add_u32 s{G_T2}, s{G_T2}, s{G_T0}')
        for tb in range(2):
            A(f's_add_u32 s{G_T1}, s{G_T2}, {hx(KX + tb * 131072)}')
            for c in range(4): ld4(K + 16 * tb + 4 * c, V_L16, G_T1, 1024 * c)
            A(f's_add_u32 s{G_T1}, s{G_T2}, {hx(QX + tb * 131072)}')
            for c in range(4): ld4(Q + 16 * tb + 4 * c, V_L16, G_T1, 1024 * c)
    def mem_base(base):
        A(f's_lshl_b32 s{G_T1}, s{SEG}, 16'); A(f's_lshl_b32 s{G_T0}, s{HD}, 11'); A(f's_add_u32 s{G_T1}, s{G_T1}, s{G_T0}'); A(f's_add_u32 s{G_T1}, s{G_T1}, {hx(base)}')
    def load_km():
        mem_base(KM)
        for c in range(4): ld4(KMr + 4 * c, VKM, G_T1, 512 * c)
    def load_vm():
        mem_base(VM)
        for e in range(8):
            A(f'buffer_load_dwordx2 v[{VMr+2*e}:{VMr+2*e+1}], v{VVM}, s[{S_WS}:{S_WS+3}], s{G_T1} offen offset:{256*e} sc1')
    def load_vx():
        A(f's_lshl_b32 s{G_T1}, s{SEG}, 18'); A(f's_lshl_b32 s{G_T0}, s{HD}, 13'); A(f's_add_u32 s{G_T1}, s{G_T1}, s{G_T0}'); A(f's_add_u32 s{G_T1}, s{G_T1}, {hx(VX)}')
        for e in range(4): ld4(V + 4 * e, V_L16, G_T1, 1024 * e)
        A(f's_add_u32 s{G_T1}, s{G_T1}, 4096')
        for e in range(4): ld4(V + 16 + 4 * e, V_L16, G_T1, 1024 * e)
    def load_kq(): load_kqx(); load_km()
    def load_v(): load_vm(); load_vx()
    load_kqx(); load_vx()
    wait_progress()
    load_km(); load_vm()
    A('s_waitcnt vmcnt(8)')
    loop, nok, nov = A.label('att'), A.label('attnk'), A.label('attnv')
    A(f'{loop}:')
    A(f's_lshl_b32 s{SOFF}, s{SEG}, 18'); A(f's_lshl_b32 s{G_T0}, s{HD}, 12'); A(f's_add_u32 s{SOFF}, s{SOFF}, s{G_T0}'); A(f's_add_u32 s{SOFF}, s{SOFF}, {hx(OO)}')
    A(f's_add_u32 s{HD}, s{HD}, 1'); A(f's_sub_u32 s{G_NK}, s{G_NK}, 1')
    def mm(d, a_, b_, c):
        A(f'v_mfma_f32_16x16x32_bf16 v[{d}:{d+3}], v[{a_}:{a_+3}], v[{b_}:{b_+3}], ' + ('0' if c == 0 else f'v[{d}:{d+3}]'))
    A('s_waitcnt vmcnt(16)')
    for c in range(4): mm(S00, K + 4 * c, Q + 4 * c, c)
    for c in range(4):
        mm(S01, K + 4 * c, Q + 16 + 4 * c, c); mm(S11, K + 16 + 4 * c, Q + 16 + 4 * c, c)
    for c in range(4):
        mm(SM0, KMr + 4 * c, Q + 4 * c, c); mm(SM1, KMr + 4 * c, Q + 16 + 4 * c, c)
    A(f's_cmp_eq_u32 s{G_NK}, 0'); A(f's_cbranch_scc1 {nok}')
    A('s_nop 3')
    load_kq()
    A(f'{nok}:')
    A('s_nop 7')
    def rnd(regs):
        for i in range(0, len(regs), 2):
            A(f'v_cvt_pk_bf16_f32 v{T}, v{regs[i]}, v{regs[i+1]}')
            A(f'v_lshlrev_b32 v{regs[i]}, 16, v{T}'); A(f'v_and_b32 v{regs[i+1]}, 0xffff0000, v{T}')
    allr = list(range(S00, S00 + 20))
    rnd(allr)
    for i in range(0, 20, 2): A(f'v_pk_mul_f32 v[{allr[i]}:{allr[i]+1}], v[{allr[i]}:{allr[i]+1}], s[{SC}:{SC+1}] op_sel_hi:[1,0]')
    rnd(allr)
    for r in range(4):
        A(f'v_cndmask_b32 v{S00+r}, v{VMASK}, v{S00+r}, s[{60+2*r}:{61+2*r}]')
        A(f'v_cndmask_b32 v{S11+r}, v{VMASK}, v{S11+r}, s[{60+2*r}:{61+2*r}]')
        A(f'v_cndmask_b32 v{SM0+r}, v{VMASK}, v{SM0+r}, s[84:85]')
        A(f'v_cndmask_b32 v{SM1+r}, v{VMASK}, v{SM1+r}, s[84:85]')
    sets = [list(range(S00, S00 + 4)) + list(range(SM0, SM0 + 4)), list(range(S01, S01 + 8)) + list(range(SM1, SM1 + 4))]
    def reduce(op, op3, t0):
        for q, regs in enumerate(sets):
            t = t0 + 2 * q
            if op3:
                A(f'{op3} v{t}, v{regs[0]}, v{regs[1]}, v{regs[2]}')
                i = 3
                while i + 1 < len(regs): A(f'{op3} v{t}, v{t}, v{regs[i]}, v{regs[i+1]}'); i += 2
                if i < len(regs): A(f'{op} v{t}, v{t}, v{regs[i]}')
            else:
                A(f'{op} v{t}, v{regs[0]}, v{regs[1]}')
                for r in regs[2:]: A(f'{op} v{t}, v{t}, v{r}')
        for sw in ('v_permlane16_swap_b32', 'v_permlane32_swap_b32'):
            A(f'v_mov_b32 v{t0+1}, v{t0}'); A(f'v_mov_b32 v{t0+3}, v{t0+2}'); A('s_nop 1')
            A(f'{sw} v{t0}, v{t0+1}'); A(f'{sw} v{t0+2}, v{t0+3}')
            A(f'{op} v{t0}, v{t0}, v{t0+1}'); A(f'{op} v{t0+2}, v{t0+2}, v{t0+3}')
    reduce('v_max_f32', 'v_max3_f32', T)
    for q, regs in enumerate(sets):
        for r in regs: A(f'v_sub_f32 v{r}, v{r}, v{T+2*q}')
    for q, regs in enumerate(sets):
        for r in regs: A(f'v_mul_f32 v{r}, s{SC+1}, v{r}')
    for q, regs in enumerate(sets):
        for r in regs: A(f'v_exp_f32 v{r}, v{r}')
    A('s_nop 0')
    reduce('v_add_f32', None, T)
    A(f'v_rcp_f32 v{T}, v{T}'); A(f'v_rcp_f32 v{T+2}, v{T+2}'); A('s_nop 0')
    for q, regs in enumerate(sets):
        for i in range(0, len(regs), 2):
            A(f'v_pk_mul_f32 v[{regs[i]}:{regs[i]+1}], v[{regs[i]}:{regs[i]+1}], v[{T+2*q}:{T+2*q+1}] op_sel_hi:[1,0]')
    def cv(d, s_): A(f'v_cvt_pk_bf16_f32 v{d}, v{s_}, v{s_+1}')
    cv(BX0, S00); cv(BX0 + 1, S00 + 2); A(f'v_mov_b32 v{BX0+2}, 0'); A(f'v_mov_b32 v{BX0+3}, 0')
    cv(BX1, S01); cv(BX1 + 1, S01 + 2); cv(BX1 + 2, S11); cv(BX1 + 3, S11 + 2)
    cv(BM0, SM0); cv(BM0 + 1, SM0 + 2); cv(BM1, SM1); cv(BM1 + 1, SM1 + 2)
    last, pv = A.label('attl'), A.label('attpv')
    A(f's_cmp_eq_u32 s{G_NK}, 0'); A(f's_cbranch_scc1 {last}')
    A('s_waitcnt vmcnt(20)')
    A(f's_branch {pv}')
    A(f'{last}:')
    A('s_waitcnt vmcnt(0)')
    A(f'{pv}:')
    for q, (bx, bm) in enumerate(((BX0, BM0), (BX1, BM1))):
        for e in range(8):
            d = 32 * q + 4 * e
            A(f'v_mfma_f32_16x16x16_bf16 a[{d}:{d+3}], v[{VMr+2*e}:{VMr+2*e+1}], v[{bm}:{bm+1}], 0')
        for e in range(8):
            d = 32 * q + 4 * e
            A(f'v_mfma_f32_16x16x32_bf16 a[{d}:{d+3}], v[{V+4*e}:{V+4*e+3}], v[{bx}:{bx+3}], a[{d}:{d+3}]')
    n = 0
    for q in range(2):
        if q: A(f's_add_u32 s{SOFF}, s{SOFF}, 131072')
        else: A('s_nop 1')
        for c in range(4):
            d = 32 * q + 8 * c; t = S00; u = S00 + 8 + 4 * (n % 3); n += 1
            for r in range(8): A(f'v_accvgpr_read_b32 v{t+r}, a{d+r}')
            for r in range(4): cv(u + r, t + 2 * r)
            A(f'buffer_store_dwordx4 v[{u}:{u+3}], v{V_L16}, s[{S_WS}:{S_WS+3}], s{SOFF} offen offset:{1024*c} sc1')
    A(f's_cmp_eq_u32 s{G_NK}, 0'); A(f's_cbranch_scc1 {nov}')
    load_v()
    A(f's_branch {loop}')
    A(f'{nov}:')

def gate(A):
    X, W, P, NB = 64, 28, 44, 4
    A(f's_mul_i32 s{G_T0}, s{S_WAVE}, s{G_NK}'); A(f's_lshl_b32 s{G_T0}, s{G_T0}, 2'); A(f's_add_u32 s{G_M0}, s{G_M0}, s{G_T0}')
    A(f'v_lshlrev_b32 v{V_L16}, 4, v1')
    for h in range(2):
        A(f'buffer_load_dwordx4 v[{20+4*h}:{20+4*h+3}], v{V_L16}, s[{S_WD}:{S_WD+3}], 0 offen offset:{1024*h}')
    A('v_cmp_eq_u32 vcc, 63, v1'); A(f'v_mov_b32 v4, {hx(OOB)}'); A('v_mov_b32 v5, 0'); A('v_cndmask_b32 v4, v4, v5, vcc')
    A('s_waitcnt vmcnt(0)')
    for p in range(8):
        A(f'v_lshlrev_b32 v{W+2*p}, 16, v{20+p}'); A(f'v_and_b32 v{W+2*p+1}, 0xffff0000, v{20+p}')
    A(f's_mov_b32 s{G_C0}, 0xbfb8aa3b')
    def loads(buf, tok):
        for t in range(NB):
            A(f's_add_u32 s{G_T0}, s{tok}, {t}'); A(f's_lshl_b32 s{G_T0}, s{G_T0}, 11')
            for h in range(2):
                r = X + 32 * buf + 8 * t + 4 * h
                A(f'buffer_load_dwordx4 v[{r}:{r+3}], v{V_L16}, s[{S_XD}:{S_XD+3}], s{G_T0} offen offset:{1024*h}')
    def compute(buf):
        for t in range(NB):
            x = X + 32 * buf + 8 * t
            for p in range(8):
                A(f'v_lshlrev_b32 v{P+2*p}, 16, v{x+p}'); A(f'v_and_b32 v{P+2*p+1}, 0xffff0000, v{x+p}')
            for p in range(8): A(f'v_pk_mul_f32 v[{P+2*p}:{P+2*p+1}], v[{P+2*p}:{P+2*p+1}], v[{W+2*p}:{W+2*p+1}]')
            for p in range(8): A(f'v_cvt_pk_bf16_f32 v{x+p}, v{P+2*p}, v{P+2*p+1}')
            for p in range(8):
                A(f'v_lshlrev_b32 v{P+2*p}, 16, v{x+p}'); A(f'v_and_b32 v{P+2*p+1}, 0xffff0000, v{x+p}')
            for st in (8, 4, 2):
                for p in range(0, st, 2): A(f'v_pk_add_f32 v[{P+p}:{P+p+1}], v[{P+p}:{P+p+1}], v[{P+st+p}:{P+st+p+1}]')
            A(f'v_add_f32 v{8+t}, v{P}, v{P+1}')
        for sh in (1, 2, 4, 8):
            A('s_nop 0')
            for t in range(NB): A(f'v_add_f32_dpp v{8+t}, v{8+t}, v{8+t} row_shr:{sh} row_mask:0xf bank_mask:0xf bound_ctrl:1')
        for bc, rm in ((15, '0xa'), (31, '0xc')):
            for t in range(NB): A(f'v_add_f32_dpp v{8+t}, v{8+t}, v{8+t} row_bcast:{bc} row_mask:{rm} bank_mask:0xf')
        for t in range(NB): A(f'v_cvt_pk_bf16_f32 v{8+t}, v{8+t}, v{8+t}')
        for t in range(NB): A(f'v_and_b32 v{8+t}, 0xffff0000, v{8+t}')
        for t in range(NB): A(f'v_mul_f32 v{8+t}, s{G_C0}, v{8+t}')
        for t in range(NB): A(f'v_exp_f32 v{8+t}, v{8+t}')
        for t in range(NB): A(f'v_add_f32 v{8+t}, 1.0, v{8+t}')
        for t in range(NB): A(f'v_rcp_f32 v{8+t}, v{8+t}')
        for t in range(NB): A(f'v_cvt_pk_bf16_f32 v{8+t}, v{8+t}, v{8+t}')
        for t in range(NB): A(f'v_and_b32 v{8+t}, 0xffff0000, v{8+t}')
        A(f's_lshl_b32 s{G_T0}, s{G_M0}, 2'); A(f's_add_u32 s{G_T0}, s{G_T0}, {hx(GG)}')
        A(f'buffer_store_dwordx4 v[8:11], v4, s[{S_WS}:{S_WS+3}], s{G_T0} offen sc1')
        A(f's_add_u32 s{G_M0}, s{G_M0}, {NB}')
    loads(0, G_M0)
    loop = A.label('gate')
    A(f'{loop}:')
    A(f's_add_u32 s{G_T1}, s{G_M0}, {NB}')
    loads(1, G_T1)
    A('s_waitcnt vmcnt(8)')
    compute(0)
    A(f's_add_u32 s{G_T1}, s{G_M0}, {NB}'); A(f's_min_u32 s{G_T1}, s{G_T1}, {2048 - NB}')
    loads(0, G_T1)
    A('s_waitcnt vmcnt(8)')
    compute(1)
    A(f's_sub_u32 s{G_NK}, s{G_NK}, 2'); A(f's_cmp_lg_u32 s{G_NK}, 0')
    A(f's_cbranch_scc1 {loop}')
```

```python
from asmlib import *
from layout import *

S_WS, S_XD, S_WD, S_OD, S_DBG = 4, 8, 12, 16, 20
S_WAVE = 28
G_XO, G_XS, G_WO, G_WS, G_NK, G_OB, G_OTS, G_ROW = 32, 33, 34, 35, 36, 37, 38, 39
G_LX, G_LW, G_T0, G_T1, G_T2, G_TB = 40, 41, 42, 43, 44, 45
G_C0, G_M0, G_N0 = 46, 48, 49
G_HEAD, G_PSIG, G_PHASE = 26, 27, 29
V_XG, V_WG, V_XA, V_WA, V_L16, V_T = 4, 8, 12, 14, 18, 20
ACC = 64
L_X, L_W = 0, 65536

class Reads:
    def __init__(self, A):
        self.A, self.q = A, []
    def issue(self, key, text):
        self.A(text); self.q.append(key)
    def need(self, keys):
        idx = [i for i, k in enumerate(self.q) if k in keys]
        if not idx: return
        n = len(self.q) - 1 - max(idx)
        self.A(f's_waitcnt lgkmcnt({min(n, 15)})')
        self.q = self.q[len(self.q) - min(n, 15):]
    def drain(self):
        self.A('s_waitcnt lgkmcnt(0)'); self.q = []

class Gemm:
    def __init__(self, A, NTB=8, NFB=4, WT=2, WF=4, KS=32, R=4, opts=()):
        self.A = A
        self.NTB, self.NFB, self.WT, self.WF, self.KS, self.R_ = NTB, NFB, WT, WF, KS, R
        assert WT * WF == 8
        self.TM, self.TN = 16 * NTB * WT, 16 * NFB * WF
        self.NSUB = KS // 32
        self.XB, self.WB = self.TM * KS * 2, self.TN * KS * 2
        self.NX, self.NW = self.XB // 8192, self.WB // 8192
        assert self.NX >= 1 and self.NW >= 1
        self.LX, self.LW = 0, R * self.XB
        assert R * (self.XB + self.WB) <= 163840 and R * self.XB <= 65536 and R * self.WB <= 65536
        self.opts = set(opts)
        self.NST = NTB * NFB // 2
        self.dbl = NTB + NFB <= 8
        self.stamp = lambda k: None
        self.chain = False
        self.outofline = []

    def acc(self, tb, fb): return ACC + 4 * (tb * self.NFB + fb)
    def xr(self, par, tb): return 4 * ((par if self.dbl else 0) * self.NTB + tb)
    def wr(self, par, fb): return 4 * ((2 if self.dbl else 1) * self.NTB + par * self.NFB + fb)

    def wave_ids(self):
        A = self.A
        A(f's_lshr_b32 s{G_T0}, s{S_WAVE}, {self.WF.bit_length() - 1}')
        A(f's_and_b32 s{G_T1}, s{S_WAVE}, {self.WF - 1}')

    def setup(self, xt):
        A = self.A
        NX, NW, TN, KS = self.NX, self.NW, self.TN, self.KS
        T = V_T
        self.wave_ids()
        A(f's_mul_i32 s{G_LX}, s{S_WAVE}, {NX * 1024}')
        A(f's_mul_i32 s{G_LW}, s{S_WAVE}, {NW * 1024}'); A(f's_add_u32 s{G_LW}, s{G_LW}, {self.LW}')
        A(f'v_lshlrev_b32 v{V_L16}, 4, v1')
        A(f's_mul_i32 s{G_T2}, s{G_T0}, {self.NTB * 16 * KS * 2}')
        A(f'v_lshrrev_b32 v{T+2}, 4, v1'); A(f'v_and_b32 v{T+3}, 15, v1')
        if xt == 'rm' and KS == 64:
            A(f'v_bfe_u32 v{T+1}, v1, 1, 3')
            for s2 in range(2):
                A(f'v_add_u32 v{T}, {4*s2}, v{T+2}'); A(f'v_xor_b32 v{T}, v{T}, v{T+1}'); A(f'v_lshlrev_b32 v{T}, 4, v{T}')
                A(f'v_lshl_add_u32 v{T}, v{T+3}, 7, v{T}')
                A(f'v_add_u32 v{V_XA+s2}, s{G_T2}, v{T}')
            A(f'v_and_b32 v{T+3}, 7, v1'); A(f'v_lshrrev_b32 v{T+1}, 3, v1')
            for i in range(NX):
                A(f's_mul_i32 s{G_T2}, s{S_WAVE}, {NX}'); A(f's_add_u32 s{G_T2}, s{G_T2}, {i}')
                A(f's_and_b32 s{G_TB}, s{G_T2}, 1'); A(f's_lshl_b32 s{G_TB}, s{G_TB}, 2')
                A(f'v_or_b32 v{T}, s{G_TB}, v{T+2}'); A(f'v_xor_b32 v{T}, v{T}, v{T+3}'); A(f'v_lshlrev_b32 v{T}, 4, v{T}')
                A(f'v_lshl_add_u32 v{T}, v{T+1}, 11, v{T}')
                A(f's_lshl_b32 s{G_T2}, s{G_T2}, 14')
                A(f'v_add_u32 v{V_XG+i}, s{G_T2}, v{T}')
        elif xt == 'rm':
            A(f'v_bfe_u32 v{T+1}, v1, 3, 1'); A(f'v_mul_u32_u24 v{T+1}, 3, v{T+1}'); A(f'v_xor_b32 v{T}, v{T+1}, v{T+2}')
            A(f'v_lshlrev_b32 v{T}, 4, v{T}'); A(f'v_lshl_add_u32 v{T}, v{T+3}, 6, v{T}')
            A(f'v_add_u32 v{V_XA}, s{G_T2}, v{T}')
            A(f'v_lshrrev_b32 v{T+1}, 5, v1'); A(f'v_mul_u32_u24 v{T+1}, 3, v{T+1}'); A(f'v_and_b32 v{T}, 3, v1')
            A(f'v_xor_b32 v{T}, v{T}, v{T+1}'); A(f'v_lshlrev_b32 v{T}, 4, v{T}')
            A(f'v_lshrrev_b32 v{T+1}, 2, v1'); A(f'v_lshl_add_u32 v{T}, v{T+1}, 11, v{T}')
            for i in range(NX):
                A(f's_mul_i32 s{G_T2}, s{S_WAVE}, {NX}'); A(f's_add_u32 s{G_T2}, s{G_T2}, {i}'); A(f's_lshl_b32 s{G_T2}, s{G_T2}, 15')
                A(f'v_add_u32 v{V_XG+i}, s{G_T2}, v{T}')
        else:
            A(f'v_add_u32 v{V_XA}, s{G_T2}, v{V_L16}')
            for i in range(NX):
                A(f's_mul_i32 s{G_T2}, s{S_WAVE}, {NX}'); A(f's_add_u32 s{G_T2}, s{G_T2}, {i}')
                if self.NSUB == 2:
                    A(f's_and_b32 s{G_C0}, s{G_T2}, 1'); A(f's_lshl_b32 s{G_C0}, s{G_C0}, 10'); A(f's_lshr_b32 s{G_T2}, s{G_T2}, 1')
                A(f's_mul_i32 s{G_T2}, s{G_T2}, s{G_TB}')
                if self.NSUB == 2: A(f's_add_u32 s{G_T2}, s{G_T2}, s{G_C0}')
                A(f'v_add_u32 v{V_XG+i}, s{G_T2}, v{V_L16}')
        self.setup_wg(xt)
        rb = TN * 2
        A(f'v_bfe_u32 v{T}, v1, 2, 2')
        A(f'v_lshrrev_b32 v{T+1}, 4, v1')
        A(f'v_lshl_add_u32 v{T+2}, v{T+1}, {3 if xt == "rm" else 2}, v{T}')
        A(f'v_mul_u32_u24 v{T+2}, {rb}, v{T+2}')
        A(f'v_and_b32 v{T+3}, 3, v1'); A(f'v_lshl_add_u32 v{T+2}, v{T+3}, 3, v{T+2}')
        A(f'v_add_u32 v{T+2}, {self.LW}, v{T+2}')
        A(f'v_and_b32 v{T+1}, 1, v{T+1}'); A(f'v_lshl_or_b32 v{T}, v{T+1}, 2, v{T}')
        if TN < 128: A(f'v_lshrrev_b32 v{T}, 1, v{T}')
        for fb in range(self.NFB):
            A(f's_mul_i32 s{G_T2}, s{G_T1}, {self.NFB}'); A(f's_add_u32 s{G_T2}, s{G_T2}, {fb}')
            A(f'v_xor_b32 v{T+1}, s{G_T2}, v{T}')
            A(f'v_lshl_add_u32 v{V_WA+fb}, v{T+1}, 5, v{T+2}')

    def setup_wg(self, xt):
        A = self.A
        NW, TN, T = self.NW, self.TN, V_T
        RPI = 512 // TN; LPR = 64 // RPI
        sh = LPR.bit_length() - 1
        A(f'v_lshrrev_b32 v{T+3}, {sh}, v1'); A(f'v_and_b32 v{T+4}, {LPR-1}, v1')
        for i in range(NW):
            A(f's_mul_i32 s{G_T2}, s{S_WAVE}, {NW * RPI}'); A(f's_add_u32 s{G_T2}, s{G_T2}, {i * RPI}')
            A(f'v_add_u32 v{T}, s{G_T2}, v{T+3}')
            if xt == 'rm':
                A(f'v_and_b32 v{T+1}, 3, v{T}'); A(f'v_bfe_u32 v{T+2}, v{T}, 3, 1'); A(f'v_lshl_or_b32 v{T+1}, v{T+2}, 2, v{T+1}')
            else:
                A(f'v_and_b32 v{T+1}, 7, v{T}')
            if TN < 128: A(f'v_lshrrev_b32 v{T+1}, 1, v{T+1}')
            A(f'v_lshlrev_b32 v{T+1}, 1, v{T+1}'); A(f'v_xor_b32 v{T+1}, v{T+1}, v{T+4}')
            A(f'v_mul_lo_u32 v{T}, v{T}, s{G_ROW}')
            A(f'v_lshl_add_u32 v{V_WG+i}, v{T+1}, 4, v{T}')

    def dma(self, xt, slot):
        g = []
        sc = ' sc1' if xt == 'fm' else ''
        for i in range(self.NX):
            g.append([f's_add_u32 m0, s{G_LX}, {self.LX + slot * self.XB + i * 1024}', 's_nop 0',
                      f'buffer_load_dwordx4 v{V_XG+i}, s[{S_XD}:{S_XD+3}], s{G_XO} offen{sc} lds'])
        for i in range(self.NW):
            g.append([f's_add_u32 m0, s{G_LW}, {slot * self.WB + i * 1024}', 's_nop 0',
                      f'buffer_load_dwordx4 v{V_WG+i}, s[{S_WD}:{S_WD+3}], s{G_WO} offen lds'])
        g[self.NX - 1].append(f's_add_u32 s{G_XO}, s{G_XO}, s{G_XS}')
        g[-1].append(f's_add_u32 s{G_WO}, s{G_WO}, s{G_WS}')
        return g

    def rd_x(self, xt, slot, s2, par, tb):
        r = self.xr(par, tb)
        base = self.LX + slot * self.XB + tb * 16 * self.KS * 2
        if xt == 'rm': t = f'ds_read_b128 a[{r}:{r+3}], v{V_XA+s2} offset:{base}'
        else: t = f'ds_read_b128 a[{r}:{r+3}], v{V_XA} offset:{base + s2 * 1024}'
        return (('x', par if self.dbl else 0, tb), t)
    def rd_w(self, xt, slot, s2, par, fb):
        rb = self.TN * 2
        hs = (4 if xt == 'rm' else 16) * rb
        r = self.wr(par, fb)
        return [(('w', par, fb, h), f'ds_read_b64_tr_b16 a[{r+2*h}:{r+2*h+1}], v{V_WA+fb} offset:{slot * self.WB + s2 * 32 * rb + h * hs}') for h in range(2)]

    def substep(self, xt, orient, slot, s2, par, left):
        A, R = self.A, self.R
        lastsub = s2 == self.NSUB - 1
        nslot, ns2 = ((slot + 1) % self.R_, 0) if lastsub else (slot, s2 + 1)
        ahead = not (lastsub and left == 0)
        wreads = sum((self.rd_w(xt, nslot, ns2, par ^ 1, fb) for fb in range(self.NFB)), []) if ahead else []
        xreads = [self.rd_x(xt, nslot, ns2, par ^ 1, tb) for tb in range(self.NTB)] if ahead else []
        free = wreads + (xreads if self.dbl else [])
        nm = self.NTB * self.NFB
        sync_at = min(self.NFB, nm - 1) if (lastsub and ahead) else 0
        dma = []
        n = 0
        for tb in range(self.NTB):
            R.need({('x', par if self.dbl else 0, tb)} | ({('w', par, fb, h) for fb in range(self.NFB) for h in range(2)} if tb == 0 else set()))
            for fb in range(self.NFB):
                d = self.acc(tb, fb)
                x, w = self.xr(par, tb), self.wr(par, fb)
                a_, b_ = (w, x) if orient == 'kq' else (x, w)
                A(f'v_mfma_f32_16x16x32_bf16 v[{d}:{d+3}], a[{a_}:{a_+3}], a[{b_}:{b_+3}], v[{d}:{d+3}]')
                n += 1
                if n == sync_at:
                    R.drain()
                    fly = self.R_ - 2 if left is None else min(self.R_ - 2, left - 1)
                    nd = self.NX + self.NW
                    if self.chain and left is None and slot < self.R_ - 1:
                        sk = A.label('hd')
                        A(f's_waitcnt vmcnt({fly * nd + self.NST})')
                        A(f's_cmp_lg_u32 s{G_HEAD}, 0'); A(f's_cbranch_scc1 {sk}')
                        A(f's_waitcnt vmcnt({fly * nd})')
                        A(f'{sk}:')
                    else:
                        A(f's_waitcnt vmcnt({fly * nd})')
                    A('s_barrier')
                    if self.chain and left is None and slot == self.R_ - 1:
                        o, b = A.label('sig'), A.label('sigb')
                        A(f's_cmp_lg_u32 s{G_HEAD}, 0'); A(f's_cbranch_scc1 {o}')
                        A(f'{b}:')
                        self.outofline.append((o, b))
                    if left is None: dma = self.dma(xt, slot)
                if n < sync_at: continue
                rem = nm - n
                if (not self.dbl) and xreads and fb == self.NFB - 1:
                    R.issue(*xreads[tb])
                elif dma and (rem - self.NFB > len(free) + len(free) // 3 or not free):
                    for ln in dma[0]: A(ln)
                    dma = dma[1:]
                elif free:
                    room = max(rem - self.NFB, 1)
                    k = -(-len(free) // room) if rem else len(free)
                    for rd in free[:k]: R.issue(*rd)
                    free = free[k:]
        for rd in free: R.issue(*rd)
        for grp in dma:
            for ln in grp: A(ln)

    def stages(self, xt, orient, lefts):
        par = 0
        for slot, left in enumerate(lefts):
            for s2 in range(self.NSUB):
                self.substep(xt, orient, slot, s2, par, left); par ^= 1
        assert par == 0

    def prologue(self, xt):
        A = self.A
        self.R = R = Reads(A)
        RN = self.R_
        for slot in range(RN):
            for ln in sum(self.dma(xt, slot), []): A(ln)
        for r in range(4 * self.NTB * self.NFB): A(f'v_mov_b32 v{ACC+r}, 0')
        A(f's_waitcnt vmcnt({(RN - 1) * (self.NX + self.NW)})')
        A('s_barrier')
        self.stamp(1)
        for fb in range(self.NFB):
            for rd in self.rd_w(xt, 0, 0, 0, fb): R.issue(*rd)
        for tb in range(self.NTB): R.issue(*self.rd_x(xt, 0, 0, 0, tb))
        R.drain()

    def loop(self, xt, orient, label):
        A, R, RN = self.A, self.R, self.R_
        self.A = R.A = Asm(); keep = list(self.outofline)
        self.stages(xt, orient, [None] * RN)
        self.A = R.A = A; self.outofline = keep
        steady = list(R.q)
        A(f'{label}:')
        self.stages(xt, orient, [None] * RN)
        assert R.q == steady
        A(f's_sub_u32 s{G_NK}, s{G_NK}, 1')
        A(f's_cmp_lg_u32 s{G_NK}, 0')
        A(f's_cbranch_scc1 {label}')

    def tail(self, xt, orient):
        self.stages(xt, orient, list(range(self.R_ - 1, -1, -1)))

    def mainloop(self, xt, orient):
        self.prologue(xt)
        self.loop(xt, orient, self.A.label('kloop'))
        self.tail(xt, orient)
        self.A('s_nop 7')

    def epi_frag(self, orient, silu=False, zero=False):
        A = self.A
        self.wave_ids()
        n = 0
        if orient == 'kq': outer = [(tb, [(self.acc(tb, 2*c), self.acc(tb, 2*c+1), c) for c in range(self.NFB // 2)]) for tb in range(self.NTB)]
        else: outer = [(s, [(self.acc(2*s, fb), self.acc(2*s+1, fb), fb) for fb in range(self.NFB)]) for s in range(self.NTB // 2)]
        A(f's_mul_i32 s{G_TB}, s{G_T1}, {len(outer[0][1]) * 1024}'); A(f's_add_u32 s{G_TB}, s{G_TB}, s{G_OB}')
        A(f's_mul_i32 s{G_T2}, s{G_T0}, {len(outer)}'); A(f's_mul_i32 s{G_T2}, s{G_T2}, s{G_OTS}'); A(f's_add_u32 s{G_T2}, s{G_T2}, s{G_TB}')
        for o, inner in outer:
            if o: A(f's_add_u32 s{G_T2}, s{G_T2}, s{G_OTS}')
            if silu:
                regs = [d + r for (d0, d1, _) in inner for d in (d0, d1) for r in range(4)]
                m = len(regs); P, U = V_T, V_T + 8
                assert m <= 16 and all(regs[i + 1] == regs[i] + 1 for i in range(0, m, 2))
                for p in range(m // 2): A(f'v_cvt_pk_bf16_f32 v{P+p}, v{regs[2*p]}, v{regs[2*p+1]}')
                for p in range(m // 2):
                    A(f'v_lshlrev_b32 v{regs[2*p]}, 16, v{P+p}'); A(f'v_and_b32 v{regs[2*p+1]}, 0xffff0000, v{P+p}')
                for p in range(m // 2): A(f'v_pk_mul_f32 v[{U+2*p}:{U+2*p+1}], v[{regs[2*p]}:{regs[2*p+1]}], s[{G_C0}:{G_C0+1}]')
                for p in range(m): A(f'v_exp_f32 v{U+p}, v{U+p}')
                for p in range(m // 2): A(f'v_pk_add_f32 v[{U+2*p}:{U+2*p+1}], v[{U+2*p}:{U+2*p+1}], 1.0 op_sel_hi:[1,0]')
                for p in range(m): A(f'v_rcp_f32 v{U+p}, v{U+p}')
                for p in range(m // 2): A(f'v_pk_mul_f32 v[{regs[2*p]}:{regs[2*p+1]}], v[{regs[2*p]}:{regs[2*p+1]}], v[{U+2*p}:{U+2*p+1}]')
            for d0, d1, c in inner:
                T = V_T + 24 + 4 * (n % 4); n += 1
                A(f'v_cvt_pk_bf16_f32 v{T}, v{d0}, v{d0+1}'); A(f'v_cvt_pk_bf16_f32 v{T+1}, v{d0+2}, v{d0+3}')
                A(f'v_cvt_pk_bf16_f32 v{T+2}, v{d1}, v{d1+1}'); A(f'v_cvt_pk_bf16_f32 v{T+3}, v{d1+2}, v{d1+3}')
                A(f'buffer_store_dwordx4 v[{T}:{T+3}], v{V_L16}, s[{S_WS}:{S_WS+3}], s{G_T2} offen offset:{c*1024} sc1')
                if zero:
                    for r in list(range(d0, d0 + 4)) + list(range(d1, d1 + 4)): A(f'v_mov_b32 v{r}, 0')

    def epi_final(self):
        A = self.A
        NTB, NC = self.NTB, self.NFB // 2
        self.wave_ids()
        A(f's_mul_i32 s{G_T2}, s{G_T0}, {NTB * 16}'); A(f's_add_u32 s{G_M0}, s{G_M0}, s{G_T2}')
        A(f's_mul_i32 s{G_T2}, s{G_T1}, {self.NFB * 16}'); A(f's_add_u32 s{G_N0}, s{G_N0}, s{G_T2}')
        A(f's_lshl_b32 s{G_T2}, s{G_M0}, 11'); A(f's_lshl_b32 s{G_TB}, s{G_N0}, 5'); A(f's_add_u32 s{G_OB}, s{G_T2}, s{G_TB}')
        A(f's_add_u32 s{G_OB}, s{G_OB}, {hx(BB)}')
        A(f's_lshl_b32 s{G_T2}, s{G_M0}, 2'); A(f's_add_u32 s{G_T2}, s{G_T2}, {hx(GG)}')
        VG, VO, VB = 4, 12, 20
        A('v_and_b32 v2, 15, v1'); A('v_lshlrev_b32 v3, 2, v2')
        for tb in range(NTB):
            A(f'buffer_load_dword v{VG+tb}, v3, s[{S_WS}:{S_WS+3}], s{G_T2} offen offset:{64*tb} sc1')
        def bload(tb):
            for c in range(NC):
                r = VB + 4 * ((tb % 4) * NC + c)
                A(f'buffer_load_dwordx4 v[{r}:{r+3}], v{V_L16}, s[{S_WS}:{S_WS+3}], s{G_OB} offen offset:{1024*c} sc1')
            A(f's_add_u32 s{G_OB}, s{G_OB}, 32768')
        ahead = min(3, NTB)
        for tb in range(ahead): bload(tb)
        A('v_lshlrev_b32 v12, 11, v2'); A('v_bfe_u32 v3, v1, 4, 1'); A('v_lshl_add_u32 v12, v3, 5, v12')
        A('v_lshrrev_b32 v3, 5, v1'); A('v_lshl_add_u32 v12, v3, 4, v12')
        A(f's_lshl_b32 s{G_T2}, s{G_M0}, 11'); A(f's_lshl_b32 s{G_TB}, s{G_N0}, 1'); A(f's_add_u32 s{G_T2}, s{G_T2}, s{G_TB}')
        T = 52
        out = [('g',)] * NTB + sum(([('b', tb)] * NC for tb in range(ahead)), [])
        for tb in range(NTB):
            last = max(i for i, k in enumerate(out) if k == ('b', tb))
            A(f's_waitcnt vmcnt({len(out) - 1 - last})')
            A(f'v_sub_f32 v14, 1.0, v{VG+tb}'); A('v_cvt_pk_bf16_f32 v14, v14, v14'); A('v_and_b32 v14, 0xffff0000, v14')
            A(f'v_mov_b32 v16, v{VG+tb}')
            for c in range(NC):
                d = self.acc(tb, 2 * c); r = VB + 4 * ((tb % 4) * NC + c)
                for p in range(4):
                    a0 = d + 2 * p
                    A(f'v_cvt_pk_bf16_f32 v{T}, v{a0}, v{a0+1}')
                    A(f'v_lshlrev_b32 v{a0}, 16, v{T}'); A(f'v_and_b32 v{a0+1}, 0xffff0000, v{T}')
                    A(f'v_pk_mul_f32 v[{a0}:{a0+1}], v[{a0}:{a0+1}], v[16:17] op_sel_hi:[1,0]')
                    A(f'v_lshlrev_b32 v{T+2}, 16, v{r+p}'); A(f'v_and_b32 v{T+3}, 0xffff0000, v{r+p}')
                    A(f'v_pk_mul_f32 v[{T+2}:{T+3}], v[{T+2}:{T+3}], v[14:15] op_sel_hi:[1,0]')
                    A(f'v_cvt_pk_bf16_f32 v{T}, v{a0}, v{a0+1}'); A(f'v_cvt_pk_bf16_f32 v{T+1}, v{T+2}, v{T+3}')
                    A(f'v_lshlrev_b32 v{a0}, 16, v{T}'); A(f'v_and_b32 v{a0+1}, 0xffff0000, v{T}')
                    A(f'v_lshlrev_b32 v{T+2}, 16, v{T+1}'); A(f'v_and_b32 v{T+3}, 0xffff0000, v{T+1}')
                    A(f'v_pk_add_f32 v[{a0}:{a0+1}], v[{a0}:{a0+1}], v[{T+2}:{T+3}]')
                    A(f'v_cvt_pk_bf16_f32 v{T+4+p}, v{a0}, v{a0+1}')
                A('s_nop 1')
                A(f'v_permlane16_swap_b32 v{T+4}, v{T+6}'); A(f'v_permlane16_swap_b32 v{T+5}, v{T+7}')
                A(f'buffer_store_dwordx4 v[{T+4}:{T+7}], v12, s[{S_OD}:{S_OD+3}], s{G_T2} offen offset:{64*c}')
                out.append(('s', tb))
                A('s_nop 0')
            if tb + ahead < NTB:
                bload(tb + ahead); out += [('b', tb + ahead)] * NC
            A(f's_add_u32 s{G_T2}, s{G_T2}, 32768')
```

```python
KX   = 0x0000000
VX   = 0x1000000
QX   = 0x2000000
HH   = 0x3000000
OO   = 0x4000000
BB   = 0x5000000
KM   = 0x5400000
VM   = 0x5800000
GG   = 0x5C00000
FLG  = 0x5C10000
RA   = 0x5D00000
RB2  = 0x5D40000
RC   = 0x5E00000
RB1  = 0x6000000
STAMP= 0x6800000
WS_BYTES = 0x10000000
SENT = 0xFFFFFFFF
OOB  = 0x80000000
DBG_TICKET = 0
DBG_INIT   = 8
DBG_VOTE   = 9
DBG_MODE   = 10
DBG_NEXT   = 11
DBG_QUEUE  = 20
DBG_ERR    = 31
CNT  = FLG + 0x4000
C_GATE = 0
C_KV, C_Q, C_H, C_B = 8, 16, 24, 32
C_O      = 40
KA_X, KA_MEM0, KA_WQ, KA_WK, KA_WV, KA_WO, KA_SEG, KA_BX, KA_W1, KA_W2, KA_GW, KA_OUT, KA_DBG, KA_WS = [8*i for i in range(14)]
```

```python
from asmlib import *
from layout import *

S_WS, S_T0, S_T1, S_T2, S_DBG = 4, 8, 12, 16, 20
S_X, S_J, S_H, S_B, S_WAVE, S_STEP, S_TO = 24, 25, 26, 27, 28, 29, 31
S_A, S_B2, S_C, S_B1, S_B1BASE, S_KV, S_KM, S_TMP = 32, 33, 34, 35, 36, 37, 38, 39
S_TMP2, S_TMP3 = 40, 41
S_CLR = 42
S_PQ, S_PK, S_PV, S_PM, S_PO = 46, 48, 50, 52, 54
S_TCH, S_TO0, S_TST, S_TRS = 56, 60, 61, 62
S_U = 64
S_ST = 72
NSTEP = 64
TIMEOUT = 1 << 20

L_QK  = 0
QK_WS, QK_RS = 2176, 272
L_V   = 8704
L_S3  = 12800
S3_WS, S3_RS = 1152, 144
L_MISC= 17408
L_KV  = 18432
L_ST1 = 32768
L_ST3 = 131072

class Rec:
    def __init__(self, A, stamps=False, plain=True, abort='L_abort', opts=(), tag=''):
        self.A, self.stamps, self.abort, self.tag = A, stamps, abort, tag
        self.pl = '' if plain else ' sc1'
        self.opts = set(opts)
        self.kvwait = 'nokvwait' not in self.opts
        self.absstep, self.late, self.cold = 40, (), []
        self.done, self.done_y2 = f'L_rec_done{tag}', f'L_rec_done_y2{tag}'

    def stamp(self, k):
        if self.stamps != 'abs': return
        A = self.A
        A(f's_memrealtime s[{S_ST+2}:{S_ST+3}]'); A('s_waitcnt lgkmcnt(0)')
        A(f's_cmp_eq_u32 s{S_STEP}, {self.absstep + (1 if k in self.late else 0)}')
        A(f's_cselect_b32 s{S_ST+4+k}, s{S_ST+2}, s{S_ST+4+k}')
    def pst(self, k):
        if self.stamps != 'pro': return
        self.A(f's_memrealtime s[{S_ST}:{S_ST+1}]'); self.A('s_waitcnt lgkmcnt(0)'); self.A(f's_mov_b32 s{S_ST+4+k}, s{S_ST}')
    def stamp0(self):
        self.pst(5)
        if self.stamps not in ('abs', 'light'): return
        A = self.A
        for k in range(4, 17): A(f's_mov_b32 s{S_ST+k}, 0')
        A(f's_memrealtime s[{S_ST+2}:{S_ST+3}]'); A(f's_memtime s[{S_ST}:{S_ST+1}]'); A('s_waitcnt lgkmcnt(0)')
        if self.stamps == 'light': A(f's_mov_b32 s{S_ST+4}, s{S_ST+2}'); A(f's_mov_b32 s{S_ST+6}, s98')
    def count_retry(self):
        if self.stamps: self.A(f's_add_u32 s{S_ST+16}, s{S_ST+16}, 1')

    def timeout(self, again):
        A = self.A
        self.count_retry()
        A(f's_add_u32 s{S_TO}, s{S_TO}, 1')
        A(f's_cmp_lt_u32 s{S_TO}, {TIMEOUT}')
        A(f's_cbranch_scc1 {again}')
        A(f's_branch {self.abort}')

    def gather(self, loads, t, name):
        A = self.A
        wait, retry = A.label(name + 'wait'), A.label(name + 'retry')
        for ins, _ in loads: A(ins)
        A(f'{wait}:')
        A('s_waitcnt vmcnt(0)')
        regs = [r for _, r in loads]
        A(f'v_max3_u32 v{t}, v{regs[0]}, v{regs[1]}, v{regs[2]}')
        i = 3
        while i + 1 < len(regs):
            A(f'v_max3_u32 v{t}, v{t}, v{regs[i]}, v{regs[i+1]}'); i += 2
        if i < len(regs): A(f'v_max_u32 v{t}, v{t}, v{regs[i]}')
        A(f'v_cmp_eq_u32 vcc, -1, v{t}')
        A(f's_cbranch_vccnz {retry}')
        def cold():
            A(f'{retry}:')
            for ins, _ in loads: A(ins)
            self.timeout(wait)
        self.cold.append(cold)

    def gather_staged(self, loads, work, name):
        A = self.A
        n = len(loads)
        for ins, _ in loads: A(ins)
        for u, (_, r) in enumerate(loads):
            retry, back = A.label(name + 'retry'), A.label(name + 'back')
            A(f's_waitcnt vmcnt({n - 1 - u})')
            A(f'v_cmp_eq_u32 vcc, -1, v{r}')
            A(f's_cbranch_vccnz {retry}')
            A(f'{back}:')
            work(u)
            def cold(u=u, r=r, retry=retry, back=back):
                A(f'{retry}:')
                for ins, _ in loads[u:]: A(ins)
                A(f's_waitcnt vmcnt({n - 1 - u})')
                A(f'v_cmp_eq_u32 vcc, -1, v{r}')
                A(f's_cbranch_vccz {back}')
                self.timeout(retry)
            self.cold.append(cold)

    def poll_ge(self, srd_, soff, target, sleep=4):
        A = self.A
        loop, ok = A.label('poll'), A.label('pollok')
        A('v_mov_b32 v8, 0')
        A(f's_mov_b32 s{S_TMP3}, {hx(target)}')
        A(f'{loop}:')
        A(f'buffer_load_dword v6, v8, s[{srd_}:{srd_+3}], s{soff} offen sc1')
        A('s_waitcnt vmcnt(0)')
        A(f'v_cmp_le_u32 vcc, s{S_TMP3}, v6')
        A(f's_cbranch_vccnz {ok}')
        A(f's_sleep {sleep}')
        self.timeout(loop)
        A(f'{ok}:')

    def flush_cold(self):
        for f in self.cold: f()
        self.cold = []

    def ring(self, dst, base, step_add, xstride, sstride):
        A = self.A
        A(f's_add_u32 s{S_TMP}, s{S_STEP}, {step_add & 3}'); A(f's_and_b32 s{S_TMP}, s{S_TMP}, 3')
        A(f's_mul_i32 s{S_TMP}, s{S_TMP}, {hx(sstride)}')
        A(f's_mul_i32 s{dst}, s{S_X}, {hx(xstride)}'); A(f's_add_u32 s{dst}, s{dst}, s{S_TMP}'); A(f's_add_u32 s{dst}, s{dst}, {hx(base)}')
    def ringA(self, dst, add): self.ring(dst, RA, add, 65536, 16384)
    def ringB2(self, dst, add): self.ring(dst, RB2, add, 65536, 16384)
    def ringC(self, dst, add): self.ring(dst, RC, add, 262144, 65536)
    def ringB1(self, dst, add):
        A = self.A
        A(f's_add_u32 s{S_TMP}, s{S_STEP}, {add & 3}'); A(f's_and_b32 s{S_TMP}, s{S_TMP}, 3'); A(f's_lshl_b32 s{S_TMP}, s{S_TMP}, 18')
        A(f's_add_u32 s{dst}, s{S_B1BASE}, s{S_TMP}')

    def mask_oob(self, reg, cmp):
        A = self.A
        A(cmp); A(f'v_mov_b32 v6, {hx(OOB)}'); A('s_nop 0'); A(f'v_cndmask_b32 v{reg}, v6, v{reg}, vcc')

    def load_weights(self, stage, between=None):
        A = self.A
        nm = 3 if stage == 1 else 1
        bufsz = nm * 4096
        rowb = 8192 if stage == 1 else 2048
        ustep = 256 if stage == 1 else 64
        VG, VL, VT = 4, 5, 12
        SL = S_TMP2
        A(f'v_lshrrev_b32 v{VG}, 2, v1'); A(f'v_mul_u32_u24 v{VG}, {rowb}, v{VG}')
        A(f'v_and_b32 v6, 3, v1'); A(f'v_lshl_add_u32 v{VG}, v6, 4, v{VG}')
        if stage == 1:
            A(f's_lshl_b32 s{S_TMP}, s{S_H}, 8'); A(f's_lshl_b32 s{S_TMP3}, s{S_B}, 6'); A(f's_add_u32 s{S_TMP}, s{S_TMP}, s{S_TMP3}')
            A(f's_lshl_b32 s{S_TMP3}, s{S_WAVE}, 19'); A(f's_add_u32 s{S_TMP}, s{S_TMP}, s{S_TMP3}')
            A(f's_mul_i32 s{SL}, s{S_WAVE}, 24576'); A(f's_add_u32 s{SL}, s{SL}, {L_ST1}')
        else:
            A(f's_lshl_b32 s{S_TMP}, s{S_X}, 21')
            A(f's_sub_u32 s{S_TMP3}, s{S_WAVE}, 4'); A(f's_lshl_b32 s{SL}, s{S_TMP3}, 13'); A(f's_add_u32 s{SL}, s{SL}, {L_ST3}')
            A(f's_lshl_b32 s{S_TMP3}, s{S_TMP3}, 19'); A(f's_add_u32 s{S_TMP}, s{S_TMP}, s{S_TMP3}')
            A(f's_lshl_b32 s{S_TMP3}, s{S_J}, 6'); A(f's_add_u32 s{S_TMP}, s{S_TMP}, s{S_TMP3}')
        A(f'v_add_u32 v{VG}, s{S_TMP}, v{VG}')
        A('v_lshrrev_b32 v6, 1, v3'); A('v_and_b32 v7, 1, v3')
        if stage == 1: A('v_lshlrev_b32 v6, 4, v6'); A('v_lshl_add_u32 v6, v7, 2, v6')
        else: A('v_lshlrev_b32 v6, 3, v6'); A('v_lshl_add_u32 v6, v7, 4, v6')
        A('v_lshrrev_b32 v7, 2, v2'); A('v_add_u32 v6, v6, v7'); A('v_lshlrev_b32 v6, 6, v6')
        A('v_and_b32 v7, 3, v2'); A('v_lshl_add_u32 v6, v7, 3, v6'); A(f'v_add_u32 v{VL}, s{SL}, v6')
        srds = [S_T0, S_T1, S_T2]
        def issue(u):
            for m in range(nm):
                for n in range(4):
                    A(f's_add_u32 m0, s{SL}, {(u & 1) * bufsz + m * 4096 + n * 1024}')
                    A(f's_mov_b32 s{S_TMP}, {hx((ustep * u + 16 * n) * rowb)}')
                    A(f'buffer_load_dwordx4 v{VG}, s[{srds[m]}:{srds[m]+3}], s{S_TMP} offen lds')
        def dest(f, d):
            if stage == 3 or f < 8: return ('a', 8 * f + d)
            return ('v', 64 + 8 * (f - 8) + d)
        phs = 512 if stage == 1 else 256
        issue(0); issue(1)
        for u in range(4):
            if between: between(u)
            A(f's_waitcnt vmcnt({4 * nm if u < 3 and not (between and u == 3) else 0})')
            for m in range(nm):
                k = 0
                for tau in range(2):
                    for dh in range(2):
                        for ph in range(2):
                            off = (u & 1) * bufsz + m * 4096 + dh * 2048 + ph * phs + tau * 32
                            A(f'ds_read_b64_tr_b16 v[{VT+2*k}:{VT+2*k+1}], v{VL} offset:{off}'); k += 1
                A('s_waitcnt lgkmcnt(0)')
                if m == nm - 1 and u + 2 < 4: issue(u + 2)
                k = 0
                for tau in range(2):
                    f = u * 2 * nm + 2 * m + tau
                    for dh in range(2):
                        for ph in range(2):
                            for z in range(2):
                                kind, n = dest(f, 4 * dh + ph + 2 * z)
                                if kind == 'a': A(f'v_accvgpr_write_b32 a{n}, v{VT+2*k+z}')
                                else: A(f'v_mov_b32 v{n}, v{VT+2*k+z}')
                            k += 1
        self.pst(2)

    def wfrag(self, stage, f):
        if stage == 3 or f < 8: return a(8 * f, 8)
        return v(64 + 8 * (f - 8), 8)

    def idx_reg(self, r):
        A = self.A
        A(f'v_and_b32 v{r}, 8, v1'); A(f'v_cmp_eq_u32 vcc, 0, v{r}')
        A(f'v_mov_b32 v{r}, 0xeeee'); A(f'v_mov_b32 v6, 0x4444'); A(f'v_cndmask_b32 v{r}, v{r}, v6, vcc')

    def combine(self, da, db):
        A = self.A
        for r in range(4): A(f'v_permlane32_swap_b32 v{da+r}, v{db+r}')
        for r in (0, 2): A(f'v_pk_add_f32 v[{da+r}:{da+r+1}], v[{da+r}:{da+r+1}], v[{db+r}:{db+r+1}]')
    def pk(self, d, x, y): self.A(f'v_pk_add_f32 v[{d}:{d+1}], v[{x}:{x+1}], v[{y}:{y+1}]')

    def s1(self):
        A = self.A
        VIDX, VG, VWQ, VWV = 4, 5, 7, 8
        VA, VD = 12, 28
        srd(A, S_T0, S_PQ, 1024 * 8192); srd(A, S_T1, S_PK, 1024 * 8192); srd(A, S_T2, S_PV, 1024 * 8192)
        self.load_weights(1)
        self.idx_reg(VIDX)
        srd(A, S_T0, S_PM, 8 * 2048)
        A('v_and_b32 v6, 7, v1'); A('v_lshlrev_b32 v6, 11, v6'); A('v_lshrrev_b32 v9, 3, v1'); A('v_lshl_add_u32 v6, v9, 4, v6')
        A(f's_lshl_b32 s{S_TMP}, s{S_WAVE}, 7'); A(f'v_add_u32 v6, s{S_TMP}, v6')
        for u in range(4):
            A(f'buffer_load_dwordx4 v[{VA+4*u}:{VA+4*u+3}], v6, s[{S_T0}:{S_T0+3}], 0 offen offset:{512*u}')
        A(f's_lshl_b32 s{S_TMP}, s{S_WAVE}, 10'); A(f'v_lshl_add_u32 v{VG}, v1, 4, s{S_TMP}')
        A('v_and_b32 v6, 1, v3'); A(f'v_mul_u32_u24 v{VWQ}, {4*QK_RS}, v6')
        A('v_lshrrev_b32 v6, 5, v1'); A(f'v_lshl_add_u32 v6, v6, 4, v2'); A(f'v_lshl_add_u32 v{VWQ}, v6, 2, v{VWQ}')
        A(f's_mul_i32 s{S_TMP}, s{S_WAVE}, {QK_WS}'); A(f'v_add_u32 v{VWQ}, s{S_TMP}, v{VWQ}')
        A(f's_lshl_b32 s{S_TMP}, s{S_WAVE}, 10'); A(f's_add_u32 s{S_TMP}, s{S_TMP}, {L_V}'); A(f'v_lshl_add_u32 v{VWV}, v1, 4, s{S_TMP}')
        for r in range(24): A(f'v_mov_b32 v{VD+r}, 0')
        A('s_barrier')
        A('s_barrier')
        A('s_waitcnt vmcnt(0)')
        self.stamp0()
        def sm(t, u):
            A(f'v_smfmac_f32_16x16x64_bf16 v[{VD+4*t}:{VD+4*t+3}], v[{VA+4*u}:{VA+4*u+3}], {self.wfrag(1, 6*u+t)}, v{VIDX}')
        def work(u):
            if u == 3: self.stamp(1)
            sm(0, u)
            if u == 3: A('s_barrier')
            sm(1, u); sm(2, u); sm(3, u)
        loop, rest = A.label('s1loop'), A.label('s1rest')
        for u in range(4): work(u)
        A(f's_branch {rest}')
        A(f'{loop}:')
        A('s_barrier')
        self.stamp(0)
        for r in range(24): A(f'v_mov_b32 v{VD+r}, 0')
        self.gather_staged([(f'buffer_load_dwordx4 v[{VA+4*u}:{VA+4*u+3}], v{VG}, s[{S_WS}:{S_WS+3}], s{S_U+u} offen sc1', VA + 4*u + 3)
                            for u in range(4)], work, 'b2')
        A(f'{rest}:')
        sm(4, 0)
        self.combine(VD, VD + 4)
        A(f'ds_write2_b32 v{VWQ}, v{VD}, v{VD+1} offset0:0 offset1:68')
        A(f'ds_write2_b32 v{VWQ}, v{VD+2}, v{VD+3} offset0:136 offset1:204')
        self.combine(VD + 8, VD + 12)
        A(f'ds_write2_b32 v{VWQ}, v{VD+8}, v{VD+9} offset0:32 offset1:100')
        A(f'ds_write2_b32 v{VWQ}, v{VD+10}, v{VD+11} offset0:168 offset1:236')
        sm(5, 0)
        A('s_waitcnt lgkmcnt(0)')
        A('s_barrier')
        for u in range(1, 4): sm(4, u); sm(5, u)
        self.stamp(2)
        A('s_nop 7')
        self.combine(VD + 16, VD + 20)
        A(f'ds_write_b128 v{VWV}, v[{VD+16}:{VD+19}]')
        A('s_waitcnt lgkmcnt(0)')
        A('s_barrier')
        A(f's_cmp_eq_u32 s{S_STEP}, {NSTEP-1}'); A(f's_cbranch_scc1 {self.done}')
        A(f's_add_u32 s{S_STEP}, s{S_STEP}, 1')
        self.ringB2(S_U, 0)
        for u in range(1, 4): A(f's_add_u32 s{S_U+u}, s{S_U}, {4096*u}')
        A('s_barrier')
        A('s_barrier')
        self.stamp(3)
        A(f's_branch {loop}')
        self.flush_cold()

    def s3_setup(self, between=None):
        A = self.A
        srd(A, S_T0, S_PO, 4096 * 2048)
        self.load_weights(3, between)
        self.idx_reg(4)
        A(f's_sub_u32 s{S_TMP2}, s{S_WAVE}, 4'); A(f's_lshl_b32 s{S_TMP}, s{S_TMP2}, 12'); A(f'v_lshl_add_u32 v5, v1, 4, s{S_TMP}')
        A('v_and_b32 v6, 1, v3'); A(f'v_mul_u32_u24 v7, {4*S3_RS}, v6')
        A('v_lshrrev_b32 v6, 5, v1'); A(f'v_lshl_add_u32 v6, v6, 4, v2'); A(f'v_lshl_add_u32 v7, v6, 2, v7')
        A(f's_mul_i32 s{S_TMP}, s{S_TMP2}, {S3_WS}'); A(f's_add_u32 s{S_TMP}, s{S_TMP}, {L_S3}'); A(f'v_add_u32 v7, s{S_TMP}, v7')

    def s3_body(self, st):
        A = self.A
        VA, VD = 12, 28
        for r in range(8): A(f'v_mov_b32 v{VD+r}, 0')
        def work(u):
            if u == 3: self.stamp(st)
            for t in range(2):
                A(f'v_smfmac_f32_16x16x64_bf16 v[{VD+4*t}:{VD+4*t+3}], v[{VA+4*u}:{VA+4*u+3}], {self.wfrag(3, 2*u+t)}, v4')
        self.gather_staged([(f'buffer_load_dwordx4 v[{VA+4*u}:{VA+4*u+3}], v5, s[{S_WS}:{S_WS+3}], s{S_A} offen offset:{1024*u} sc1', VA + 4*u + 3)
                            for u in range(4)], work, 'a')
        A('s_nop 7')
        self.combine(VD, VD + 4)
        A(f'ds_write2_b32 v7, v{VD}, v{VD+1} offset0:0 offset1:36')
        A(f'ds_write2_b32 v7, v{VD+2}, v{VD+3} offset0:72 offset1:108')
        A('s_waitcnt lgkmcnt(0)')
        A('s_barrier')
        self.stamp(st + 1)

    def w4(self):
        A, pk = self.A, self.pk
        VRQ, VCX, VCM, VG1, VG2, VG3, VGM, VRV, VAO, VLN = 36, 37, 38, 39, 40, 41, 42, 43, 44, 45
        KX0, KX1, VX0, VX1 = 48, 52, 56, 60
        P, RR, D0, D1, DM, G = 64, 96, 100, 104, 108, 112
        VM0, VM1, ONE, BX, BM = 128, 130, 132, 136, 140
        O0, O1, SU, T = 144, 148, 152, 156
        SC, SJ = 46, 48
        self.s3_setup()
        A('v_and_b32 v6, 7, v2'); A(f'v_mul_u32_u24 v{VRQ}, {QK_RS}, v6')
        A('v_lshrrev_b32 v6, 3, v2'); A(f'v_lshl_add_u32 v{VRQ}, v6, 7, v{VRQ}'); A(f'v_lshl_add_u32 v{VRQ}, v3, 4, v{VRQ}')
        A(f's_lshl_b32 s{S_TMP}, s{S_J}, 11'); A(f'v_lshl_add_u32 v{VCX}, v1, 4, s{S_TMP}')
        for k, r in ((1, VG1), (2, VG2), (3, VG3)):
            A(f's_xor_b32 s{S_TMP2}, s{S_J}, {k}'); A(f's_lshl_b32 s{S_TMP2}, s{S_TMP2}, 11'); A(f'v_lshl_add_u32 v{r}, v1, 4, s{S_TMP2}')
        A('v_and_b32 v6, 1, v3'); A('v_lshlrev_b32 v6, 3, v6'); A('v_add_u32 v6, v6, v2')
        A(f's_add_u32 s{S_TMP2}, s{S_TMP}, 1024'); A(f'v_lshl_add_u32 v{VCM}, v6, 4, s{S_TMP2}')
        A('v_and_b32 v6, 0x28, v1'); self.mask_oob(VCM, 'v_cmp_eq_u32 vcc, 0x20, v6')
        A(f'v_lshlrev_b32 v6, 4, v2'); A(f'v_lshl_add_u32 v6, v3, 2, v6'); A(f'v_add_u32 v{VGM}, 1024, v6'); A(f'v_add_u32 v{VRV}, {L_V}, v6')
        A(f'v_lshlrev_b32 v6, 7, v3'); A(f'v_lshl_add_u32 v6, v2, 4, v6'); A(f's_lshl_b32 s{S_TMP}, s{S_J}, 9'); A(f'v_add_u32 v{VAO}, s{S_TMP}, v6')
        self.mask_oob(VAO, 'v_cmp_gt_u32 vcc, 8, v2')
        A(f'v_lshlrev_b32 v{VLN}, 4, v1')
        for r in range(4): A(f'v_mov_b32 v{ONE+r}, 0x3f803f80')
        A(f'v_mov_b32 v{VM0+1}, 0'); A(f'v_mov_b32 v{VM1+1}, 0'); A(f'v_mov_b32 v{BM+1}, 0')
        A(f's_mov_b32 s{SC}, 0x3e0293ee')
        for k in range(4): A(f's_xor_b32 s{SJ+k}, s{S_J}, {k}'); A(f's_lshl_b32 s{SJ+k}, s{SJ+k}, 11')
        A('s_barrier')
        A('s_barrier')
        self.stamp0()
        loop = A.label('w4loop')
        A(f'{loop}:')
        A(f's_and_b32 s{S_TMP}, s{S_STEP}, 1'); A(f's_lshl_b32 s{S_TMP}, s{S_TMP}, 12'); A(f'v_add_u32 v6, s{S_TMP}, v{VLN}')
        for k, r in enumerate((KX0, KX1, VX0, VX1)): A(f'ds_read_b128 v[{r}:{r+3}], v6 offset:{L_KV + 1024*k}')
        self.ringC(S_C, 0); self.ringA(S_A, 0)
        for k in range(4): A(f's_add_u32 s{S_U+k}, s{SJ+k}, s{S_C}')
        A('s_waitcnt lgkmcnt(0)')
        A('s_barrier')
        A(f's_cmp_eq_u32 s{S_STEP}, {NSTEP-1}'); A(f's_cbranch_scc1 {self.done_y2}_y')
        A('s_barrier')
        self.stamp(0)
        for w in range(4):
            A(f'ds_read_b128 v[{P+8*w}:{P+8*w+3}], v{VRQ} offset:{L_QK + w*QK_WS}')
            A(f'ds_read_b128 v[{P+8*w+4}:{P+8*w+7}], v{VRQ} offset:{L_QK + w*QK_WS + 64}')
        A('s_waitcnt lgkmcnt(4)')
        for r in range(0, 8, 2): pk(P + r, P + r, P + 8 + r)
        A('s_waitcnt lgkmcnt(2)')
        for r in range(0, 8, 2): pk(P + r, P + r, P + 16 + r)
        A('s_waitcnt lgkmcnt(0)')
        for r in range(0, 8, 2): pk(P + r, P + r, P + 24 + r)
        for r in range(4): A(f'v_cvt_pk_bf16_f32 v{RR+r}, v{P+2*r}, v{P+2*r+1}')
        A('s_nop 1')
        A(f'v_mfma_f32_16x16x32_bf16 v[{D1}:{D1+3}], v[{KX1}:{KX1+3}], v[{RR}:{RR+3}], 0')
        A(f'v_mfma_f32_16x16x32_bf16 v[{D0}:{D0+3}], v[{KX0}:{KX0+3}], v[{RR}:{RR+3}], 0')
        A(f'v_mfma_f32_16x16x32_bf16 v[{DM}:{DM+3}], v[{RR}:{RR+3}], v[{RR}:{RR+3}], 0')
        A('s_nop 6')
        for r in range(4): A(f'v_mov_b32_dpp v{D0+r}, v{D1+r} row_shr:8 row_mask:0xf bank_mask:0xc')
        A(f'buffer_store_dwordx4 v[{D0}:{D0+3}], v{VCX}, s[{S_WS}:{S_WS+3}], s{S_C} offen{self.pl}')
        A(f'buffer_store_dwordx4 v[{DM}:{DM+3}], v{VCM}, s[{S_WS}:{S_WS+3}], s{S_C} offen{self.pl}')
        self.stamp(1)
        A('s_barrier')
        for w in range(4):
            for t in range(2):
                A(f'ds_read2st64_b32 v[{P+4*w+2*t}:{P+4*w+2*t+1}], v{VRV} offset0:{4*w+2*t} offset1:{4*w+2*t+1}')
        A('s_waitcnt lgkmcnt(0)')
        pk(P, P, P + 4); pk(P + 2, P + 2, P + 6); pk(P + 8, P + 8, P + 12); pk(P + 10, P + 10, P + 14)
        pk(P, P, P + 8); pk(P + 2, P + 2, P + 10)
        A(f'v_cvt_pk_bf16_f32 v{VM0}, v{P}, v{P+1}'); A(f'v_cvt_pk_bf16_f32 v{VM1}, v{P+2}, v{P+3}')
        cl = [(f'buffer_load_dwordx4 v[{G+4*k}:{G+4*k+3}], v{r}, s[{S_WS}:{S_WS+3}], s{S_C} offen sc1', G + 4*k + 3) for k, r in enumerate((VG1, VG2, VG3))]
        cl += [(f'buffer_load_dword v{G+12+k}, v{VGM}, s[{S_WS}:{S_WS+3}], s{S_U+k} offen sc1', G + 12 + k) for k in range(4)]
        self.gather(cl, 9, 'c')
        self.stamp(2)
        SM = G + 12
        pk(G + 4, G + 4, G + 8); pk(G + 6, G + 6, G + 10); pk(D0, D0, G); pk(D0 + 2, D0 + 2, G + 2)
        pk(SM, SM, G + 14)
        pk(D0, D0, G + 4); pk(D0 + 2, D0 + 2, G + 6)
        A(f'v_add_f32 v{SM}, v{SM}, v{SM+1}')
        A(f'v_max3_f32 v{T}, v{D0}, v{D0+1}, v{D0+2}')
        A(f'v_max3_f32 v{T}, v{T}, v{D0+3}, v{SM}')
        A('s_nop 1')
        A(f'v_max_f32_dpp v{T+1}, v{T}, v{T} row_ror:8 row_mask:0xf bank_mask:0xf')
        A(f'v_max_f32_dpp v{T}, v{T}, v{T} row_ror:8 row_mask:0xf bank_mask:0xf')
        A('s_nop 1')
        A(f'v_permlane16_swap_b32 v{T}, v{T+1}')
        A(f'v_max_f32 v{T+2}, v{T}, v{T+1}'); A(f'v_max_f32 v{T+1}, v{T}, v{T+1}')
        A('s_nop 1')
        A(f'v_permlane32_swap_b32 v{T+2}, v{T+1}')
        A(f'v_max_f32 v{T}, v{T+2}, v{T+1}')
        A(f'v_mul_f32 v{T}, s{SC}, v{T}')
        A(f'v_fma_f32 v{SM}, v{SM}, s{SC}, -v{T}')
        for r in range(4): A(f'v_fma_f32 v{D0+r}, v{D0+r}, s{SC}, -v{T}')
        A(f'v_exp_f32 v{SM}, v{SM}')
        for r in range(4): A(f'v_exp_f32 v{D0+r}, v{D0+r}')
        A(f'v_mov_b32_dpp v{T+1}, v{SM} row_shl:8 row_mask:0xf bank_mask:0xf')
        A(f'v_cvt_pk_bf16_f32 v{BX}, v{D0}, v{D0+1}')
        A(f'v_cvt_pk_bf16_f32 v{BX+1}, v{D0+2}, v{D0+3}')
        A(f'v_cvt_pk_bf16_f32 v{BM}, v{SM}, v{T+1}')
        A(f'v_mov_b32_dpp v{BX+2}, v{BX} row_shl:8 row_mask:0xf bank_mask:0xf')
        A(f'v_mov_b32_dpp v{BX+3}, v{BX+1} row_shl:8 row_mask:0xf bank_mask:0xf')
        A(f'v_mfma_f32_16x16x16_bf16 v[{SU}:{SU+3}], v[{ONE}:{ONE+1}], v[{BM}:{BM+1}], 0')
        A(f'v_mfma_f32_16x16x16_bf16 v[{O0}:{O0+3}], v[{VM0}:{VM0+1}], v[{BM}:{BM+1}], 0')
        A(f'v_mfma_f32_16x16x16_bf16 v[{O1}:{O1+3}], v[{VM1}:{VM1+1}], v[{BM}:{BM+1}], 0')
        A(f'v_mfma_f32_16x16x32_bf16 v[{SU}:{SU+3}], v[{ONE}:{ONE+3}], v[{BX}:{BX+3}], v[{SU}:{SU+3}]')
        A(f'v_mfma_f32_16x16x32_bf16 v[{O0}:{O0+3}], v[{VX0}:{VX0+3}], v[{BX}:{BX+3}], v[{O0}:{O0+3}]')
        A(f'v_mfma_f32_16x16x32_bf16 v[{O1}:{O1+3}], v[{VX1}:{VX1+3}], v[{BX}:{BX+3}], v[{O1}:{O1+3}]')
        A('s_nop 5')
        A(f'v_rcp_f32 v{T}, v{SU}')
        A('s_nop 0')
        for o in (O0, O1):
            for r in (0, 2): A(f'v_pk_mul_f32 v[{o+r}:{o+r+1}], v[{o+r}:{o+r+1}], v[{T}:{T+1}] op_sel_hi:[1,0]')
        for r in range(4): A(f'v_cvt_pk_bf16_f32 v{RR+r}, v{O0+2*r}, v{O0+2*r+1}')
        A(f'buffer_store_dwordx4 v[{RR}:{RR+3}], v{VAO}, s[{S_WS}:{S_WS+3}], s{S_A} offen{self.pl}')
        A('s_barrier')
        self.stamp(3)
        self.s3_body(4)
        A(f's_add_u32 s{S_STEP}, s{S_STEP}, 1')
        A('s_barrier')
        self.stamp(6)
        A(f's_branch {loop}')
        self.flush_cold()

    def kv_prefetch(self, add, VK, VV):
        A = self.A
        A(f's_add_u32 s{S_TMP}, s{S_STEP}, {add}'); A(f's_min_u32 s{S_KV}, s{S_TMP}, {NSTEP-1}'); A(f's_lshl_b32 s{S_KV}, s{S_KV}, 18')
        A(f's_and_b32 s{S_TMP}, s{S_TMP}, 1'); A(f's_lshl_b32 s{S_TMP}, s{S_TMP}, 12')
        for k, r in enumerate((VK, VK + 1, VV, VV + 1)):
            A(f's_add_u32 m0, s{S_TMP}, {L_KV + 1024*k}'); A('s_nop 0')
            A(f'buffer_load_dwordx4 v{r}, s[{S_WS}:{S_WS+3}], s{S_KV} offen sc1 lds')

    def progress_addr(self, reg, base):
        A = self.A
        A(f's_lshl_b32 s{S_TMP}, s{S_X}, 5'); A(f's_add_u32 s{S_TMP}, s{S_TMP}, s{S_J}'); A(f's_lshl_b32 s{S_TMP}, s{S_TMP}, 7')
        A(f's_add_u32 s{S_TMP}, s{S_TMP}, {hx(base)}'); A(f'v_mov_b32 v{reg}, s{S_TMP}')
        self.mask_oob(reg, 'v_cmp_eq_u32 vcc, 0, v1')

    def w5(self):
        A, pk = self.A, self.pk
        VK, VV, VRK, VRV, VKM, VVM, VPR = 36, 38, 40, 41, 42, 43, 44
        P, PV, OK_, OV = 48, 80, 96, 100
        self.s3_setup()
        A(f's_lshl_b32 s{S_TMP2}, s{S_H}, 12'); A(f's_lshl_b32 s{S_TMP}, s{S_B}, 10'); A(f's_add_u32 s{S_TMP2}, s{S_TMP2}, s{S_TMP}')
        A(f'v_lshl_add_u32 v{VK}, v1, 4, s{S_TMP2}'); A(f'v_add_u32 v{VK+1}, 131072, v{VK}')
        A(f's_lshl_b32 s{S_TMP2}, s{S_TMP2}, 1'); A(f's_add_u32 s{S_TMP2}, s{S_TMP2}, {hx(VX)}')
        A(f'v_lshl_add_u32 v{VV}, v1, 4, s{S_TMP2}'); A(f'v_add_u32 v{VV+1}, 1024, v{VV}')
        assert KX == 0
        A('v_and_b32 v6, 7, v1'); A(f'v_mul_u32_u24 v{VRK}, {QK_RS}, v6'); A(f'v_add_u32 v{VRK}, 128, v{VRK}')
        A('v_bfe_u32 v6, v1, 3, 2'); A(f'v_lshl_add_u32 v{VRK}, v6, 4, v{VRK}')
        A(f's_lshl_b32 s{S_TMP2}, s{S_H}, 11'); A(f's_lshl_b32 s{S_TMP}, s{S_B}, 9'); A(f's_add_u32 s{S_TMP2}, s{S_TMP2}, s{S_TMP}')
        A(f's_add_u32 s{S_TMP}, s{S_TMP2}, {hx(KM)}'); A(f'v_lshl_add_u32 v{VKM}, v1, 4, s{S_TMP}')
        self.mask_oob(VKM, 'v_cmp_gt_u32 vcc, 32, v1')
        A(f'v_lshlrev_b32 v{VRV}, 4, v1'); A(f'v_add_u32 v{VRV}, {L_V}, v{VRV}')
        A(f's_add_u32 s{S_TMP}, s{S_TMP2}, {hx(VM)}'); A(f'v_lshl_add_u32 v{VVM}, v1, 3, s{S_TMP}')
        self.progress_addr(VPR, FLG)
        if self.kvwait:
            A(f's_mov_b32 s{S_TMP2}, {4*DBG_INIT}'); self.poll_ge(S_DBG, S_TMP2, 256)
            A(f's_mov_b32 s{S_TMP2}, {hx(CNT + 128*C_KV)}'); self.poll_ge(S_WS, S_TMP2, 64)
        self.kv_prefetch(0, VK, VV); self.kv_prefetch(1, VK, VV)
        A('s_waitcnt vmcnt(0)')
        A('s_barrier')
        A('s_barrier')
        self.stamp0()
        def prepare():
            for w in range(4):
                A(f'ds_read_b128 v[{P+8*w}:{P+8*w+3}], v{VRK} offset:{L_QK + w*QK_WS}')
                A(f'ds_read_b128 v[{P+8*w+4}:{P+8*w+7}], v{VRK} offset:{L_QK + w*QK_WS + 64}')
            for w in range(4): A(f'ds_read_b128 v[{PV+4*w}:{PV+4*w+3}], v{VRV} offset:{1024*w}')
            A(f's_lshl_b32 s{S_KM}, s{S_STEP}, 16')
            A('s_waitcnt lgkmcnt(0)')
            for q in (8, 16, 24):
                for r in range(0, 8, 2): pk(P + r, P + r, P + q + r)
            for r in range(4): A(f'v_cvt_pk_bf16_f32 v{OK_+r}, v{P+2*r}, v{P+2*r+1}')
            for q in (4, 8, 12): pk(PV, PV, PV + q); pk(PV + 2, PV + 2, PV + q + 2)
            A(f'v_cvt_pk_bf16_f32 v{OV}, v{PV}, v{PV+1}'); A(f'v_cvt_pk_bf16_f32 v{OV+1}, v{PV+2}, v{PV+3}')
        def publish():
            A(f'buffer_store_dwordx4 v[{OK_}:{OK_+3}], v{VKM}, s[{S_WS}:{S_WS+3}], s{S_KM} offen sc1')
            A(f'buffer_store_dwordx2 v[{OV}:{OV+1}], v{VVM}, s[{S_WS}:{S_WS+3}], s{S_KM} offen sc1')
        def progress(val):
            A(f'v_mov_b32 v6, {val}'); A(f'buffer_store_dword v6, v{VPR}, s[{S_WS}:{S_WS+3}], 0 offen sc1')
        loop, last, first = A.label('w5loop'), A.label('w5last'), A.label('w5first')
        A('s_barrier')
        A(f's_branch {first}')
        A(f'{loop}:')
        A('s_barrier')
        A(f's_sub_u32 s{S_TMP}, s{S_STEP}, 1')
        progress(f's{S_TMP}')
        publish()
        if self.kvwait:
            skip = A.label('kvok')
            A(f's_add_u32 s{S_TMP2}, s{S_STEP}, 1'); A(f's_and_b32 s{S_TMP}, s{S_TMP2}, 0x47')
            A(f's_cmp_lg_u32 s{S_TMP}, 0'); A(f's_cbranch_scc1 {skip}')
            A(f's_lshl_b32 s{S_TMP2}, s{S_TMP2}, 4'); A(f's_add_u32 s{S_TMP2}, s{S_TMP2}, {hx(CNT + 128*C_KV)}')
            self.poll_ge(S_WS, S_TMP2, 64)
            A(f'{skip}:')
        self.kv_prefetch(1, VK, VV)
        A(f'{first}:')
        self.ringA(S_A, 0)
        A('s_barrier')
        A('s_barrier')
        prepare()
        A(f's_cmp_eq_u32 s{S_STEP}, {NSTEP-1}'); A(f's_cbranch_scc1 {last}')
        A('s_barrier')
        self.stamp(3)
        self.s3_body(4)
        A(f's_add_u32 s{S_STEP}, s{S_STEP}, 1')
        A('s_barrier')
        self.stamp(6)
        A(f's_branch {loop}')
        A(f'{last}:')
        publish()
        A('s_waitcnt vmcnt(0)')
        progress(NSTEP)
        A(f's_branch {self.done}')
        self.flush_cold()

    def b1_offsets(self, regs):
        A = self.A
        A(f's_lshr_b32 s{S_TMP2}, s{S_J}, 3'); A(f's_lshl_b32 s{S_TMP2}, s{S_TMP2}, 14')
        A(f's_and_b32 s{S_TMP}, s{S_J}, 7'); A(f's_lshl_b32 s{S_TMP}, s{S_TMP}, 10'); A(f's_add_u32 s{S_TMP2}, s{S_TMP2}, s{S_TMP}')
        for k, r in enumerate(regs):
            A(f's_xor_b32 s{S_TMP}, s{S_X}, {k}'); A(f's_lshl_b32 s{S_TMP}, s{S_TMP}, 16'); A(f's_add_u32 s{S_TMP}, s{S_TMP}, s{S_TMP2}')
            A(f'v_lshl_add_u32 v{r}, v1, 4, s{S_TMP}')

    def w6(self):
        A, pk = self.A, self.pk
        VR, VB, VM2 = 36, 37, 41
        P, G, O = 48, 64, 76
        self.s3_setup()
        A('v_and_b32 v6, 7, v1'); A(f'v_mul_u32_u24 v{VR}, {S3_RS}, v6'); A('v_lshrrev_b32 v8, 3, v1'); A(f'v_lshl_add_u32 v{VR}, v8, 4, v{VR}')
        self.b1_offsets([VB, VB + 1, VB + 2, VB + 3])
        A(f'v_lshlrev_b32 v{VM2}, 4, v6'); A(f'v_lshrrev_b32 v9, 1, v8'); A(f'v_lshl_add_u32 v{VM2}, v9, 7, v{VM2}')
        A(f'v_and_b32 v9, 1, v8'); A(f'v_lshl_add_u32 v{VM2}, v9, 3, v{VM2}')
        A(f's_lshl_b32 s{S_TMP}, s{S_J}, 9'); A(f'v_add_u32 v{VM2}, s{S_TMP}, v{VM2}')
        A('s_barrier')
        A('s_barrier')
        A(f'v_mov_b32 v6, {L_MISC+8}'); A('ds_read_b32 v6, v6'); A('s_waitcnt lgkmcnt(0)')
        A(f'v_readfirstlane_b32 s{S_TMP}, v6'); A('s_nop 3'); A(f's_add_u32 s{S_B1BASE}, s{S_B1BASE}, s{S_TMP}')
        self.stamp0()
        loop = A.label('w6loop')
        A(f'{loop}:')
        self.ringA(S_A, 0); self.ringB2(S_B2, 1); self.ringB1(S_B1, 0)
        A('s_barrier')
        A('s_barrier')
        A('s_barrier')
        A(f's_cmp_eq_u32 s{S_STEP}, {NSTEP-1}'); A(f's_cbranch_scc1 {self.done}')
        A('s_barrier')
        self.stamp(3)
        self.s3_body(4)
        for w in range(4): A(f'ds_read_b128 v[{P+4*w}:{P+4*w+3}], v{VR} offset:{L_S3 + w*S3_WS}')
        A('s_waitcnt lgkmcnt(2)')
        pk(P, P, P + 4); pk(P + 2, P + 2, P + 6)
        A('s_waitcnt lgkmcnt(0)')
        pk(P + 8, P + 8, P + 12); pk(P + 10, P + 10, P + 14)
        pk(P, P, P + 8); pk(P + 2, P + 2, P + 10)
        A(f'buffer_store_dwordx4 v[{P}:{P+3}], v{VB}, s[{S_WS}:{S_WS+3}], s{S_B1} offen sc1')
        self.stamp(6)
        A('s_waitcnt vmcnt(0)')
        self.gather([(f'buffer_load_dwordx4 v[{G+4*k}:{G+4*k+3}], v{VB+1+k}, s[{S_WS}:{S_WS+3}], s{S_B1} offen sc1', G + 4*k + 3) for k in range(3)], 9, 'b1')
        self.stamp(7)
        pk(G + 4, G + 4, G + 8); pk(G + 6, G + 6, G + 10); pk(P, P, G); pk(P + 2, P + 2, G + 2)
        pk(P, P, G + 4); pk(P + 2, P + 2, G + 6)
        A(f'v_cvt_pk_bf16_f32 v{O}, v{P}, v{P+1}'); A(f'v_cvt_pk_bf16_f32 v{O+1}, v{P+2}, v{P+3}')
        A(f'buffer_store_dwordx2 v[{O}:{O+1}], v{VM2}, s[{S_WS}:{S_WS+3}], s{S_B2} offen{self.pl}')
        A(f's_add_u32 s{S_STEP}, s{S_STEP}, 1')
        A('s_barrier')
        self.stamp(8)
        A(f's_branch {loop}')
        self.flush_cold()

    def w7(self):
        A = self.A
        VS, VA_, VC0, VC1, VB, VPR = 36, 40, 41, 42, 43, 44
        PM = 68
        for r in range(4): A(f'v_mov_b32 v{VS+r}, -1')
        A(f's_lshl_b32 s{S_TMP}, s{S_J}, 9'); A(f'v_lshl_add_u32 v{VA_}, v1, 4, s{S_TMP}')
        self.mask_oob(VA_, 'v_cmp_gt_u32 vcc, 32, v1')
        A(f's_lshl_b32 s{S_TMP}, s{S_J}, 11'); A(f'v_lshl_add_u32 v{VC0}, v1, 4, s{S_TMP}'); A(f'v_add_u32 v{VC1}, 1024, v{VC0}')
        self.b1_offsets([VB])
        def clr(sreg, vreg, pol, off=0):
            A(f'buffer_store_dwordx4 v[{VS}:{VS+3}], v{vreg}, s[{S_WS}:{S_WS+3}], s{sreg} offen{pol}')
        def dbg_add(val, word):
            A(f'v_mov_b32 v9, {val}'); A(f'v_mov_b32 v8, {4*word}')
            self.mask_oob(8, 'v_cmp_eq_u32 vcc, 0, v1')
            A(f'buffer_atomic_add v9, v8, s[{S_DBG}:{S_DBG+3}], 0 offen')
        self.pst(3)
        A(f's_mov_b32 s{PM}, -1'); A(f's_mov_b32 s{PM+1}, -1')
        def probe(u):
            if u == 3:
                A(f's_cmp_lt_u32 s{PM+1}, s{PM}'); A(f's_cselect_b32 s{S_TMP}, 1, 0'); A(f's_or_b32 s{S_TMP}, s{S_TMP}, 0x10000')
                dbg_add(f's{S_TMP}', DBG_VOTE)
                self.pst(4)
                return
            for par in range(2):
                A(f's_lshl_b32 s{S_TMP}, s{S_X}, 5'); A(f's_add_u32 s{S_TMP}, s{S_TMP}, s{S_J}')
                A(f's_and_b32 s{S_TMP3}, s{S_TMP}, 63'); A(f's_lshl_b32 s{S_TMP3}, s{S_TMP3}, 7')
                A(f's_lshr_b32 s{S_TMP}, s{S_TMP}, 6'); A(f's_lshl_b32 s{S_TMP}, s{S_TMP}, 14'); A(f's_add_u32 s{S_TMP}, s{S_TMP}, s{S_TMP3}')
                A(f's_add_u32 s{S_TMP}, s{S_TMP}, s{S_B1BASE}'); A(f's_add_u32 s{S_TMP}, s{S_TMP}, {0x100000 + u * 0x8000 + par * 8192}')
                A(f's_add_u32 s{PM+2}, s{S_WS}, s{S_TMP}'); A(f's_addc_u32 s{PM+3}, s{S_WS+1}, 0')
                A(f's_memtime s[{S_CLR}:{S_CLR+1}]'); A('s_waitcnt lgkmcnt(0)')
                A(f's_load_dword s{S_TMP}, s[{PM+2}:{PM+3}], 0'); A('s_waitcnt lgkmcnt(0)')
                A(f's_memtime s[{S_CLR+2}:{S_CLR+3}]'); A('s_waitcnt lgkmcnt(0)')
                A(f's_sub_u32 s{S_CLR+2}, s{S_CLR+2}, s{S_CLR}'); A(f's_min_u32 s{PM+par}, s{PM+par}, s{S_CLR+2}')
        self.s3_setup(probe)
        A('s_barrier')
        A(f's_mov_b32 s{S_TMP2}, {4*DBG_INIT}'); self.poll_ge(S_DBG, S_TMP2, 256, sleep=1)
        A(f's_mov_b32 s{S_TMP2}, {4*DBG_VOTE}'); self.poll_ge(S_DBG, S_TMP2, 128 << 16, sleep=1)
        A(f'v_readfirstlane_b32 s{S_TMP2}, v6'); A('s_nop 3')
        A(f's_and_b32 s{S_TMP2}, s{S_TMP2}, 0xffff'); A(f's_cmp_gt_u32 s{S_TMP2}, 64'); A(f's_cselect_b32 s{S_TMP}, 8192, 0')
        if 'par0' in self.opts: A(f's_mov_b32 s{S_TMP}, 0')
        if 'par1' in self.opts: A(f's_mov_b32 s{S_TMP}, 8192')
        A(f'v_mov_b32 v6, s{S_TMP}'); A(f'v_mov_b32 v8, {L_MISC+8}'); A('ds_write_b32 v8, v6'); A('s_waitcnt lgkmcnt(0)')
        A('s_barrier')
        A(f's_add_u32 s{S_B1BASE}, s{S_B1BASE}, s{S_TMP}')
        self.stamp0()
        loop = A.label('w7loop')
        A(f'{loop}:')
        self.ringA(S_A, 0); self.ringA(S_CLR, -1); self.ringC(S_CLR + 1, -1); self.ringB2(S_CLR + 2, -1); self.ringB1(S_CLR + 3, -2)
        A('s_barrier')
        clr(S_CLR + 3, VB, ' sc1'); clr(S_CLR, VA_, self.pl); clr(S_CLR + 1, VC0, self.pl); clr(S_CLR + 1, VC1, self.pl); clr(S_CLR + 2, VA_, self.pl)
        A('s_barrier')
        A('s_barrier')
        A(f's_cmp_eq_u32 s{S_STEP}, {NSTEP-1}'); A(f's_cbranch_scc1 {self.done}')
        A('s_barrier')
        self.stamp(3)
        self.s3_body(4)
        A(f's_add_u32 s{S_STEP}, s{S_STEP}, 1')
        A('s_barrier')
        self.stamp(6)
        A(f's_branch {loop}')
        self.flush_cold()

    def emit(self):
        A = self.A
        A(f's_lshl_b32 s{S_H}, s{S_X}, 3'); A(f's_lshr_b32 s{S_TMP}, s{S_J}, 2'); A(f's_add_u32 s{S_H}, s{S_H}, s{S_TMP}')
        A(f's_and_b32 s{S_B}, s{S_J}, 3')
        A(f's_mov_b32 s{S_STEP}, 0'); A(f's_mov_b32 s{S_TO}, 0')
        A(f's_add_u32 s{S_TMP}, s{S_WS}, {hx(RB1 + 0x1fffff)}'); A(f's_and_b32 s{S_TMP}, s{S_TMP}, 0xffe00000'); A(f's_sub_u32 s{S_B1BASE}, s{S_TMP}, s{S_WS}')
        self.pst(1)
        if self.stamps == 'pro': A(f's_mov_b32 s{S_ST+4}, s98')
        A('v_and_b32 v1, 63, v0'); A('v_and_b32 v2, 15, v1'); A('v_lshrrev_b32 v3, 4, v1')
        labs = {w: A.label(f'w{w}') for w in (4, 5, 6, 7)}
        for w in labs: A(f's_cmp_eq_u32 s{S_WAVE}, {w}'); A(f's_cbranch_scc1 {labs[w]}')
        self.late = (3,); self.s1()
        for w, f, late in ((4, self.w4, (6,)), (5, self.w5, (6,)), (6, self.w6, (8,)), (7, self.w7, (6,))):
            A(f'{labs[w]}:'); self.late = late; f()
        A(f'{self.done_y2}_y:')
        A('s_barrier')
        A('s_barrier')
        A(f'{self.done}:')
        if self.stamps:
            if self.stamps == 'light':
                A(f's_memtime s[{S_ST+2}:{S_ST+3}]'); A('s_waitcnt lgkmcnt(0)'); A(f's_sub_u32 s{S_ST+15}, s{S_ST+2}, s{S_ST}')
                A(f's_memrealtime s[{S_ST}:{S_ST+1}]'); A('s_waitcnt lgkmcnt(0)'); A(f's_mov_b32 s{S_ST+5}, s{S_ST}')
            A(f's_lshl_b32 s{S_TMP}, s{S_X}, 5'); A(f's_add_u32 s{S_TMP}, s{S_TMP}, s{S_J}'); A(f's_lshl_b32 s{S_TMP}, s{S_TMP}, 3')
            A(f's_add_u32 s{S_TMP}, s{S_TMP}, s{S_WAVE}'); A(f's_lshl_b32 s{S_TMP}, s{S_TMP}, 6'); A(f's_add_u32 s{S_TMP}, s{S_TMP}, {hx(STAMP)}')
            A(f'v_mov_b32 v8, s{S_TMP}')
            A(f's_mov_b32 s{S_ST+3}, s{S_B1BASE}')
            for k in range(14):
                A(f'v_mov_b32 v6, s{S_ST+3+k}')
                A(f'buffer_store_dword v6, v8, s[{S_WS}:{S_WS+3}], 0 offen offset:{4*k}')
```

```python
from layout import *
MAXT = 24
MODE = 'v4'
KINDS = {1: ('K', 'big'), 2: ('V', 'big'), 3: ('Q', 'big'), 4: ('H', 'big'), 5: ('F', 'big'), 6: ('O', 'big'), 7: ('A', None), 8: ('G', None),
         9: ('K', 'half'), 10: ('V', 'half'), 11: ('O', 'q128'), 12: ('O', 'q64'), 13: ('F', 'half'), 14: ('O', 'half'), 15: ('F', 'q128')}
KID = {v: k for k, v in KINDS.items()}
TM = {'big': 256, 'half': 256, 'q128': 128, 'q64': 64}
TN = {'big': 256, 'half': 128, 'q128': 128, 'q64': 64}
def w(idx, target): return (idx << 24) | target
def sig(idx, n): return (idx << 8) | n
def ocnt(seg):
    return (C_O + seg // 8, 256) if seg < 40 else (C_O + seg - seg % 2, 64)
def task(name, shape, m0, n0, extra=0):
    waits, s = [], 0
    area = TM[shape] * TN[shape] // 4096 if shape else 0
    if name in 'KV': s = sig(C_KV + m0 // 256, area // 8)
    elif name == 'Q': s = sig(C_Q + m0 // 256, 1)
    elif name == 'H': s = sig(C_H + m0 // 256, 1)
    elif name == 'F': waits = [w(C_H + m0 // 256, 14), w(C_GATE, 8)]; s = sig(C_B + m0 // 256, area)
    elif name == 'G': s = sig(C_GATE, 1)
    elif name == 'A':
        waits = [w(C_Q + m0 // 8, 16)]; s = sig(ocnt(m0)[0], 8 * extra)
    elif name == 'O':
        cs = sorted(set(ocnt(s_) for s_ in range(m0 // 32, (m0 + TM[shape]) // 32)))
        assert len(cs) <= 2
        waits = ([w(*c) for c in cs] + [0])[:2] + [w(C_B + m0 // 256, 64)]
    waits += [0] * (3 - len(waits))
    return (KID[(name, shape)], m0, n0, extra, *waits, s)


_cache = {}
def both():
    if MODE not in _cache: _cache[MODE] = globals()['sched_' + MODE]()
    return _cache[MODE]
def table(): return both()[0]
def dyn(): return both()[1]

DUR = {('K', 'half'): 18, ('V', 'half'): 18, ('K', 'big'): 23, ('V', 'big'): 23.5, ('Q', 'big'): 23, ('H', 'big'): 25,
       ('F', 'big'): 72, ('F', 'half'): 38, ('F', 'q128'): 22, ('O', 'big'): 82, ('O', 'half'): 42, ('O', 'q128'): 24.5, ('O', 'q64'): 12.4,
       ('G', None): 4, ('A', 1): 4.6, ('A', 2): 9, ('A', 4): 17.8}
P = dict(rec0=24.0, dt=2.33, T=185.0)
def dur(t):
    name, shape = KINDS[t[0]]
    return DUR[(name, t[3] if name == 'A' else shape)]

class Sim:
    def __init__(self):
        self.ev = {}
        self.memo = {}
    def when(self, idx, target):
        acc = 0
        for tm, n in self.ev.get(idx, []):
            acc += n
            if acc >= target: return tm
        return None
    def post(self, idx, tm, n):
        l = self.ev.setdefault(idx, []); l.append((tm, n)); l.sort()
        if C_KV <= idx < C_KV + 8: self.memo = {}
    def rec(self, step):
        if step in self.memo: return self.memo[step]
        if step == 0:
            k = self.when(C_KV, 64); r = None if k is None else max(P['rec0'], k + 1)
        else:
            r = self.rec(step - 1)
            if r is not None:
                r += P['dt']
                if (step + 1) % 8 == 0 and step + 1 < 64:
                    k = self.when(C_KV + (step + 1) // 8, 64); r = None if k is None else max(r, k + 0.5)
        self.memo[step] = r
        return r
    def ready(self, t):
        r = 0.0
        name = KINDS[t[0]][0]
        for i, wd in enumerate(t[4:7]):
            if wd == 0: continue
            ok = self.when(wd >> 24, wd & 0xffffff)
            if ok is None: return None
            if name == 'O' and i == 2: ok -= dur(t) - 3.5
            r = max(r, ok)
        if name == 'A':
            k = self.rec(min(t[1] + 1, 63))
            if k is None: return None
            r = max(r, k + (2.0 if t[1] < 63 else 1.5))
        return r


def simulate(static, dynq, plan, verbose=False, jitter=0.0):
    import heapq, random
    rnd = random.Random(1)
    S = Sim()
    L = [[] for _ in range(256)]
    free = [(P['start'] + 0.04 * j, 32 * x + j) for x in range(4) for j in range(32)]
    heapq.heapify(free)
    pools = [sorted(q, key=lambda it: it[0]) for q in static]
    dq = [list(q) for q in dynq]
    isdyn = set(); log = []; end = 0; added = False
    def run(t, wk, tm, r):
        nonlocal end
        st = max(r, tm); e = st + dur(t) * (1 + jitter * rnd.uniform(-1, 1))
        if KINDS[t[0]][0] == 'A' and t[3] == 1 and r > tm + 2: e -= 2.0
        log.append((st, e, wk, t)); end = max(end, e)
        if t[7]: S.post(t[7] >> 8, e, t[7] & 0xff)
        heapq.heappush(free, (e + 0.3, wk))
    while any(pools) or any(dq):
        if not added and S.rec(63) is not None:
            for h in range(128, 256): heapq.heappush(free, (S.rec(63) + 1.5, h)); isdyn.add(h)
            added = True
        tm, wk = heapq.heappop(free)
        if tm > 1000: raise RuntimeError('schedule stuck')
        x = (wk >> 5) & 3
        if wk not in isdyn:
            pool = pools[x]
            quota = plan['ndyn'](tm)
            want_dyn = dq[x] and sum(1 for w_ in isdyn if w_ < 128 and w_ >> 5 == x) < quota
            if not pool or want_dyn: isdyn.add(wk)
            else:
                cands = [(ls, S.ready(t), i) for i, (ls, t) in enumerate(pool)]
                cands = [c for c in cands if c[1] is not None]
                now = [c for c in cands if c[1] <= tm + 0.5]
                if not now:
                    heapq.heappush(free, (tm + 0.5, wk)); continue
                ls, r, i = min(now)
                t = pool.pop(i)[1]; L[wk].append(t); run(t, wk, tm, r); continue
        if not dq[x]: continue
        r = S.ready(dq[x][0])
        if r is None:
            heapq.heappush(free, (tm + 0.5, wk)); continue
        run(dq[x].pop(0), wk, tm + 1.0, r)
    if verbose:
        print('rec end %.1f end %.1f busy per worker %.1f' % (S.rec(63), end, sum(e - s_ for s_, e, wk, t in log if wk < 128) / 128))
    return L, log, end

def build_v4(plan):
    T, r0, dt = P['T'], P['rec0'], P['dt']
    Q = [[] for _ in range(4)]; D = [[] for _ in range(4)]
    oshape = {}
    for (a_, b_, shape) in plan['o']:
        for m0 in range(a_, b_, TM[shape]): oshape[m0] = shape
    def o_ls(row):
        m0 = max(m for m in oshape if m <= row)
        return T - DUR[('O', oshape[m0])]
    for x in range(4):
        nm = 'K' if x < 2 else 'V'
        q = Q[x]
        def add(ls, ts): q.extend((ls + 1e-4 * i, t) for i, t in enumerate(ts))
        for k, (shape, ms) in enumerate(plan['first']):
            add(-100 + k, [task(nm, shape, m0, 2048 * (x & 1) + n) for n in range(0, 2048, TN[shape]) for m0 in ms])
        for ms in plan['kvm']:
            add(r0 + 8 * dt * ms[0] - 6 - DUR[(nm, 'big')] - plan['kvlead'], [task(nm, 'big', 256 * m, 2048 * (x & 1) + 256 * n) for n in range(8) for m in ms])
        for ms in plan['qm']:
            add(min(o_ls(256 * ms[0]) - 20, r0 + 8 * dt * ms[0] + plan['qlag']) - DUR[('Q', 'big')], [task('Q', 'big', 256 * m, 1024 * x + 256 * n) for n in range(4) for m in ms])
        fs = plan['fshape']
        for im, ms in enumerate(plan['hm']):
            add(T - 4 - DUR[('F', fs)] - DUR[('H', 'big')] - plan['hlead'] * (len(plan['hm']) - im), [task('H', 'big', 256 * m, 256 * n) for n in range(x, 14, 4) for m in ms])
        for m in range(8):
            add(T - 4 - DUR[('F', fs)] - plan['flead'] * (8 - m), [task('F', fs, 256 * m, 256 * x + n) for n in range(0, 256, TN[fs])])
        add(20, [task('G', None, 256 * m, 0, 8) for m in (2 * x, 2 * x + 1)])
        d = []
        for s in range(64):
            rdy = r0 + dt * (s + 1) + 2
            if s < plan['att_dyn']:
                if s % 4 == x: add(o_ls(32 * s) - 19 - 0.3 * (8 - s % 8), [task('A', None, s, 0, 4)])
            else:
                nh = plan['nh'](s)
                if nh == 1: d.append((rdy - 3, task('A', None, s, 8 * x, 1)))
                elif nh == 2 and (x >> 1) == (s & 1) ^ ((s >> 1) & 1): d.append((rdy - 3, task('A', None, s, 16 * (x & 1), 2)))
                elif nh == 4 and s % 4 == x: d.append((rdy - 3, task('A', None, s, 0, 4)))
        for m0, shape in oshape.items():
            ts = [task('O', shape, m0, 256 * x + n) for n in range(0, 256, TN[shape])]
            if m0 < plan['o_dyn']: add(T - DUR[('O', shape)] - plan['olead'] * (2048 - m0) / 256, ts)
            else:
                rdy = r0 + dt * ((m0 + TM[shape]) // 32) + 2 + 4
                d += [(rdy, t) for t in ts]
        d.sort(key=lambda it: it[0])
        D[x] = [t for _, t in d]
    return Q, D

P.update(start=4.5, rec0=27.0, dt=2.37, T=190.0)
DUR.update({('K', 'half'): 17.5, ('V', 'half'): 17.5, ('K', 'big'): 24, ('V', 'big'): 24, ('Q', 'big'): 24.5, ('H', 'big'): 27, ('F', 'big'): 73,
            ('O', 'big'): 80, ('O', 'half'): 43, ('O', 'q128'): 25.5, ('O', 'q64'): 12.8, ('G', None): 16, ('A', 1): 4.6, ('A', 2): 9, ('A', 4): 17.8})
P['T'] = 165
PLAN = dict(o=[(0, 512, 'big'), (512, 1024, 'half'), (1024, 1664, 'q128'), (1664, 2048, 'q64')], att_dyn=32, o_dyn=1536,
            nh=lambda s: 1, first=[('half', (0, 256))], kvm=[(2, 3), (4, 5), (6, 7)], qm=[(0, 1), (2, 3), (4, 5), (6, 7)],
            hm=[(0, 1, 2, 3), (4, 5, 6, 7)], fshape='big', kvlead=20, qlag=0, hlead=12, flead=0, olead=0,
            ndyn=lambda t: 0 if t < 100 else 2 if t < 130 else 6)
def sched_v4(verbose=False):
    Q, D = build_v4(PLAN)
    return simulate(Q, D, PLAN, verbose)[0], D

def show(log, wks):
    for wk in wks:
        print(wk, ' '.join(f"{KINDS[t[0]][0]}{KINDS[t[0]][1] or ''}({t[1]},{t[2]})@{s:.0f}" for s, e, w_, t in sorted(log) if w_ == wk))
if __name__ == '__main__':
    Q, D = build_v4(PLAN)
    L, log, end = simulate(Q, D, PLAN, verbose=True)
    show(log, range(0, 32, 1)); show(log, (128, 200))
    print(max(len(l) for l in L), sum(len(l) for l in L), [len(d) for d in D])
```

```python
import sys
from asmlib import *
from layout import *
import gemm16 as G
from gemm16 import *
import att
import rec
import schedule as SC

NAME = 'gated_mix__memory_aug_recurrent_mem_tr__dense_activation_silu__prompt_kernel'
S_X, S_J = 24, 25
S_TAB, S_TASK, S_CODE = 70, 72, 80
S_IDX, S_TO, S_INIT, S_DYN, S_TAB0 = 82, 83, 87, 58, 68
S_PTR, S_NEXT, S_NOB, S_NOTS = 50, 88, 30, 31
L_MISC = rec.L_MISC
TIMEOUT = 1 << 20

def load_ptr(A, dst, ka):
    A(f's_load_dwordx2 s[{dst}:{dst+1}], s[0:1], {ka}')

def executor(A, opts):
    stamps = 'stamps' in opts
    def tstamp(k, clk=None):
        if not stamps: return
        f = A.label('nost')
        A(f's_cmp_lg_u32 s{S_WAVE}, 0'); A(f's_cbranch_scc1 {f}')
        A('s_memrealtime s[84:85]'); A('s_memtime s[96:97]'); A('s_waitcnt lgkmcnt(0)')
        A(f's_lshl_b32 s86, s{S_J}, 5'); A(f's_add_u32 s86, s86, s{S_IDX}'); A('s_lshl_b32 s86, s86, 5'); A(f's_add_u32 s86, s86, {hx(STAMP + 0x20000)}')
        A('v_mov_b32 v2, s86'); A('v_mov_b32 v3, s84')
        A(f'buffer_store_dword v3, v2, s[{S_WS}:{S_WS+3}], 0 offen offset:{4*k}')
        if clk is not None:
            A('v_mov_b32 v3, s96')
            A(f'buffer_store_dword v3, v2, s[{S_WS}:{S_WS+3}], 0 offen offset:{4*clk}')
        A(f'{f}:')
    A('v_and_b32 v1, 63, v0')
    load_ptr(A, S_CODE, KA_OUT); A('s_waitcnt lgkmcnt(0)'); srd(A, S_OD, S_CODE, 2048 * 2048)
    A(f's_getpc_b64 s[{S_TAB}:{S_TAB+1}]')
    A('L_pc:')
    A(f's_add_u32 s{S_TAB}, s{S_TAB}, L_table-L_pc'); A(f's_addc_u32 s{S_TAB+1}, s{S_TAB+1}, 0')
    A(f's_mov_b32 s{S_TAB0}, s{S_TAB}'); A(f's_mov_b32 s{S_TAB0+1}, s{S_TAB+1}'); A(f's_mov_b32 s{S_DYN}, 0')
    A(f's_lshl_b32 s{G_T0}, s{S_J}, 2')
    A(f's_load_dword s{G_T0}, s[{S_TAB}:{S_TAB+1}], s{G_T0}'); A('s_waitcnt lgkmcnt(0)')
    A(f's_add_u32 s{S_TAB}, s{S_TAB}, s{G_T0}'); A(f's_addc_u32 s{S_TAB+1}, s{S_TAB+1}, 0')
    A(f's_mov_b32 s{S_IDX}, 0'); A(f's_mov_b32 s{S_INIT}, 0')
    for i, ka in enumerate((KA_WK, KA_WQ, KA_WV, KA_W1)): load_ptr(A, S_PTR + 2 * i, ka)
    A('L_task:')
    A(f's_lshl_b32 s{G_T0}, s{S_IDX}, 5')
    A(f's_load_dwordx8 s[{S_TASK}:{S_TASK+7}], s[{S_TAB}:{S_TAB+1}], s{G_T0}')
    A(f's_add_u32 s{G_T0}, s{G_T0}, 32')
    A(f's_load_dwordx8 s[{S_NEXT}:{S_NEXT+7}], s[{S_TAB}:{S_TAB+1}], s{G_T0}')
    A('s_waitcnt lgkmcnt(0)')
    A(f's_cmp_eq_u32 s{S_TASK}, 0'); A('s_cbranch_scc1 L_dyn')
    A('L_run:')
    tstamp(0)
    go, go2 = A.label('go'), A.label('go2')
    A(f's_cmp_lg_u32 s{S_WAVE}, 0'); A(f's_cbranch_scc1 {go}')
    def ensure_init():
        ok, lp = A.label('inok'), A.label('inlp')
        A(f's_cmp_lg_u32 s{S_INIT}, 0'); A(f's_cbranch_scc1 {ok}')
        A(f'v_mov_b32 v2, {4*DBG_INIT}'); A(f's_mov_b32 s{S_TO}, 0'); A(f's_mov_b32 s{S_INIT}, 256')
        A(f'{lp}:')
        A(f'buffer_load_dword v3, v2, s[{S_DBG}:{S_DBG+3}], 0 offen sc1')
        A('s_waitcnt vmcnt(0)')
        A(f'v_cmp_le_u32 vcc, s{S_INIT}, v3')
        A(f's_cbranch_vccnz {ok}')
        A('s_sleep 4')
        A(f's_add_u32 s{S_TO}, s{S_TO}, 1'); A(f's_cmp_lt_u32 s{S_TO}, {TIMEOUT}'); A(f's_cbranch_scc1 {lp}')
        A('s_branch L_abort')
        A(f'{ok}:')
    def poll(words, done):
        A(f's_mov_b32 s{G_T0}, s{words[0]}')
        for r in words[1:]: A(f's_or_b32 s{G_T0}, s{G_T0}, s{r}')
        A(f's_cmp_eq_u32 s{G_T0}, 0'); A(f's_cbranch_scc1 {done}')
        ensure_init()
        A('v_mov_b32 v2, 0')
        for k, r in enumerate(words): A(f'v_writelane_b32 v2, s{r}, {k}')
        A('v_lshrrev_b32 v3, 24, v2'); A('v_lshlrev_b32 v3, 7, v3'); A('v_and_b32 v2, 0xffffff, v2')
        A(f's_mov_b32 s{S_TO}, 0'); A(f's_mov_b32 s{G_T0}, {hx(CNT)}')
        lp = A.label('poll')
        A(f'{lp}:')
        A(f'buffer_load_dword v{V_T}, v3, s[{S_WS}:{S_WS+3}], s{G_T0} offen sc1')
        A('s_waitcnt vmcnt(0)')
        A(f'v_cmp_lt_u32 vcc, v{V_T}, v2')
        A(f's_cbranch_vccz {done}')
        A('s_sleep 4')
        A(f's_add_u32 s{S_TO}, s{S_TO}, 1'); A(f's_cmp_lt_u32 s{S_TO}, {TIMEOUT}'); A(f's_cbranch_scc1 {lp}')
        A('s_branch L_abort')
    poll([S_TASK + 4, S_TASK + 5], go)
    A(f'{go}:')
    A('s_barrier')
    tstamp(1)
    A(f's_mov_b32 s{G_M0}, s{S_TASK+1}'); A(f's_mov_b32 s{G_N0}, s{S_TASK+2}')
    kinds = sorted(set(t[0] for lst in SC.table() + SC.dyn() for t in lst))
    for k in kinds:
        A(f's_cmp_eq_u32 s{S_TASK}, {k}'); A(f's_cbranch_scc1 L_t{k}')
    A('s_branch L_abort')

    XM = {'K': (0, 8192, KX, 131072), 'Q': (1, 8192, QX, 131072), 'V': (2, 8192, VX, 262144), 'H': (3, 7168, HH, 112 * 1024)}
    def xmat(name, g, m0, n0, ob, ots):
        pi, row, base, stride = XM[name]
        srd(A, S_WD, S_PTR + 2 * pi, 1024 * row)
        A(f's_lshl_b32 s{G_XO}, s{m0}, 11')
        A(f's_lshl_b32 s{G_WO}, s{n0}, 1'); A(f's_mov_b32 s{G_ROW}, {row}'); A(f's_mov_b32 s{G_WS}, {row * g.KS}')
        A(f's_mov_b32 s{ots}, {stride}')
        if name == 'V': A(f's_lshl_b32 s{ob}, s{m0}, 13'); A(f's_lshl_b32 s{G_T0}, s{n0}, 6')
        else: A(f's_mul_i32 s{ob}, s{m0}, {stride // 16}'); A(f's_lshl_b32 s{G_T0}, s{n0}, 5')
        A(f's_add_u32 s{ob}, s{ob}, s{G_T0}'); A(f's_add_u32 s{ob}, s{ob}, {hx(base)}')
    def xfirst(name, g):
        load_ptr(A, S_CODE + 4, KA_X); A('s_waitcnt lgkmcnt(0)'); srd(A, S_XD, S_CODE + 4, 2048 * 2048)
        A(f's_mov_b32 s{G_XS}, {g.KS * 2}'); A(f's_mov_b32 s{G_NK}, {1024 // g.KS // g.R_ - 1}')
        xmat(name, g, G_M0, G_N0, G_OB, G_OTS)
    def fmat(ptr_ka, K, base, g):
        load_ptr(A, S_CODE, ptr_ka); A('s_waitcnt lgkmcnt(0)')
        srd(A, S_WD, S_CODE, K * 2048); srd(A, S_XD, S_WS, WS_BYTES)
        A(f's_mov_b32 s{G_TB}, {K * 32}'); A(f's_mul_i32 s{G_XO}, s{G_M0}, {K * 2}'); A(f's_add_u32 s{G_XO}, s{G_XO}, {hx(base)}'); A(f's_mov_b32 s{G_XS}, {g.KS * 32}')
        A(f's_lshl_b32 s{G_WO}, s{G_N0}, 1'); A(f's_mov_b32 s{G_ROW}, 2048'); A(f's_mov_b32 s{G_WS}, {2048 * g.KS}'); A(f's_mov_b32 s{G_NK}, {K // g.KS // g.R_ - 1}')
        assert K % (g.KS * g.R_) == 0

    shapes = {'big': (8, 4, 2, 4, 32, 4), 'half': (4, 4, 4, 2, 32, 4), 'q128': (4, 2, 2, 4, 64, 4), 'q64': (1, 2, 4, 2, 64, 8)}
    gens = {n: Gemm(A, *p, opts=opts) for n, p in shapes.items()}
    shared = {}
    def body(shape, xt, orient, epi):
        key = (shape, xt, orient)
        if key in shared:
            A(f's_branch {shared[key][0]}'); shared[key][1].append(epi); return
        lab = f'L_body_{shape}_{xt}_{orient}'
        shared[key] = (lab, [epi])
        A(f's_branch {lab}')
    for k in kinds:
        A(f'L_t{k}:')
        name, shape = SC.KINDS[k]
        if name in XM: xfirst(name, gens[shape]); body(shape, 'rm', 'v' if name == 'V' else 'kq', 'silu' if name == 'H' else 'plain')
        elif name == 'F':
            fmat(KA_W2, 3584, HH, gens[shape])
            A(f's_mov_b32 s{G_OTS}, 32768'); A(f's_lshl_b32 s{G_OB}, s{G_M0}, 11'); A(f's_lshl_b32 s{G_T0}, s{G_N0}, 5')
            A(f's_add_u32 s{G_OB}, s{G_OB}, s{G_T0}'); A(f's_add_u32 s{G_OB}, s{G_OB}, {hx(BB)}')
            body(shape, 'fm', 'kq', 'plain')
        elif name == 'O':
            fmat(KA_WO, 4096, OO, gens[shape])
            body(shape, 'fm', 'kq', 'final')
        elif name == 'A':
            A(f's_mov_b32 s{G_NK}, s{S_TASK+3}')
            def wait_progress():
                lp, ok, far = A.label('pw'), A.label('pwok'), A.label('pwfar')
                A(f's_cmp_lg_u32 s{S_WAVE}, 0'); A(f's_cbranch_scc1 {ok}')
                A(f's_lshl_b32 s{G_T0}, s{S_TASK+3}, 5'); A(f's_sub_u32 s{G_T0}, s{G_T0}, 1')
                A(f'v_min_u32 v7, s{G_T0}, v1'); A('v_add_u32 v8, 64, v1'); A(f'v_min_u32 v8, s{G_T0}, v8')
                A('v_lshlrev_b32 v7, 7, v7'); A('v_lshlrev_b32 v8, 7, v8')
                A(f's_lshl_b32 s{G_T0}, s{S_TASK+2}, 9'); A(f's_add_u32 s{G_T0}, s{G_T0}, {hx(FLG)}')
                A(f's_mov_b32 s{S_TO}, 0')
                A(f'{lp}:')
                A(f'buffer_load_dword v9, v7, s[{S_WS}:{S_WS+3}], s{G_T0} offen sc1')
                A(f'buffer_load_dword v10, v8, s[{S_WS}:{S_WS+3}], s{G_T0} offen sc1')
                A('s_waitcnt vmcnt(0)')
                A('v_min_u32 v9, v9, v10')
                A(f'v_cmp_ge_u32 vcc, s{S_TASK+1}, v9')
                A(f's_cbranch_vccz {ok}')
                A(f's_add_u32 s{S_TO}, s{S_TO}, 1'); A(f's_cmp_ge_u32 s{S_TO}, {TIMEOUT}'); A('s_cbranch_scc1 L_abort')
                A(f'v_readfirstlane_b32 s{G_T1}, v9'); A('s_nop 3'); A(f's_add_u32 s{G_T1}, s{G_T1}, 1')
                A(f's_add_u32 s{G_T1}, s{G_T1}, {0}') if False else None
                A(f's_cmp_gt_u32 s{S_TASK+1}, s{G_T1}'); A(f's_cbranch_scc1 {far}')
                A('s_sleep 4'); A(f's_branch {lp}')
                A(f'{far}:')
                A('s_sleep 60'); A(f's_branch {lp}')
                A(f'{ok}:')
                A('s_barrier')
            att.attention(A, wait_progress)
            A('s_branch L_done')
        elif name == 'G':
            load_ptr(A, S_CODE, KA_GW); load_ptr(A, S_CODE + 4, KA_X); A('s_waitcnt lgkmcnt(0)')
            srd(A, S_WD, S_CODE, 2048); srd(A, S_XD, S_CODE + 4, 2048 * 2048)
            A(f's_mov_b32 s{G_NK}, s{S_TASK+3}')
            att.gate(A)
            A('s_branch L_done')
    def signal(word):
        ensure_init()
        A(f's_lshr_b32 s{G_T0}, s{word}, 8'); A(f's_lshl_b32 s{G_T0}, s{G_T0}, 7'); A(f's_add_u32 s{G_T0}, s{G_T0}, {hx(CNT)}')
        A(f's_and_b32 s{G_T1}, s{word}, 0xff')
        A(f'v_mov_b32 v2, s{G_T0}'); A(f'v_mov_b32 v3, s{G_T1}'); A(f'v_mov_b32 v{V_T}, {hx(OOB)}'); A('v_cmp_eq_u32 vcc, 0, v1'); A('s_nop 1')
        A(f'v_cndmask_b32 v2, v{V_T}, v2, vcc')
        A(f'buffer_atomic_add v3, v2, s[{S_WS}:{S_WS+3}], 0 offen')
    EPI = {'K': 'plain', 'Q': 'plain', 'V': 'plain', 'F': 'plain', 'H': 'silu', 'O': 'final'}
    for (shape, xt, orient), (lab, epis) in shared.items():
        g = gens[shape]
        chain = g.chain = (shape, xt) == ('big', 'rm') and 'nochain' not in opts
        A(f'{lab}:')
        g.setup(xt)
        g.stamp = lambda k: tstamp(4, 5)
        if chain: A(f's_mov_b32 s{G_HEAD}, 0'); A(f's_mov_b32 s{G_PHASE}, 0')
        g.prologue(xt)
        lp = f'L_loop_{shape}_{xt}_{orient}'
        g.loop(xt, orient, lp)
        epis = sorted(set(epis))
        labs = {e: A.label('epi_' + e) for e in epis}
        sel = A.label('episel')
        if chain:
            tl = A.label('tail')
            A(f's_cmp_lg_u32 s{G_PHASE}, 0'); A(f's_cbranch_scc1 {sel}')
            A(f's_cmp_eq_u32 s{S_TASK+3}, 0'); A(f's_cbranch_scc1 {tl}')
            go_ = A.label('sw')
            for nm in XM:
                if (nm, 'big') not in SC.KID or SC.KID[(nm, 'big')] not in kinds: continue
                nx = A.label('swn')
                A(f's_cmp_lg_u32 s{S_NEXT}, {SC.KID[(nm, "big")]}'); A(f's_cbranch_scc1 {nx}')
                xmat(nm, g, S_NEXT + 1, S_NEXT + 2, S_NOB, S_NOTS)
                A(f's_branch {go_}')
                A(f'{nx}:')
            A('s_branch L_abort')
            A(f'{go_}:')
            g.setup_wg(xt)
            A(f's_mov_b32 s{G_PHASE}, 1'); A(f's_mov_b32 s{G_NK}, 1')
            A(f's_branch {lp}')
            A(f'{tl}:')
        g.tail(xt, orient)
        A(f'{sel}:')
        A('s_nop 7')
        tstamp(2, 6)
        kind_of = {e: [k for k in kinds if SC.KINDS[k][1] == shape and EPI.get(SC.KINDS[k][0]) == e] for e in epis}
        for e in epis[1:]:
            for k in kind_of[e]:
                A(f's_cmp_eq_u32 s{S_TASK}, {k}'); A(f's_cbranch_scc1 {labs[e]}')
        for e in epis:
            A(f'{labs[e]}:')
            if e == 'plain': g.epi_frag(orient, zero=chain)
            elif e == 'silu':
                A(f's_mov_b32 s{G_C0}, 0xbfb8aa3b'); A(f's_mov_b32 s{G_C0+1}, 0xbfb8aa3b')
                g.epi_frag(orient, True, zero=chain)
            else:
                lw = A.label('latew')
                A(f's_cmp_lg_u32 s{S_WAVE}, 0'); A(f's_cbranch_scc1 {lw}')
                poll([S_TASK + 6], lw)
                A(f'{lw}:')
                A('s_barrier')
                g.epi_final()
            A(f's_branch {"L_chained" if chain else "L_done"}')
        for o, b in g.outofline:
            A(f'{o}:')
            A(f's_mov_b32 s{G_HEAD}, 0')
            A(f's_cmp_lg_u32 s{S_WAVE}, 0'); A(f's_cbranch_scc1 {b}')
            signal(G_PSIG)
            A(f's_branch {b}')
        g.outofline = []
    if ('big', 'rm', 'kq') in shared and 'nochain' not in opts:
        A('L_chained:')
        A(f's_cmp_eq_u32 s{G_PHASE}, 0'); A('s_cbranch_scc1 L_done')
        tstamp(3)
        A(f's_mov_b32 s{G_PSIG}, s{S_TASK+7}')
        for i in range(8): A(f's_mov_b32 s{S_TASK+i}, s{S_NEXT+i}')
        A(f's_add_u32 s{S_IDX}, s{S_IDX}, 1')
        A(f's_lshl_b32 s{G_T0}, s{S_IDX}, 5'); A(f's_add_u32 s{G_T0}, s{G_T0}, 32')
        A(f's_load_dwordx8 s[{S_NEXT}:{S_NEXT+7}], s[{S_TAB}:{S_TAB+1}], s{G_T0}')
        A(f's_mov_b32 s{G_OB}, s{S_NOB}'); A(f's_mov_b32 s{G_OTS}, s{S_NOTS}')
        A(f's_mov_b32 s{G_NK}, 7'); A(f's_mov_b32 s{G_PHASE}, 0'); A(f's_mov_b32 s{G_HEAD}, 1')
        tstamp(0); tstamp(1); tstamp(4, 5)
        A('s_waitcnt lgkmcnt(0)')
        A(f's_cmp_eq_u32 s{S_TASK}, {SC.KID[("V", "big")]}'); A('s_cbranch_scc1 L_loop_big_rm_v')
        A('s_branch L_loop_big_rm_kq')
    A('L_done:')
    A('s_waitcnt vmcnt(0)')
    A('s_barrier')
    tstamp(3)
    nxt = A.label('nosig')
    A(f's_cmp_lg_u32 s{S_WAVE}, 0'); A(f's_cbranch_scc1 {nxt}')
    A(f's_cmp_eq_u32 s{S_TASK+7}, 0'); A(f's_cbranch_scc1 {nxt}')
    signal(S_TASK + 7)
    A(f'{nxt}:')
    A(f's_add_u32 s{S_IDX}, s{S_IDX}, 1')
    A(f's_cmp_eq_u32 s{S_DYN}, 0'); A('s_cbranch_scc1 L_task')
    A('L_dyn:')
    A(f's_mov_b32 s{S_DYN}, 1')
    A(f's_lshr_b32 s{G_T1}, s{S_J}, 5'); A(f's_and_b32 s{G_T1}, s{G_T1}, 3')
    d1 = A.label('dyn')
    A(f's_cmp_lg_u32 s{S_WAVE}, 0'); A(f's_cbranch_scc1 {d1}')
    A(f's_lshl_b32 s{G_T0}, s{G_T1}, 2'); A(f's_add_u32 s{G_T0}, s{G_T0}, {4*DBG_QUEUE}')
    A(f'v_mov_b32 v2, s{G_T0}'); A('v_mov_b32 v3, 1'); A(f'v_mov_b32 v4, {hx(OOB)}'); A('v_cmp_eq_u32 vcc, 0, v1'); A('s_nop 1')
    A('v_cndmask_b32 v2, v4, v2, vcc')
    A(f'buffer_atomic_add v3, v2, s[{S_DBG}:{S_DBG+3}], 0 offen sc0')
    A('s_waitcnt vmcnt(0)')
    A(f'v_readfirstlane_b32 s{G_T0}, v3'); A('s_nop 1')
    A(f'v_mov_b32 v3, s{G_T0}'); A(f'v_mov_b32 v2, {L_MISC}'); A('ds_write_b32 v2, v3'); A('s_waitcnt lgkmcnt(0)')
    A(f'{d1}:')
    A('s_barrier')
    A(f'v_mov_b32 v2, {L_MISC}'); A('ds_read_b32 v3, v2')
    A(f's_lshl_b32 s{G_T1}, s{G_T1}, 3'); A(f's_add_u32 s{G_T1}, s{G_T1}, 1024')
    A(f's_load_dwordx2 s[{G_C0}:{G_C0+1}], s[{S_TAB0}:{S_TAB0+1}], s{G_T1}')
    A('s_waitcnt lgkmcnt(0)')
    A(f'v_readfirstlane_b32 s{G_T0}, v3'); A('s_nop 3')
    A(f's_cmp_ge_u32 s{G_T0}, s{G_C0+1}'); A('s_cbranch_scc1 L_end')
    if stamps:
        f_ = A.label('nost')
        A(f's_cmp_lg_u32 s{S_WAVE}, 0'); A(f's_cbranch_scc1 {f_}')
        A(f's_lshl_b32 s86, s{S_J}, 5'); A(f's_add_u32 s86, s86, s{S_IDX}'); A('s_lshl_b32 s86, s86, 5'); A(f's_add_u32 s86, s86, {hx(STAMP + 0x20000)}')
        A('v_mov_b32 v2, s86'); A(f's_add_u32 s86, s{G_T0}, 1'); A('v_mov_b32 v3, s86')
        A(f'buffer_store_dword v3, v2, s[{S_WS}:{S_WS+3}], 0 offen offset:28')
        A(f'{f_}:')
    A(f's_lshl_b32 s{G_T0}, s{G_T0}, 5'); A(f's_add_u32 s{G_T0}, s{G_T0}, s{G_C0}')
    A(f's_load_dwordx8 s[{S_TASK}:{S_TASK+7}], s[{S_TAB0}:{S_TAB0+1}], s{G_T0}')
    A('s_waitcnt lgkmcnt(0)')
    A('s_branch L_run')

def build(opts=()):
    opts = list(opts)
    A = Asm()
    A.lines += open('header.txt').read().rstrip('\n').split('\n')
    A.lines.append('; @launch grid=(256,1,1) block=(512,1,1) lds=163840')
    A('.amdgcn_target "amdgcn-amd-amdhsa--gfx950"')
    A('.text'); A(f'.globl {NAME}'); A('.p2align 8'); A(f'.type {NAME},@function'); A(f'{NAME}:')
    A('s_cmp_ge_u32 s2, 256'); A('s_cbranch_scc1 L_end')
    if set(opts) & {'stamps', 'light', 'pro', 'abs'}: A('s_memrealtime s[98:99]')
    A(f's_load_dwordx4 s[56:59], s[0:1], {KA_DBG}')
    A(f's_load_dwordx4 s[60:63], s[0:1], {KA_WK}')
    A(f's_load_dwordx2 s[64:65], s[0:1], {KA_WQ}'); A(f's_load_dwordx2 s[66:67], s[0:1], {KA_WO}'); A(f's_load_dwordx2 s[68:69], s[0:1], {KA_X}')
    A(f's_getreg_b32 s{S_X}, hwreg(HW_REG_XCC_ID, 0, 4)')
    A('v_lshrrev_b32 v1, 6, v0'); A('s_nop 0'); A(f'v_readfirstlane_b32 s{S_WAVE}, v1')
    A('s_waitcnt lgkmcnt(0)')
    srd(A, S_WS, 58, WS_BYTES); srd(A, S_DBG, 56, 256)
    A('v_and_b32 v1, 63, v0'); A('v_lshlrev_b32 v2, 4, v1')
    for r in range(4): A(f'v_mov_b32 v{4+r}, -1'); A(f'v_mov_b32 v{8+r}, 0')
    A(f's_lshl_b32 s{G_T0}, s{S_WAVE}, 8'); A(f's_add_u32 s{G_T0}, s{G_T0}, s2'); A(f's_lshl_b32 s{G_T0}, s{G_T0}, 10')
    A(f's_add_u32 s{G_T1}, s{S_WS}, {hx(RB1 + 0x1fffff)}'); A(f's_and_b32 s{G_T1}, s{G_T1}, 0xffe00000'); A(f's_sub_u32 s{G_T1}, s{G_T1}, s{S_WS}')
    A(f's_add_u32 s{G_T2}, s{G_T0}, {hx(RA)}')
    A(f's_cmp_lt_u32 s{S_WAVE}, 2'); A(f's_cselect_b32 s{G_TB}, s{G_T2}, 0')
    A(f's_add_u32 s{G_T2}, s{G_T0}, {hx(RC - 0x80000)}')
    A(f's_cmp_ge_u32 s{S_WAVE}, 2'); A(f's_cselect_b32 s{G_TB}, s{G_T2}, s{G_TB}')
    A(f's_add_u32 s{G_T2}, s{G_T0}, s{G_T1}'); A(f's_sub_u32 s{G_T2}, s{G_T2}, 0x180000')
    A(f's_cmp_ge_u32 s{S_WAVE}, 6'); A(f's_cselect_b32 s{G_TB}, s{G_T2}, s{G_TB}')
    A(f'buffer_store_dwordx4 v[4:7], v2, s[{S_WS}:{S_WS+3}], s{G_TB} offen sc1')
    c2, c3 = A.label('clr'), A.label('clr')
    A(f's_cmp_lt_u32 s{S_WAVE}, 6'); A(f's_cbranch_scc1 {c2}')
    A(f's_add_u32 s{G_TB}, s{G_TB}, 0x80000')
    A(f'buffer_store_dwordx4 v[4:7], v2, s[{S_WS}:{S_WS+3}], s{G_TB} offen sc1')
    A(f'{c2}:')
    A(f's_cmp_lg_u32 s{S_WAVE}, 1'); A(f's_cbranch_scc1 {c3}')
    A('s_cmp_ge_u32 s2, 32'); A(f's_cbranch_scc1 {c3}')
    A(f's_lshl_b32 s{G_T2}, s2, 10'); A(f's_add_u32 s{G_T2}, s{G_T2}, {hx(FLG)}')
    A(f'buffer_store_dwordx4 v[8:11], v2, s[{S_WS}:{S_WS+3}], s{G_T2} offen sc1')
    A(f'{c3}:')
    tk = A.label('tk')
    A(f's_cmp_lg_u32 s{S_WAVE}, 0'); A(f's_cbranch_scc1 {tk}')
    A(f's_and_b32 s{G_T0}, s{S_X}, 3'); A(f's_lshl_b32 s{G_T0}, s{G_T0}, 6'); A(f's_and_b32 s{G_T1}, s{S_X}, 12'); A(f's_add_u32 s{G_T0}, s{G_T0}, s{G_T1}')
    A(f'v_mov_b32 v2, s{G_T0}'); A(f'v_mov_b32 v3, {hx(OOB)}'); A('v_cmp_eq_u32 vcc, 0, v0'); A('v_mov_b32 v1, 1'); A('s_nop 0')
    A('v_cndmask_b32 v2, v3, v2, vcc')
    A(f'buffer_atomic_add v1, v2, s[{S_DBG}:{S_DBG+3}], 0 offen sc0')
    A(f'{tk}:')
    A('s_waitcnt vmcnt(0)')
    tk2 = A.label('tk2')
    A(f's_cmp_lg_u32 s{S_WAVE}, 0'); A(f's_cbranch_scc1 {tk2}')
    A(f'v_readfirstlane_b32 s{G_T0}, v1'); A('s_nop 1')
    A(f'v_mov_b32 v1, s{G_T0}'); A(f'v_mov_b32 v2, {L_MISC}')
    A('ds_write_b32 v2, v1'); A('s_waitcnt lgkmcnt(0)')
    A(f'{tk2}:')
    A('s_barrier')
    ini = A.label('ini')
    A(f's_cmp_lg_u32 s{S_WAVE}, 0'); A(f's_cbranch_scc1 {ini}')
    A(f'v_mov_b32 v2, {4*DBG_INIT}'); A(f'v_mov_b32 v3, {hx(OOB)}'); A('v_cmp_eq_u32 vcc, 0, v0'); A('v_mov_b32 v1, 1'); A('s_nop 0')
    A('v_cndmask_b32 v2, v3, v2, vcc')
    A(f'buffer_atomic_add v1, v2, s[{S_DBG}:{S_DBG+3}], 0 offen')
    A(f'{ini}:')
    A(f'v_mov_b32 v2, {L_MISC}'); A('ds_read_b32 v1, v2'); A('s_waitcnt lgkmcnt(0)')
    A(f'v_readfirstlane_b32 s{S_J}, v1'); A('s_nop 3')
    A('s_barrier')
    A(f's_cmp_ge_u32 s{S_J}, 32'); A('s_cbranch_scc1 L_end')
    if 'nopf' not in opts:
        pr, pg = A.label('pfr'), A.label('pfg')
        A(f's_lshl_b32 s{G_T0}, s{S_J}, 3'); A(f's_add_u32 s{G_T0}, s{G_T0}, s{S_WAVE}')
        A('v_and_b32 v12, 63, v0'); A('v_lshlrev_b32 v12, 4, v12')
        A(f's_cmp_lt_u32 s{S_X}, 4'); A(f's_cbranch_scc1 {pr}')
        srd(A, S_XD, 68, 2048 * 2048)
        A(f's_lshl_b32 s{G_T1}, s{G_T0}, 12')
        for q in range(4): A(f'buffer_load_dwordx4 a[60:63], v12, s[{S_XD}:{S_XD+3}], s{G_T1} offen offset:{1024*q}')
        A(f's_and_b32 s{G_T1}, s{S_X}, 2'); A(f's_cmp_eq_u32 s{G_T1}, 0'); A(f's_cselect_b32 s{S_XD}, s60, s62'); A(f's_cselect_b32 s{S_XD+1}, s61, s63')
        A(f's_and_b32 s{G_T1}, s{S_X}, 1'); A(f's_lshl_b32 s{G_T1}, s{G_T1}, 12')
        A(f's_lshl_b32 s{G_T2}, s{G_T0}, 13'); A(f's_add_u32 s{G_T1}, s{G_T1}, s{G_T2}')
        A(f's_mov_b32 s{G_TB}, {256 * 8192}'); A(f's_mov_b32 s{G_C0}, 4')
        A(f's_branch {pg}')
        A(f'{pr}:')
        A(f's_cmp_lt_u32 s{G_T0}, 128'); A(f's_cselect_b32 s{S_XD}, s64, s66'); A(f's_cselect_b32 s{S_XD+1}, s65, s67')
        A(f's_and_b32 s{G_T2}, s{G_T0}, 127')
        A(f's_lshl_b32 s{G_T1}, s{G_T2}, 14'); A(f's_lshl_b32 s{G_TB}, s{S_X}, 11'); A(f's_add_u32 s{G_T1}, s{G_T1}, s{G_TB}')
        A(f's_lshl_b32 s{G_T2}, s{G_T2}, 12'); A(f's_lshl_b32 s{G_TB}, s{S_X}, 21'); A(f's_add_u32 s{G_T2}, s{G_T2}, s{G_TB}')
        A(f's_cmp_lt_u32 s{G_T0}, 128'); A(f's_cselect_b32 s{G_T1}, s{G_T1}, s{G_T2}')
        A(f's_mov_b32 s{G_TB}, {256 * 8192}'); A(f's_cselect_b32 s{G_TB}, s{G_TB}, {128 * 4096}')
        A(f's_cselect_b32 s{G_C0}, 1, 0')
        A(f'{pg}:')
        A(f's_mov_b32 s{S_XD+2}, 0x800000'); A(f's_mov_b32 s{S_XD+3}, 0x20000')
        A(f's_cmp_eq_u32 s{G_C0}, 1'); A(f's_cselect_b32 s{G_T2}, {8192 - 2048}, 0'); A(f'v_add_u32 v13, s{G_T2}, v12')
        for i in range(4):
            for q in range(4):
                A(f'buffer_load_dwordx4 a[60:63], v{12 if q < 2 else 13}, s[{S_XD}:{S_XD+3}], s{G_T1} offen offset:{1024*q}')
            A(f's_add_u32 s{G_T1}, s{G_T1}, s{G_TB}')
    A(f's_cmp_lt_u32 s{S_X}, 4'); A('s_cbranch_scc1 L_rec')
    A(f's_sub_u32 s{S_X}, s{S_X}, 4')
    if 'nogemm' in opts: A('s_branch L_end')
    A('L_exec:')
    A(f's_lshl_b32 s{S_X}, s{S_X}, 5'); A(f's_add_u32 s{S_J}, s{S_J}, s{S_X}')
    executor(A, opts)
    A('L_rec:')
    if 'norec' not in opts:
        A(f's_load_dwordx4 s[44:47], s[0:1], {KA_MEM0}')
        A(f's_load_dwordx4 s[48:51], s[0:1], {KA_WK}')
        A(f's_load_dwordx2 s[54:55], s[0:1], {KA_WO}')
        A('s_waitcnt lgkmcnt(0)')
        A('s_mov_b32 s52, s44'); A('s_mov_b32 s53, s45')
        st = 'abs' if 'abs' in opts else 'pro' if 'pro' in opts else 'light' if 'stamps' in opts or 'light' in opts else False
        rec.Rec(A, st, True, opts=opts).emit()
        A('s_waitcnt vmcnt(0) lgkmcnt(0)')
        A('s_barrier')
        A(f's_add_u32 s{S_X}, s{S_X}, 4')
        A('s_branch L_exec' if 'nogemm' not in opts else 's_branch L_end')
    A('s_branch L_end')
    A('L_abort:')
    A(f'v_mov_b32 v1, 1'); A(f'v_mov_b32 v2, {4*DBG_ERR}')
    A(f'buffer_atomic_add v1, v2, s[{S_DBG}:{S_DBG+3}], 0 offen')
    A('L_end:')
    A('s_endpgm')
    A('.p2align 6')
    A('.type L_table,@object')
    A('L_table:')
    rows, offs, pos = [], [], 1056
    isx = lambda t: SC.KINDS[t[0]][0] in 'KQVH' and SC.KINDS[t[0]][1] == 'big'
    tab = list(SC.table()); tab += [[]] * (256 - len(tab))
    for lst in tab:
        assert len(lst) < 32
        lst = [t[:3] + (1,) + t[4:] if isx(t) and i + 1 < len(lst) and isx(lst[i + 1]) else t for i, t in enumerate(lst)]
        offs.append(pos); rows += lst + [(0,) * 8]; pos += 32 * (len(lst) + 1)
    rows.append((0,) * 8); pos += 32
    qh = []
    for lst in SC.dyn():
        qh += [pos, len(lst)]; rows += lst; pos += 32 * len(lst)
    for i in range(0, 256, 8): A.lines.append('.long ' + ','.join(str(w) for w in offs[i:i+8]))
    A.lines.append('.long ' + ','.join(str(w) for w in qh))
    for t in rows: A.lines.append('.long ' + ','.join(str(w) for w in t))
    A('.size L_table, .-L_table')
    A('.section .rodata,"a"'); A('.p2align 6'); A(f'.amdhsa_kernel {NAME}')
    for k in ('next_free_vgpr 256', 'next_free_sgpr 102', 'accum_offset 192', 'group_segment_fixed_size 0', 'kernarg_size 112',
              'user_sgpr_count 2', 'user_sgpr_kernarg_segment_ptr 1', 'system_sgpr_workgroup_id_x 1', 'float_denorm_mode_32 3'):
        A.lines.append('  .amdhsa_' + k)
    A('.end_amdhsa_kernel')
    return A.text()

if __name__ == '__main__':
    opts = sys.argv[2:]
    for o in opts:
        if o.startswith('sched='): SC.MODE = o[6:]
    open(sys.argv[1], 'w').write(build(opts))
```

```python
from asmlib import *
from layout import *
from gemm16 import S_WS, S_XD, S_WD, S_WAVE, G_T0, G_T1, G_T2, G_TB, G_C0, G_M0, G_N0, G_NK, G_OB, G_XO, G_WO, V_L16

def attention(A, wait_progress):
    Q, K, V, KMr, VMr = 20, 52, 84, 116, 132
    S00, S01, S11, SM0, SM1 = 148, 152, 156, 160, 164
    BX0, BX1, BM0, BM1 = 168, 172, 176, 178
    T = 180
    O = 'a'
    VKM, VVM, VMASK = 4, 5, 6
    SEG, HD, SOFF, SC = G_M0, G_N0, G_XO, G_C0
    A(f's_mul_i32 s{G_T0}, s{S_WAVE}, s{G_NK}'); A(f's_add_u32 s{HD}, s{HD}, s{G_T0}')
    A(f'v_lshlrev_b32 v{V_L16}, 4, v1')
    A('v_and_b32 v2, 15, v1'); A('v_lshrrev_b32 v3, 4, v1')
    A('v_and_b32 v7, 7, v1'); A(f'v_lshlrev_b32 v{VKM}, 4, v7'); A(f'v_lshl_add_u32 v{VKM}, v3, 7, v{VKM}')
    A('v_and_b32 v7, 1, v3'); A(f'v_lshlrev_b32 v{VVM}, 7, v7'); A(f'v_lshl_add_u32 v{VVM}, v2, 3, v{VVM}')
    A('v_lshlrev_b32 v7, 2, v3')
    for r in range(4):
        A(f'v_add_u32 v8, {r}, v7'); A(f'v_cmp_le_u32 s[{60+2*r}:{61+2*r}], v8, v2')
    A('v_cmp_gt_u32 s[84:85], 2, v3')
    A(f's_mov_b32 s{SC}, 0x3db504f3')
    A(f's_mov_b32 s{SC+1}, 0x3fb8aa3b')
    A(f'v_mov_b32 v{VMASK}, 0xff800000')
    def ld4(reg, voff, soff, off): A(f'buffer_load_dwordx4 v[{reg}:{reg+3}], v{voff}, s[{S_WS}:{S_WS+3}], s{soff} offen offset:{off} sc1')
    def load_kqx():
        A(f's_lshl_b32 s{G_T2}, s{SEG}, 18'); A(f's_lshl_b32 s{G_T0}, s{HD}, 12'); A(f's_add_u32 s{G_T2}, s{G_T2}, s{G_T0}')
        for tb in range(2):
            A(f's_add_u32 s{G_T1}, s{G_T2}, {hx(KX + tb * 131072)}')
            for c in range(4): ld4(K + 16 * tb + 4 * c, V_L16, G_T1, 1024 * c)
            A(f's_add_u32 s{G_T1}, s{G_T2}, {hx(QX + tb * 131072)}')
            for c in range(4): ld4(Q + 16 * tb + 4 * c, V_L16, G_T1, 1024 * c)
    def mem_base(base):
        A(f's_lshl_b32 s{G_T1}, s{SEG}, 16'); A(f's_lshl_b32 s{G_T0}, s{HD}, 11'); A(f's_add_u32 s{G_T1}, s{G_T1}, s{G_T0}'); A(f's_add_u32 s{G_T1}, s{G_T1}, {hx(base)}')
    def load_km():
        mem_base(KM)
        for c in range(4): ld4(KMr + 4 * c, VKM, G_T1, 512 * c)
    def load_vm():
        mem_base(VM)
        for e in range(8):
            A(f'buffer_load_dwordx2 v[{VMr+2*e}:{VMr+2*e+1}], v{VVM}, s[{S_WS}:{S_WS+3}], s{G_T1} offen offset:{256*e} sc1')
    def load_vx():
        A(f's_lshl_b32 s{G_T1}, s{SEG}, 18'); A(f's_lshl_b32 s{G_T0}, s{HD}, 13'); A(f's_add_u32 s{G_T1}, s{G_T1}, s{G_T0}'); A(f's_add_u32 s{G_T1}, s{G_T1}, {hx(VX)}')
        for e in range(4): ld4(V + 4 * e, V_L16, G_T1, 1024 * e)
        A(f's_add_u32 s{G_T1}, s{G_T1}, 4096')
        for e in range(4): ld4(V + 16 + 4 * e, V_L16, G_T1, 1024 * e)
    def load_kq(): load_kqx(); load_km()
    def load_v(): load_vm(); load_vx()
    load_kqx(); load_vx()
    wait_progress()
    load_km(); load_vm()
    A('s_waitcnt vmcnt(8)')
    loop, nok, nov = A.label('att'), A.label('attnk'), A.label('attnv')
    A(f'{loop}:')
    A(f's_lshl_b32 s{SOFF}, s{SEG}, 18'); A(f's_lshl_b32 s{G_T0}, s{HD}, 12'); A(f's_add_u32 s{SOFF}, s{SOFF}, s{G_T0}'); A(f's_add_u32 s{SOFF}, s{SOFF}, {hx(OO)}')
    A(f's_add_u32 s{HD}, s{HD}, 1'); A(f's_sub_u32 s{G_NK}, s{G_NK}, 1')
    def mm(d, a_, b_, c):
        A(f'v_mfma_f32_16x16x32_bf16 v[{d}:{d+3}], v[{a_}:{a_+3}], v[{b_}:{b_+3}], ' + ('0' if c == 0 else f'v[{d}:{d+3}]'))
    A('s_waitcnt vmcnt(16)')
    for c in range(4): mm(S00, K + 4 * c, Q + 4 * c, c)
    for c in range(4):
        mm(S01, K + 4 * c, Q + 16 + 4 * c, c); mm(S11, K + 16 + 4 * c, Q + 16 + 4 * c, c)
    for c in range(4):
        mm(SM0, KMr + 4 * c, Q + 4 * c, c); mm(SM1, KMr + 4 * c, Q + 16 + 4 * c, c)
    A(f's_cmp_eq_u32 s{G_NK}, 0'); A(f's_cbranch_scc1 {nok}')
    A('s_nop 3')
    load_kq()
    A(f'{nok}:')
    A('s_nop 7')
    def rnd(regs):
        for i in range(0, len(regs), 2):
            A(f'v_cvt_pk_bf16_f32 v{T}, v{regs[i]}, v{regs[i+1]}')
            A(f'v_lshlrev_b32 v{regs[i]}, 16, v{T}'); A(f'v_and_b32 v{regs[i+1]}, 0xffff0000, v{T}')
    allr = list(range(S00, S00 + 20))
    rnd(allr)
    for i in range(0, 20, 2): A(f'v_pk_mul_f32 v[{allr[i]}:{allr[i]+1}], v[{allr[i]}:{allr[i]+1}], s[{SC}:{SC+1}] op_sel_hi:[1,0]')
    rnd(allr)
    for r in range(4):
        A(f'v_cndmask_b32 v{S00+r}, v{VMASK}, v{S00+r}, s[{60+2*r}:{61+2*r}]')
        A(f'v_cndmask_b32 v{S11+r}, v{VMASK}, v{S11+r}, s[{60+2*r}:{61+2*r}]')
        A(f'v_cndmask_b32 v{SM0+r}, v{VMASK}, v{SM0+r}, s[84:85]')
        A(f'v_cndmask_b32 v{SM1+r}, v{VMASK}, v{SM1+r}, s[84:85]')
    sets = [list(range(S00, S00 + 4)) + list(range(SM0, SM0 + 4)), list(range(S01, S01 + 8)) + list(range(SM1, SM1 + 4))]
    def reduce(op, op3, t0):
        for q, regs in enumerate(sets):
            t = t0 + 2 * q
            if op3:
                A(f'{op3} v{t}, v{regs[0]}, v{regs[1]}, v{regs[2]}')
                i = 3
                while i + 1 < len(regs): A(f'{op3} v{t}, v{t}, v{regs[i]}, v{regs[i+1]}'); i += 2
                if i < len(regs): A(f'{op} v{t}, v{t}, v{regs[i]}')
            else:
                A(f'{op} v{t}, v{regs[0]}, v{regs[1]}')
                for r in regs[2:]: A(f'{op} v{t}, v{t}, v{r}')
        for sw in ('v_permlane16_swap_b32', 'v_permlane32_swap_b32'):
            A(f'v_mov_b32 v{t0+1}, v{t0}'); A(f'v_mov_b32 v{t0+3}, v{t0+2}'); A('s_nop 1')
            A(f'{sw} v{t0}, v{t0+1}'); A(f'{sw} v{t0+2}, v{t0+3}')
            A(f'{op} v{t0}, v{t0}, v{t0+1}'); A(f'{op} v{t0+2}, v{t0+2}, v{t0+3}')
    reduce('v_max_f32', 'v_max3_f32', T)
    for q, regs in enumerate(sets):
        for r in regs: A(f'v_sub_f32 v{r}, v{r}, v{T+2*q}')
    for q, regs in enumerate(sets):
        for r in regs: A(f'v_mul_f32 v{r}, s{SC+1}, v{r}')
    for q, regs in enumerate(sets):
        for r in regs: A(f'v_exp_f32 v{r}, v{r}')
    A('s_nop 0')
    reduce('v_add_f32', None, T)
    A(f'v_rcp_f32 v{T}, v{T}'); A(f'v_rcp_f32 v{T+2}, v{T+2}'); A('s_nop 0')
    for q, regs in enumerate(sets):
        for i in range(0, len(regs), 2):
            A(f'v_pk_mul_f32 v[{regs[i]}:{regs[i]+1}], v[{regs[i]}:{regs[i]+1}], v[{T+2*q}:{T+2*q+1}] op_sel_hi:[1,0]')
    def cv(d, s_): A(f'v_cvt_pk_bf16_f32 v{d}, v{s_}, v{s_+1}')
    cv(BX0, S00); cv(BX0 + 1, S00 + 2); A(f'v_mov_b32 v{BX0+2}, 0'); A(f'v_mov_b32 v{BX0+3}, 0')
    cv(BX1, S01); cv(BX1 + 1, S01 + 2); cv(BX1 + 2, S11); cv(BX1 + 3, S11 + 2)
    cv(BM0, SM0); cv(BM0 + 1, SM0 + 2); cv(BM1, SM1); cv(BM1 + 1, SM1 + 2)
    last, pv = A.label('attl'), A.label('attpv')
    A(f's_cmp_eq_u32 s{G_NK}, 0'); A(f's_cbranch_scc1 {last}')
    A('s_waitcnt vmcnt(20)')
    A(f's_branch {pv}')
    A(f'{last}:')
    A('s_waitcnt vmcnt(0)')
    A(f'{pv}:')
    for q, (bx, bm) in enumerate(((BX0, BM0), (BX1, BM1))):
        for e in range(8):
            d = 32 * q + 4 * e
            A(f'v_mfma_f32_16x16x16_bf16 a[{d}:{d+3}], v[{VMr+2*e}:{VMr+2*e+1}], v[{bm}:{bm+1}], 0')
        for e in range(8):
            d = 32 * q + 4 * e
            A(f'v_mfma_f32_16x16x32_bf16 a[{d}:{d+3}], v[{V+4*e}:{V+4*e+3}], v[{bx}:{bx+3}], a[{d}:{d+3}]')
    n = 0
    for q in range(2):
        if q: A(f's_add_u32 s{SOFF}, s{SOFF}, 131072')
        else: A('s_nop 1')
        for c in range(4):
            d = 32 * q + 8 * c; t = S00; u = S00 + 8 + 4 * (n % 3); n += 1
            for r in range(8): A(f'v_accvgpr_read_b32 v{t+r}, a{d+r}')
            for r in range(4): cv(u + r, t + 2 * r)
            A(f'buffer_store_dwordx4 v[{u}:{u+3}], v{V_L16}, s[{S_WS}:{S_WS+3}], s{SOFF} offen offset:{1024*c} sc1')
    A(f's_cmp_eq_u32 s{G_NK}, 0'); A(f's_cbranch_scc1 {nov}')
    load_v()
    A(f's_branch {loop}')
    A(f'{nov}:')

def gate(A):
    X, W, P = 20, 36, 64
    A('v_and_b32 v2, 15, v1'); A('v_lshrrev_b32 v3, 4, v1'); A('v_lshlrev_b32 v3, 4, v3')
    A(f'v_lshl_add_u32 v4, v2, 11, v3'); A(f'v_lshlrev_b32 v{V_L16}, 4, v1')
    A(f's_lshl_b32 s{G_T0}, s{G_M0}, 11'); A(f's_lshl_b32 s{G_T1}, s{S_WAVE}, 8'); A(f's_add_u32 s{G_T2}, s{G_T0}, s{G_T1}')
    for c in range(4): A(f'buffer_load_dwordx4 v[{X+4*c}:{X+4*c+3}], v4, s[{S_XD}:{S_XD+3}], s{G_T2} offen offset:{64*c}')
    for c in range(4): A(f'buffer_load_dwordx4 v[{W+4*c}:{W+4*c+3}], v3, s[{S_WD}:{S_WD+3}], s{G_T1} offen offset:{64*c}')
    A(f's_lshl_b32 s{G_T1}, s{S_WAVE}, 12'); A(f's_add_u32 s{G_T0}, s{G_T0}, s{G_T1}'); A(f's_add_u32 s{G_T0}, s{G_T0}, {hx(XF)}')
    for c in range(4):
        A(f's_waitcnt vmcnt({7 - c + c})')
        A(f'buffer_store_dwordx4 v[{X+4*c}:{X+4*c+3}], v{V_L16}, s[{S_WS}:{S_WS+3}], s{G_T0} offen offset:{1024*c} sc1')
    A('s_waitcnt vmcnt(4)')
    for p in range(16):
        A(f'v_lshlrev_b32 v{P+2*p}, 16, v{X+p}'); A(f'v_and_b32 v{P+2*p+1}, 0xffff0000, v{X+p}')
        A(f'v_lshlrev_b32 v{P+32+2*p}, 16, v{W+p}'); A(f'v_and_b32 v{P+33+2*p}, 0xffff0000, v{W+p}')
    for p in range(16): A(f'v_pk_mul_f32 v[{P+2*p}:{P+2*p+1}], v[{P+2*p}:{P+2*p+1}], v[{P+32+2*p}:{P+33+2*p}]')
    for p in range(16): A(f'v_cvt_pk_bf16_f32 v{W+p}, v{P+2*p}, v{P+2*p+1}')
    for p in range(16): A(f'v_lshlrev_b32 v{P+2*p}, 16, v{W+p}'); A(f'v_and_b32 v{P+2*p+1}, 0xffff0000, v{W+p}')
    for st in (16, 8, 4, 2):
        for p in range(0, st, 2): A(f'v_pk_add_f32 v[{P+p}:{P+p+1}], v[{P+p}:{P+p+1}], v[{P+st+p}:{P+st+p+1}]')
    A(f'v_add_f32 v{P}, v{P}, v{P+1}')
    for sw in ('v_permlane16_swap_b32', 'v_permlane32_swap_b32'):
        A(f'v_mov_b32 v{P+1}, v{P}'); A('s_nop 1'); A(f'{sw} v{P}, v{P+1}'); A(f'v_add_f32 v{P}, v{P}, v{P+1}')
    A(f's_lshl_b32 s{G_T1}, s{S_WAVE}, 6'); A(f'v_lshl_add_u32 v5, v2, 2, s{G_T1}')
    A(f'ds_write_b32 v5, v{P}'); A('s_waitcnt lgkmcnt(0)')
    A('s_barrier')
    done = A.label('gdone')
    A(f's_cmp_lg_u32 s{S_WAVE}, 0'); A(f's_cbranch_scc1 {done}')
    for w in range(8): A(f'ds_read_b32 v{P+w}, v5 offset:{64*w}')
    A('s_waitcnt lgkmcnt(0)')
    for st in (4, 2):
        for p in range(0, st, 2): A(f'v_pk_add_f32 v[{P+p}:{P+p+1}], v[{P+p}:{P+p+1}], v[{P+st+p}:{P+st+p+1}]')
    A(f'v_add_f32 v{P}, v{P}, v{P+1}')
    A(f's_mov_b32 s{G_C0}, 0xbfb8aa3b')
    A(f'v_cvt_pk_bf16_f32 v{P}, v{P}, v{P}'); A(f'v_and_b32 v{P}, 0xffff0000, v{P}')
    A(f'v_mul_f32 v{P}, s{G_C0}, v{P}'); A(f'v_exp_f32 v{P}, v{P}'); A('s_nop 0')
    A(f'v_add_f32 v{P}, 1.0, v{P}'); A(f'v_rcp_f32 v{P}, v{P}'); A('s_nop 0')
    A(f'v_cvt_pk_bf16_f32 v{P}, v{P}, v{P}'); A(f'v_and_b32 v{P}, 0xffff0000, v{P}')
    A(f's_lshl_b32 s{G_T0}, s{G_M0}, 2'); A(f's_add_u32 s{G_T0}, s{G_T0}, {hx(GG)}')
    A(f'buffer_store_dword v{P}, v5, s[{S_WS}:{S_WS+3}], s{G_T0} offen sc1')
    A(f'{done}:')
```

```python
from asmlib import *
from layout import *

S_WS, S_XD, S_WD, S_OD, S_DBG = 4, 8, 12, 16, 20
S_WAVE = 28
G_XO, G_XS, G_WO, G_WS, G_NK, G_OB, G_OTS, G_ROW = 32, 33, 34, 35, 36, 37, 38, 39
G_LX, G_LW, G_T0, G_T1, G_T2, G_TB = 40, 41, 42, 43, 44, 45
G_C0, G_M0, G_N0 = 46, 48, 49
G_HEAD, G_PSIG, G_PHASE = 26, 27, 29
V_XG, V_WG, V_XA, V_WA, V_L16, V_T = 4, 8, 12, 14, 18, 20
ACC = 64
L_X, L_W = 0, 65536

class Reads:
    def __init__(self, A):
        self.A, self.q = A, []
    def issue(self, key, text):
        self.A(text); self.q.append(key)
    def need(self, keys):
        idx = [i for i, k in enumerate(self.q) if k in keys]
        if not idx: return
        n = len(self.q) - 1 - max(idx)
        self.A(f's_waitcnt lgkmcnt({min(n, 15)})')
        self.q = self.q[len(self.q) - min(n, 15):]
    def drain(self):
        self.A('s_waitcnt lgkmcnt(0)'); self.q = []

class Gemm:
    def __init__(self, A, NTB=8, NFB=4, WT=2, WF=4, KS=32, R=4, opts=()):
        self.A = A
        self.NTB, self.NFB, self.WT, self.WF, self.KS, self.R_ = NTB, NFB, WT, WF, KS, R
        assert WT * WF == 8
        self.TM, self.TN = 16 * NTB * WT, 16 * NFB * WF
        self.NSUB = KS // 32
        self.XB, self.WB = self.TM * KS * 2, self.TN * KS * 2
        self.NX, self.NW = self.XB // 8192, self.WB // 8192
        assert self.NX >= 1 and self.NW >= 1
        self.LX, self.LW = 0, R * self.XB
        assert R * (self.XB + self.WB) <= 163840 and R * self.XB <= 65536 and R * self.WB <= 65536
        self.opts = set(opts)
        self.NST = NTB * NFB // 2
        self.dbl = NTB + NFB <= 8
        self.stamp = lambda k: None
        self.chain = False
        self.outofline = []

    def acc(self, tb, fb): return ACC + 4 * (tb * self.NFB + fb)
    def xr(self, par, tb): return 4 * ((par if self.dbl else 0) * self.NTB + tb)
    def wr(self, par, fb): return 4 * ((2 if self.dbl else 1) * self.NTB + par * self.NFB + fb)

    def wave_ids(self):
        A = self.A
        A(f's_lshr_b32 s{G_T0}, s{S_WAVE}, {self.WF.bit_length() - 1}')
        A(f's_and_b32 s{G_T1}, s{S_WAVE}, {self.WF - 1}')

    def setup(self, xt):
        A = self.A
        NX, NW, TN, KS = self.NX, self.NW, self.TN, self.KS
        T = V_T
        self.wave_ids()
        A(f's_mul_i32 s{G_LX}, s{S_WAVE}, {NX * 1024}')
        A(f's_mul_i32 s{G_LW}, s{S_WAVE}, {NW * 1024}'); A(f's_add_u32 s{G_LW}, s{G_LW}, {self.LW}')
        A(f'v_lshlrev_b32 v{V_L16}, 4, v1')
        A(f's_mul_i32 s{G_T2}, s{G_T0}, {self.NTB * 16 * KS * 2}')
        A(f'v_lshrrev_b32 v{T+2}, 4, v1'); A(f'v_and_b32 v{T+3}, 15, v1')
        if xt == 'rm' and KS == 64:
            A(f'v_bfe_u32 v{T+1}, v1, 1, 3')
            for s2 in range(2):
                A(f'v_add_u32 v{T}, {4*s2}, v{T+2}'); A(f'v_xor_b32 v{T}, v{T}, v{T+1}'); A(f'v_lshlrev_b32 v{T}, 4, v{T}')
                A(f'v_lshl_add_u32 v{T}, v{T+3}, 7, v{T}')
                A(f'v_add_u32 v{V_XA+s2}, s{G_T2}, v{T}')
            A(f'v_and_b32 v{T+3}, 7, v1'); A(f'v_lshrrev_b32 v{T+1}, 3, v1')
            for i in range(NX):
                A(f's_mul_i32 s{G_T2}, s{S_WAVE}, {NX}'); A(f's_add_u32 s{G_T2}, s{G_T2}, {i}')
                A(f's_and_b32 s{G_TB}, s{G_T2}, 1'); A(f's_lshl_b32 s{G_TB}, s{G_TB}, 2')
                A(f'v_or_b32 v{T}, s{G_TB}, v{T+2}'); A(f'v_xor_b32 v{T}, v{T}, v{T+3}'); A(f'v_lshlrev_b32 v{T}, 4, v{T}')
                A(f'v_lshl_add_u32 v{T}, v{T+1}, 11, v{T}')
                A(f's_lshl_b32 s{G_T2}, s{G_T2}, 14')
                A(f'v_add_u32 v{V_XG+i}, s{G_T2}, v{T}')
        elif xt == 'rm':
            A(f'v_bfe_u32 v{T+1}, v1, 3, 1'); A(f'v_mul_u32_u24 v{T+1}, 3, v{T+1}'); A(f'v_xor_b32 v{T}, v{T+1}, v{T+2}')
            A(f'v_lshlrev_b32 v{T}, 4, v{T}'); A(f'v_lshl_add_u32 v{T}, v{T+3}, 6, v{T}')
            A(f'v_add_u32 v{V_XA}, s{G_T2}, v{T}')
            A(f'v_lshrrev_b32 v{T+1}, 5, v1'); A(f'v_mul_u32_u24 v{T+1}, 3, v{T+1}'); A(f'v_and_b32 v{T}, 3, v1')
            A(f'v_xor_b32 v{T}, v{T}, v{T+1}'); A(f'v_lshlrev_b32 v{T}, 4, v{T}')
            A(f'v_lshrrev_b32 v{T+1}, 2, v1'); A(f'v_lshl_add_u32 v{T}, v{T+1}, 11, v{T}')
            for i in range(NX):
                A(f's_mul_i32 s{G_T2}, s{S_WAVE}, {NX}'); A(f's_add_u32 s{G_T2}, s{G_T2}, {i}'); A(f's_lshl_b32 s{G_T2}, s{G_T2}, 15')
                A(f'v_add_u32 v{V_XG+i}, s{G_T2}, v{T}')
        else:
            A(f'v_add_u32 v{V_XA}, s{G_T2}, v{V_L16}')
            for i in range(NX):
                A(f's_mul_i32 s{G_T2}, s{S_WAVE}, {NX}'); A(f's_add_u32 s{G_T2}, s{G_T2}, {i}')
                if self.NSUB == 2:
                    A(f's_and_b32 s{G_C0}, s{G_T2}, 1'); A(f's_lshl_b32 s{G_C0}, s{G_C0}, 10'); A(f's_lshr_b32 s{G_T2}, s{G_T2}, 1')
                A(f's_mul_i32 s{G_T2}, s{G_T2}, s{G_TB}')
                if self.NSUB == 2: A(f's_add_u32 s{G_T2}, s{G_T2}, s{G_C0}')
                A(f'v_add_u32 v{V_XG+i}, s{G_T2}, v{V_L16}')
        self.setup_wg(xt)
        rb = TN * 2
        A(f'v_bfe_u32 v{T}, v1, 2, 2')
        A(f'v_lshrrev_b32 v{T+1}, 4, v1')
        A(f'v_lshl_add_u32 v{T+2}, v{T+1}, {2 if xt == "fm" else 3}, v{T}')
        A(f'v_mul_u32_u24 v{T+2}, {rb}, v{T+2}')
        A(f'v_and_b32 v{T+3}, 3, v1'); A(f'v_lshl_add_u32 v{T+2}, v{T+3}, 3, v{T+2}')
        A(f'v_add_u32 v{T+2}, {self.LW}, v{T+2}')
        A(f'v_and_b32 v{T+1}, 1, v{T+1}'); A(f'v_lshl_or_b32 v{T}, v{T+1}, 2, v{T}')
        if TN < 128: A(f'v_lshrrev_b32 v{T}, 1, v{T}')
        for fb in range(self.NFB):
            A(f's_mul_i32 s{G_T2}, s{G_T1}, {self.NFB}'); A(f's_add_u32 s{G_T2}, s{G_T2}, {fb}')
            A(f'v_xor_b32 v{T+1}, s{G_T2}, v{T}')
            A(f'v_lshl_add_u32 v{V_WA+fb}, v{T+1}, 5, v{T+2}')

    def setup_wg(self, xt):
        A = self.A
        NW, TN, T = self.NW, self.TN, V_T
        RPI = 512 // TN; LPR = 64 // RPI
        sh = LPR.bit_length() - 1
        A(f'v_lshrrev_b32 v{T+3}, {sh}, v1'); A(f'v_and_b32 v{T+4}, {LPR-1}, v1')
        for i in range(NW):
            A(f's_mul_i32 s{G_T2}, s{S_WAVE}, {NW * RPI}'); A(f's_add_u32 s{G_T2}, s{G_T2}, {i * RPI}')
            A(f'v_add_u32 v{T}, s{G_T2}, v{T+3}')
            if xt != 'fm':
                A(f'v_and_b32 v{T+1}, 3, v{T}'); A(f'v_bfe_u32 v{T+2}, v{T}, 3, 1'); A(f'v_lshl_or_b32 v{T+1}, v{T+2}, 2, v{T+1}')
            else:
                A(f'v_and_b32 v{T+1}, 7, v{T}')
            if TN < 128: A(f'v_lshrrev_b32 v{T+1}, 1, v{T+1}')
            A(f'v_lshlrev_b32 v{T+1}, 1, v{T+1}'); A(f'v_xor_b32 v{T+1}, v{T+1}, v{T+4}')
            A(f'v_mul_lo_u32 v{T}, v{T}, s{G_ROW}')
            A(f'v_lshl_add_u32 v{V_WG+i}, v{T+1}, 4, v{T}')

    def dma(self, xt, slot):
        g = []
        sc = '' if xt == 'rm' else ' sc1'
        for i in range(self.NX):
            g.append([f's_add_u32 m0, s{G_LX}, {self.LX + slot * self.XB + i * 1024}', 's_nop 0',
                      f'buffer_load_dwordx4 v{V_XG+i}, s[{S_XD}:{S_XD+3}], s{G_XO} offen{sc} lds'])
        for i in range(self.NW):
            g.append([f's_add_u32 m0, s{G_LW}, {slot * self.WB + i * 1024}', 's_nop 0',
                      f'buffer_load_dwordx4 v{V_WG+i}, s[{S_WD}:{S_WD+3}], s{G_WO} offen lds'])
        g[self.NX - 1].append(f's_add_u32 s{G_XO}, s{G_XO}, s{G_XS}')
        g[-1].append(f's_add_u32 s{G_WO}, s{G_WO}, s{G_WS}')
        return g

    def rd_x(self, xt, slot, s2, par, tb):
        r = self.xr(par, tb)
        base = self.LX + slot * self.XB + tb * 16 * self.KS * 2
        if xt == 'rm': t = f'ds_read_b128 a[{r}:{r+3}], v{V_XA+s2} offset:{base}'
        else: t = f'ds_read_b128 a[{r}:{r+3}], v{V_XA} offset:{base + s2 * 1024}'
        return (('x', par if self.dbl else 0, tb), t)
    def rd_w(self, xt, slot, s2, par, fb):
        rb = self.TN * 2
        hs = (16 if xt == 'fm' else 4) * rb
        r = self.wr(par, fb)
        return [(('w', par, fb, h), f'ds_read_b64_tr_b16 a[{r+2*h}:{r+2*h+1}], v{V_WA+fb} offset:{slot * self.WB + s2 * 32 * rb + h * hs}') for h in range(2)]

    def substep(self, xt, orient, slot, s2, par, left):
        A, R = self.A, self.R
        lastsub = s2 == self.NSUB - 1
        nslot, ns2 = ((slot + 1) % self.R_, 0) if lastsub else (slot, s2 + 1)
        ahead = not (lastsub and left == 0)
        wreads = sum((self.rd_w(xt, nslot, ns2, par ^ 1, fb) for fb in range(self.NFB)), []) if ahead else []
        xreads = [self.rd_x(xt, nslot, ns2, par ^ 1, tb) for tb in range(self.NTB)] if ahead else []
        free = wreads + (xreads if self.dbl else [])
        nm = self.NTB * self.NFB
        sync_at = min(self.NFB, nm - 1) if (lastsub and ahead) else 0
        dma = []
        n = 0
        for tb in range(self.NTB):
            R.need({('x', par if self.dbl else 0, tb)} | ({('w', par, fb, h) for fb in range(self.NFB) for h in range(2)} if tb == 0 else set()))
            for fb in range(self.NFB):
                d = self.acc(tb, fb)
                x, w = self.xr(par, tb), self.wr(par, fb)
                a_, b_ = (w, x) if orient == 'kq' else (x, w)
                A(f'v_mfma_f32_16x16x32_bf16 v[{d}:{d+3}], a[{a_}:{a_+3}], a[{b_}:{b_+3}], v[{d}:{d+3}]')
                n += 1
                if n == sync_at:
                    R.drain()
                    fly = self.R_ - 2 if left is None else min(self.R_ - 2, left - 1)
                    nd = self.NX + self.NW
                    if self.chain and left is None and slot < self.R_ - 1:
                        sk = A.label('hd')
                        A(f's_waitcnt vmcnt({fly * nd + self.NST})')
                        A(f's_cmp_lg_u32 s{G_HEAD}, 0'); A(f's_cbranch_scc1 {sk}')
                        A(f's_waitcnt vmcnt({fly * nd})')
                        A(f'{sk}:')
                    else:
                        A(f's_waitcnt vmcnt({fly * nd})')
                    A('s_barrier')
                    if self.chain and left is None and slot == self.R_ - 1:
                        o, b = A.label('sig'), A.label('sigb')
                        A(f's_cmp_lg_u32 s{G_HEAD}, 0'); A(f's_cbranch_scc1 {o}')
                        A(f'{b}:')
                        self.outofline.append((o, b))
                    if left is None: dma = self.dma(xt, slot)
                if n < sync_at: continue
                rem = nm - n
                if (not self.dbl) and xreads and fb == self.NFB - 1:
                    R.issue(*xreads[tb])
                elif dma and (rem - self.NFB > len(free) + len(free) // 3 or not free):
                    for ln in dma[0]: A(ln)
                    dma = dma[1:]
                elif free:
                    room = max(rem - self.NFB, 1)
                    k = -(-len(free) // room) if rem else len(free)
                    for rd in free[:k]: R.issue(*rd)
                    free = free[k:]
        for rd in free: R.issue(*rd)
        for grp in dma:
            for ln in grp: A(ln)

    def stages(self, xt, orient, lefts):
        par = 0
        for slot, left in enumerate(lefts):
            for s2 in range(self.NSUB):
                self.substep(xt, orient, slot, s2, par, left); par ^= 1
        assert par == 0

    def prologue(self, xt):
        A = self.A
        self.R = R = Reads(A)
        RN = self.R_
        for slot in range(RN):
            for ln in sum(self.dma(xt, slot), []): A(ln)
        for r in range(4 * self.NTB * self.NFB): A(f'v_mov_b32 v{ACC+r}, 0')
        A(f's_waitcnt vmcnt({(RN - 1) * (self.NX + self.NW)})')
        A('s_barrier')
        self.stamp(1)
        for fb in range(self.NFB):
            for rd in self.rd_w(xt, 0, 0, 0, fb): R.issue(*rd)
        for tb in range(self.NTB): R.issue(*self.rd_x(xt, 0, 0, 0, tb))
        R.drain()

    def loop(self, xt, orient, label):
        A, R, RN = self.A, self.R, self.R_
        self.A = R.A = Asm(); keep = list(self.outofline)
        self.stages(xt, orient, [None] * RN)
        self.A = R.A = A; self.outofline = keep
        steady = list(R.q)
        A(f'{label}:')
        self.stages(xt, orient, [None] * RN)
        assert R.q == steady
        A(f's_sub_u32 s{G_NK}, s{G_NK}, 1')
        A(f's_cmp_lg_u32 s{G_NK}, 0')
        A(f's_cbranch_scc1 {label}')

    def tail(self, xt, orient):
        self.stages(xt, orient, list(range(self.R_ - 1, -1, -1)))

    def mainloop(self, xt, orient):
        self.prologue(xt)
        self.loop(xt, orient, self.A.label('kloop'))
        self.tail(xt, orient)
        self.A('s_nop 7')

    def epi_frag(self, orient, silu=False, zero=False):
        A = self.A
        self.wave_ids()
        n = 0
        if orient == 'kq': outer = [(tb, [(self.acc(tb, 2*c), self.acc(tb, 2*c+1), c) for c in range(self.NFB // 2)]) for tb in range(self.NTB)]
        else: outer = [(s, [(self.acc(2*s, fb), self.acc(2*s+1, fb), fb) for fb in range(self.NFB)]) for s in range(self.NTB // 2)]
        A(f's_mul_i32 s{G_TB}, s{G_T1}, {len(outer[0][1]) * 1024}'); A(f's_add_u32 s{G_TB}, s{G_TB}, s{G_OB}')
        A(f's_mul_i32 s{G_T2}, s{G_T0}, {len(outer)}'); A(f's_mul_i32 s{G_T2}, s{G_T2}, s{G_OTS}'); A(f's_add_u32 s{G_T2}, s{G_T2}, s{G_TB}')
        for o, inner in outer:
            if o: A(f's_add_u32 s{G_T2}, s{G_T2}, s{G_OTS}')
            if silu:
                regs = [d + r for (d0, d1, _) in inner for d in (d0, d1) for r in range(4)]
                m = len(regs); P, U = V_T, V_T + 8
                assert m <= 16 and all(regs[i + 1] == regs[i] + 1 for i in range(0, m, 2))
                for p in range(m // 2): A(f'v_cvt_pk_bf16_f32 v{P+p}, v{regs[2*p]}, v{regs[2*p+1]}')
                for p in range(m // 2):
                    A(f'v_lshlrev_b32 v{regs[2*p]}, 16, v{P+p}'); A(f'v_and_b32 v{regs[2*p+1]}, 0xffff0000, v{P+p}')
                for p in range(m // 2): A(f'v_pk_mul_f32 v[{U+2*p}:{U+2*p+1}], v[{regs[2*p]}:{regs[2*p+1]}], s[{G_C0}:{G_C0+1}]')
                for p in range(m): A(f'v_exp_f32 v{U+p}, v{U+p}')
                for p in range(m // 2): A(f'v_pk_add_f32 v[{U+2*p}:{U+2*p+1}], v[{U+2*p}:{U+2*p+1}], 1.0 op_sel_hi:[1,0]')
                for p in range(m): A(f'v_rcp_f32 v{U+p}, v{U+p}')
                for p in range(m // 2): A(f'v_pk_mul_f32 v[{regs[2*p]}:{regs[2*p+1]}], v[{regs[2*p]}:{regs[2*p+1]}], v[{U+2*p}:{U+2*p+1}]')
            for d0, d1, c in inner:
                T = V_T + 24 + 4 * (n % 4); n += 1
                A(f'v_cvt_pk_bf16_f32 v{T}, v{d0}, v{d0+1}'); A(f'v_cvt_pk_bf16_f32 v{T+1}, v{d0+2}, v{d0+3}')
                A(f'v_cvt_pk_bf16_f32 v{T+2}, v{d1}, v{d1+1}'); A(f'v_cvt_pk_bf16_f32 v{T+3}, v{d1+2}, v{d1+3}')
                A(f'buffer_store_dwordx4 v[{T}:{T+3}], v{V_L16}, s[{S_WS}:{S_WS+3}], s{G_T2} offen offset:{c*1024} sc1')
                if zero:
                    for r in list(range(d0, d0 + 4)) + list(range(d1, d1 + 4)): A(f'v_mov_b32 v{r}, 0')

    def epi_final(self):
        A = self.A
        NTB, NC = self.NTB, self.NFB // 2
        self.wave_ids()
        A(f's_mul_i32 s{G_T2}, s{G_T0}, {NTB * 16}'); A(f's_add_u32 s{G_M0}, s{G_M0}, s{G_T2}')
        A(f's_mul_i32 s{G_T2}, s{G_T1}, {self.NFB * 16}'); A(f's_add_u32 s{G_N0}, s{G_N0}, s{G_T2}')
        A(f's_lshl_b32 s{G_T2}, s{G_M0}, 11'); A(f's_lshl_b32 s{G_TB}, s{G_N0}, 5'); A(f's_add_u32 s{G_OB}, s{G_T2}, s{G_TB}')
        A(f's_add_u32 s{G_OB}, s{G_OB}, {hx(BB)}')
        A(f's_lshl_b32 s{G_T2}, s{G_M0}, 2'); A(f's_add_u32 s{G_T2}, s{G_T2}, {hx(GG)}')
        VG, VO, VB = 4, 12, 20
        A('v_and_b32 v2, 15, v1'); A('v_lshlrev_b32 v3, 2, v2')
        for tb in range(NTB):
            A(f'buffer_load_dword v{VG+tb}, v3, s[{S_WS}:{S_WS+3}], s{G_T2} offen offset:{64*tb} sc1')
        def bload(tb):
            for c in range(NC):
                r = VB + 4 * ((tb % 4) * NC + c)
                A(f'buffer_load_dwordx4 v[{r}:{r+3}], v{V_L16}, s[{S_WS}:{S_WS+3}], s{G_OB} offen offset:{1024*c} sc1')
            A(f's_add_u32 s{G_OB}, s{G_OB}, 32768')
        ahead = min(3, NTB)
        for tb in range(ahead): bload(tb)
        A('v_lshlrev_b32 v12, 11, v2'); A('v_bfe_u32 v3, v1, 4, 1'); A('v_lshl_add_u32 v12, v3, 5, v12')
        A('v_lshrrev_b32 v3, 5, v1'); A('v_lshl_add_u32 v12, v3, 4, v12')
        A(f's_lshl_b32 s{G_T2}, s{G_M0}, 11'); A(f's_lshl_b32 s{G_TB}, s{G_N0}, 1'); A(f's_add_u32 s{G_T2}, s{G_T2}, s{G_TB}')
        T = 52
        out = [('g',)] * NTB + sum(([('b', tb)] * NC for tb in range(ahead)), [])
        for tb in range(NTB):
            last = max(i for i, k in enumerate(out) if k == ('b', tb))
            A(f's_waitcnt vmcnt({len(out) - 1 - last})')
            A(f'v_sub_f32 v14, 1.0, v{VG+tb}'); A('v_cvt_pk_bf16_f32 v14, v14, v14'); A('v_and_b32 v14, 0xffff0000, v14')
            A(f'v_mov_b32 v16, v{VG+tb}')
            for c in range(NC):
                d = self.acc(tb, 2 * c); r = VB + 4 * ((tb % 4) * NC + c)
                for p in range(4):
                    a0 = d + 2 * p
                    A(f'v_cvt_pk_bf16_f32 v{T}, v{a0}, v{a0+1}')
                    A(f'v_lshlrev_b32 v{a0}, 16, v{T}'); A(f'v_and_b32 v{a0+1}, 0xffff0000, v{T}')
                    A(f'v_pk_mul_f32 v[{a0}:{a0+1}], v[{a0}:{a0+1}], v[16:17] op_sel_hi:[1,0]')
                    A(f'v_lshlrev_b32 v{T+2}, 16, v{r+p}'); A(f'v_and_b32 v{T+3}, 0xffff0000, v{r+p}')
                    A(f'v_pk_mul_f32 v[{T+2}:{T+3}], v[{T+2}:{T+3}], v[14:15] op_sel_hi:[1,0]')
                    A(f'v_cvt_pk_bf16_f32 v{T}, v{a0}, v{a0+1}'); A(f'v_cvt_pk_bf16_f32 v{T+1}, v{T+2}, v{T+3}')
                    A(f'v_lshlrev_b32 v{a0}, 16, v{T}'); A(f'v_and_b32 v{a0+1}, 0xffff0000, v{T}')
                    A(f'v_lshlrev_b32 v{T+2}, 16, v{T+1}'); A(f'v_and_b32 v{T+3}, 0xffff0000, v{T+1}')
                    A(f'v_pk_add_f32 v[{a0}:{a0+1}], v[{a0}:{a0+1}], v[{T+2}:{T+3}]')
                    A(f'v_cvt_pk_bf16_f32 v{T+4+p}, v{a0}, v{a0+1}')
                A('s_nop 1')
                A(f'v_permlane16_swap_b32 v{T+4}, v{T+6}'); A(f'v_permlane16_swap_b32 v{T+5}, v{T+7}')
                A(f'buffer_store_dwordx4 v[{T+4}:{T+7}], v12, s[{S_OD}:{S_OD+3}], s{G_T2} offen offset:{64*c}')
                out.append(('s', tb))
                A('s_nop 0')
            if tb + ahead < NTB:
                bload(tb + ahead); out += [('b', tb + ahead)] * NC
            A(f's_add_u32 s{G_T2}, s{G_T2}, 32768')
```

```python
KX   = 0x0000000
VX   = 0x1000000
QX   = 0x2000000
HH   = 0x3000000
OO   = 0x4000000
BB   = 0x5000000
KM   = 0x5400000
VM   = 0x5800000
GG   = 0x5C00000
FLG  = 0x5C10000
RA   = 0x5D00000
RB2  = 0x5D40000
RC   = 0x5E00000
RB1  = 0x6000000
RO   = 0x6400000
STAMP= 0x6800000
XF   = 0x7000000
WS_BYTES = 0x10000000
SENT = 0xFFFFFFFF
OOB  = 0x80000000
DBG_TICKET = 0
DBG_INIT   = 8
DBG_VOTE   = 9
DBG_MODE   = 10
DBG_NEXT   = 11
DBG_QUEUE  = 20
DBG_ERR    = 31
CNT  = FLG + 0x4000
C_GATE = 0
C_KV, C_Q, C_H, C_B = 8, 16, 24, 32
C_O      = 40
C_RO     = 104
NRO      = 6
KA_X, KA_MEM0, KA_WQ, KA_WK, KA_WV, KA_WO, KA_SEG, KA_BX, KA_W1, KA_W2, KA_GW, KA_OUT, KA_DBG, KA_WS = [8*i for i in range(14)]
```

```python
from asmlib import *
from layout import *

S_WS, S_T0, S_T1, S_T2, S_DBG = 4, 8, 12, 16, 20
S_X, S_J, S_H, S_B, S_WAVE, S_STEP, S_TO = 24, 25, 26, 27, 28, 29, 31
S_A, S_B2, S_C, S_B1, S_B1BASE, S_KV, S_KM, S_TMP = 32, 33, 34, 35, 36, 37, 38, 39
S_TMP2, S_TMP3 = 40, 41
S_CLR = 42
S_PQ, S_PK, S_PV, S_PM, S_PO = 46, 48, 50, 52, 54
S_TCH, S_TO0, S_TST, S_TRS = 56, 60, 61, 62
S_U = 64
S_ST = 72
NSTEP = 64
TIMEOUT = 1 << 20

L_QK  = 0
QK_WS, QK_RS = 2176, 272
L_V   = 8704
L_S3  = 12800
S3_WS, S3_RS = 1152, 144
L_MISC= 17408
L_KV  = 18432
L_RO  = 32768
L_ST1 = 32768
L_ST3 = 131072

class Rec:
    def __init__(self, A, stamps=False, plain=True, abort='L_abort', opts=(), tag=''):
        self.A, self.stamps, self.abort, self.tag = A, stamps, abort, tag
        self.pl = '' if plain else ' sc1'
        self.opts = set(opts)
        self.kvwait = 'nokvwait' not in self.opts
        self.absstep, self.late, self.cold = 40, (), []
        self.done, self.done_y2 = f'L_rec_done{tag}', f'L_rec_done_y2{tag}'

    def stamp(self, k):
        if self.stamps != 'abs': return
        A = self.A
        A(f's_memrealtime s[{S_ST+2}:{S_ST+3}]'); A('s_waitcnt lgkmcnt(0)')
        A(f's_cmp_eq_u32 s{S_STEP}, {self.absstep + (1 if k in self.late else 0)}')
        A(f's_cselect_b32 s{S_ST+4+k}, s{S_ST+2}, s{S_ST+4+k}')
    def pst(self, k):
        if self.stamps != 'pro': return
        self.A(f's_memrealtime s[{S_ST}:{S_ST+1}]'); self.A('s_waitcnt lgkmcnt(0)'); self.A(f's_mov_b32 s{S_ST+4+k}, s{S_ST}')
    def stamp0(self):
        self.pst(5)
        if self.stamps not in ('abs', 'light'): return
        A = self.A
        for k in range(4, 17): A(f's_mov_b32 s{S_ST+k}, 0')
        A(f's_memrealtime s[{S_ST+2}:{S_ST+3}]'); A(f's_memtime s[{S_ST}:{S_ST+1}]'); A('s_waitcnt lgkmcnt(0)')
        if self.stamps == 'light': A(f's_mov_b32 s{S_ST+4}, s{S_ST+2}'); A(f's_mov_b32 s{S_ST+6}, s98')
    def count_retry(self):
        if self.stamps: self.A(f's_add_u32 s{S_ST+16}, s{S_ST+16}, 1')

    def timeout(self, again):
        A = self.A
        self.count_retry()
        A(f's_add_u32 s{S_TO}, s{S_TO}, 1')
        A(f's_cmp_lt_u32 s{S_TO}, {TIMEOUT}')
        A(f's_cbranch_scc1 {again}')
        A(f's_branch {self.abort}')

    def gather(self, loads, t, name):
        A = self.A
        wait, retry = A.label(name + 'wait'), A.label(name + 'retry')
        for ins, _ in loads: A(ins)
        A(f'{wait}:')
        A('s_waitcnt vmcnt(0)')
        regs = [r for _, r in loads]
        A(f'v_max3_u32 v{t}, v{regs[0]}, v{regs[1]}, v{regs[2]}')
        i = 3
        while i + 1 < len(regs):
            A(f'v_max3_u32 v{t}, v{t}, v{regs[i]}, v{regs[i+1]}'); i += 2
        if i < len(regs): A(f'v_max_u32 v{t}, v{t}, v{regs[i]}')
        A(f'v_cmp_eq_u32 vcc, -1, v{t}')
        A(f's_cbranch_vccnz {retry}')
        def cold():
            A(f'{retry}:')
            for ins, _ in loads: A(ins)
            self.timeout(wait)
        self.cold.append(cold)

    def gather_staged(self, loads, work, name):
        A = self.A
        n = len(loads)
        for ins, _ in loads: A(ins)
        for u, (_, r) in enumerate(loads):
            retry, back = A.label(name + 'retry'), A.label(name + 'back')
            A(f's_waitcnt vmcnt({n - 1 - u})')
            A(f'v_cmp_eq_u32 vcc, -1, v{r}')
            A(f's_cbranch_vccnz {retry}')
            A(f'{back}:')
            work(u)
            def cold(u=u, r=r, retry=retry, back=back):
                A(f'{retry}:')
                for ins, _ in loads[u:]: A(ins)
                A(f's_waitcnt vmcnt({n - 1 - u})')
                A(f'v_cmp_eq_u32 vcc, -1, v{r}')
                A(f's_cbranch_vccz {back}')
                self.timeout(retry)
            self.cold.append(cold)

    def poll_ge(self, srd_, soff, target, sleep=4):
        A = self.A
        loop, ok = A.label('poll'), A.label('pollok')
        A('v_mov_b32 v8, 0')
        A(f's_mov_b32 s{S_TMP3}, {hx(target)}')
        A(f'{loop}:')
        A(f'buffer_load_dword v6, v8, s[{srd_}:{srd_+3}], s{soff} offen sc1')
        A('s_waitcnt vmcnt(0)')
        A(f'v_cmp_le_u32 vcc, s{S_TMP3}, v6')
        A(f's_cbranch_vccnz {ok}')
        A(f's_sleep {sleep}')
        self.timeout(loop)
        A(f'{ok}:')

    def flush_cold(self):
        for f in self.cold: f()
        self.cold = []

    def ring(self, dst, base, step_add, xstride, sstride):
        A = self.A
        A(f's_add_u32 s{S_TMP}, s{S_STEP}, {step_add & 3}'); A(f's_and_b32 s{S_TMP}, s{S_TMP}, 3')
        A(f's_mul_i32 s{S_TMP}, s{S_TMP}, {hx(sstride)}')
        A(f's_mul_i32 s{dst}, s{S_X}, {hx(xstride)}'); A(f's_add_u32 s{dst}, s{dst}, s{S_TMP}'); A(f's_add_u32 s{dst}, s{dst}, {hx(base)}')
    def ringA(self, dst, add): self.ring(dst, RA, add, 65536, 16384)
    def ringB2(self, dst, add): self.ring(dst, RB2, add, 65536, 16384)
    def ringC(self, dst, add): self.ring(dst, RC, add, 262144, 65536)
    def ringB1(self, dst, add):
        A = self.A
        A(f's_add_u32 s{S_TMP}, s{S_STEP}, {add & 3}'); A(f's_and_b32 s{S_TMP}, s{S_TMP}, 3'); A(f's_lshl_b32 s{S_TMP}, s{S_TMP}, 18')
        A(f's_add_u32 s{dst}, s{S_B1BASE}, s{S_TMP}')

    def mask_oob(self, reg, cmp):
        A = self.A
        A(cmp); A(f'v_mov_b32 v6, {hx(OOB)}'); A('s_nop 0'); A(f'v_cndmask_b32 v{reg}, v6, v{reg}, vcc')

    def load_weights(self, stage, between=None):
        A = self.A
        nm = 3 if stage == 1 else 1
        rowb = 8192 if stage == 1 else 2048
        ustep = 256 if stage == 1 else 64
        VG, VL, VT, VG2, VL2 = 4, 5, 12, 10, 11
        SL, SO = S_TMP2, S_KM
        A(f's_and_b32 s{SO}, s{S_J}, 1')
        if stage == 1:
            A(f's_lshl_b32 s{S_TMP}, s{S_H}, 8'); A(f's_and_b32 s{S_TMP3}, s{S_B}, 2'); A(f's_lshl_b32 s{S_TMP3}, s{S_TMP3}, 6'); A(f's_add_u32 s{S_TMP}, s{S_TMP}, s{S_TMP3}')
            A(f's_lshl_b32 s{S_TMP3}, s{S_WAVE}, 19'); A(f's_add_u32 s{S_TMP}, s{S_TMP}, s{S_TMP3}')
            A(f's_mul_i32 s{SL}, s{S_WAVE}, 24576'); A(f's_add_u32 s{SL}, s{SL}, {L_ST1}')
        else:
            A(f's_lshl_b32 s{S_TMP}, s{S_X}, 21')
            A(f's_sub_u32 s{S_TMP3}, s{S_WAVE}, 4'); A(f's_lshl_b32 s{SL}, s{S_TMP3}, 13'); A(f's_add_u32 s{SL}, s{SL}, {L_ST3}')
            A(f's_lshl_b32 s{S_TMP3}, s{S_TMP3}, 19'); A(f's_add_u32 s{S_TMP}, s{S_TMP}, s{S_TMP3}')
            A(f's_lshr_b32 s{S_TMP3}, s{S_J}, 1'); A(f's_lshl_b32 s{S_TMP3}, s{S_TMP3}, 7'); A(f's_add_u32 s{S_TMP}, s{S_TMP}, s{S_TMP3}')
        A(f's_mul_i32 s{S_TMP3}, s{SO}, {32 * rowb}'); A(f's_add_u32 s{S_TMP3}, s{S_TMP3}, s{S_TMP}')
        A(f'v_lshrrev_b32 v{VG}, 3, v1'); A(f'v_mul_u32_u24 v{VG}, {rowb}, v{VG}'); A(f'v_and_b32 v6, 7, v1'); A(f'v_lshl_add_u32 v{VG}, v6, 4, v{VG}')
        A(f'v_add_u32 v{VG}, s{S_TMP3}, v{VG}')
        A(f's_xor_b32 s{S_TMP3}, s{SO}, 1'); A(f's_mul_i32 s{S_TMP3}, s{S_TMP3}, {32 * rowb}'); A(f's_add_u32 s{S_TMP}, s{S_TMP}, s{S_TMP3}')
        A(f's_lshl_b32 s{S_TMP3}, s{SO}, 6'); A(f's_add_u32 s{S_TMP}, s{S_TMP}, s{S_TMP3}')
        A(f'v_lshrrev_b32 v{VG2}, 2, v1'); A(f'v_mul_u32_u24 v{VG2}, {rowb}, v{VG2}'); A(f'v_and_b32 v6, 3, v1'); A(f'v_lshl_add_u32 v{VG2}, v6, 4, v{VG2}')
        A(f'v_add_u32 v{VG2}, s{S_TMP}, v{VG2}')
        A('v_lshrrev_b32 v6, 1, v3'); A('v_and_b32 v7, 1, v3')
        if stage == 1: A('v_lshlrev_b32 v6, 4, v6'); A('v_lshl_add_u32 v6, v7, 2, v6')
        else: A('v_lshlrev_b32 v6, 3, v6'); A('v_lshl_add_u32 v6, v7, 4, v6')
        A('v_lshrrev_b32 v7, 2, v2'); A('v_add_u32 v6, v6, v7'); A('v_and_b32 v7, 3, v2'); A('v_lshlrev_b32 v7, 3, v7')
        A(f'v_lshl_add_u32 v{VL2}, v6, 6, v7'); A(f'v_add_u32 v{VL2}, s{SL}, v{VL2}')
        A(f'v_lshl_add_u32 v{VL}, v6, 7, v7'); A(f's_lshl_b32 s{S_TMP3}, s{SO}, 6'); A(f's_add_u32 s{S_TMP3}, s{S_TMP3}, s{SL}'); A(f'v_add_u32 v{VL}, s{S_TMP3}, v{VL}')
        srds = [S_T0, S_T1, S_T2]
        bufsz = nm * 4096
        def dest(f, d):
            if stage == 3 or f < 8: return ('a', 8 * f + d)
            return ('v', 64 + 8 * (f - 8) + d)
        phr = 8 if stage == 1 else 4
        def body(par):
            def issue(n):
                if n < 4:
                    for m in range(nm):
                        for q in range(4):
                            A(f's_add_u32 m0, s{SL}, {(n & 1) * bufsz + m * 4096 + q * 1024}'); A(f's_mov_b32 s{S_TMP}, {hx((ustep * n + 8 * q) * rowb)}')
                            A(f'buffer_load_dwordx4 v{VG}, s[{srds[m]}:{srds[m]+3}], s{S_TMP} offen lds')
                else:
                    for m in range(nm):
                        for q in range(4):
                            u = 2 * (n - 4) + (q >> 1)
                            A(f's_add_u32 m0, s{SL}, {(n & 1) * bufsz + m * 4096 + q * 1024}'); A(f's_mov_b32 s{S_TMP}, {hx((ustep * u + 16 * (q & 1)) * rowb)}')
                            A(f'buffer_load_dwordx4 v{VG2}, s[{srds[m]}:{srds[m]+3}], s{S_TMP} offen lds')
            issue(0); issue(1)
            for n in range(6):
                if between and n < 4: between(n)
                A(f's_waitcnt vmcnt({4 * nm if n < 5 and not (between and n == 3) else 0})')
                for m in range(nm):
                    jobs = []
                    for uu in ([n] if n < 4 else [2 * (n - 4), 2 * (n - 4) + 1]):
                        for tau in range(2):
                            for ph in range(2):
                                if n < 4: jobs.append((uu, par, tau, ph, VL, (n & 1) * bufsz + m * 4096 + ph * phr * 128 + tau * 32))
                                else: jobs.append((uu, par ^ 1, tau, ph, VL2, (n & 1) * bufsz + m * 4096 + (uu & 1) * 2048 + ph * phr * 64 + tau * 32))
                    for k, (uu, dh, tau, ph, va, off) in enumerate(jobs):
                        A(f'ds_read_b64_tr_b16 v[{VT+2*k}:{VT+2*k+1}], v{va} offset:{off}')
                    A('s_waitcnt lgkmcnt(0)')
                    if m == nm - 1 and n + 2 < 6: issue(n + 2)
                    for k, (uu, dh, tau, ph, va, off) in enumerate(jobs):
                        f = uu * 2 * nm + 2 * m + tau
                        for z in range(2):
                            kind, r = dest(f, 4 * dh + ph + 2 * z)
                            if kind == 'a': A(f'v_accvgpr_write_b32 a{r}, v{VT+2*k+z}')
                            else: A(f'v_mov_b32 v{r}, v{VT+2*k+z}')
        odd, done = A.label('wodd'), A.label('wdone')
        A(f's_cmp_lg_u32 s{SO}, 0'); A(f's_cbranch_scc1 {odd}')
        body(0)
        A(f's_branch {done}')
        A(f'{odd}:')
        body(1)
        A(f'{done}:')
        self.pst(2)

    def wfrag(self, stage, f):
        if stage == 3 or f < 8: return a(8 * f, 8)
        return v(64 + 8 * (f - 8), 8)

    def idx_reg(self, r):
        A = self.A
        A(f'v_and_b32 v{r}, 8, v1'); A(f'v_cmp_eq_u32 vcc, 0, v{r}')
        A(f'v_mov_b32 v{r}, 0xeeee'); A(f'v_mov_b32 v6, 0x4444'); A(f'v_cndmask_b32 v{r}, v{r}, v6, vcc')

    def combine(self, da, db):
        A = self.A
        for r in range(4): A(f'v_permlane32_swap_b32 v{da+r}, v{db+r}')
        for r in (0, 2): A(f'v_pk_add_f32 v[{da+r}:{da+r+1}], v[{da+r}:{da+r+1}], v[{db+r}:{db+r+1}]')
    def pk(self, d, x, y): self.A(f'v_pk_add_f32 v[{d}:{d+1}], v[{x}:{x+1}], v[{y}:{y+1}]')

    def s1(self):
        A = self.A
        VIDX, VG, VWQ, VWV = 4, 5, 7, 8
        VA, VD = 12, 28
        srd(A, S_T0, S_PQ, 1024 * 8192); srd(A, S_T1, S_PK, 1024 * 8192); srd(A, S_T2, S_PV, 1024 * 8192)
        self.load_weights(1)
        self.idx_reg(VIDX)
        srd(A, S_T0, S_PM, 8 * 2048)
        A('v_and_b32 v6, 7, v1'); A('v_lshlrev_b32 v6, 11, v6'); A('v_lshrrev_b32 v9, 3, v1'); A('v_lshl_add_u32 v6, v9, 4, v6')
        A(f's_lshl_b32 s{S_TMP}, s{S_WAVE}, 7'); A(f'v_add_u32 v6, s{S_TMP}, v6')
        for u in range(4):
            A(f'buffer_load_dwordx4 v[{VA+4*u}:{VA+4*u+3}], v6, s[{S_T0}:{S_T0+3}], 0 offen offset:{512*u}')
        A(f's_lshl_b32 s{S_TMP}, s{S_WAVE}, 10'); A(f'v_lshl_add_u32 v{VG}, v1, 4, s{S_TMP}')
        A('v_and_b32 v6, 1, v3'); A(f'v_mul_u32_u24 v{VWQ}, {4*QK_RS}, v6')
        A('v_lshrrev_b32 v6, 5, v1'); A(f'v_lshl_add_u32 v6, v6, 4, v2'); A(f'v_lshl_add_u32 v{VWQ}, v6, 2, v{VWQ}')
        A(f's_mul_i32 s{S_TMP}, s{S_WAVE}, {QK_WS}'); A(f'v_add_u32 v{VWQ}, s{S_TMP}, v{VWQ}')
        A(f's_lshl_b32 s{S_TMP}, s{S_WAVE}, 10'); A(f's_add_u32 s{S_TMP}, s{S_TMP}, {L_V}'); A(f'v_lshl_add_u32 v{VWV}, v1, 4, s{S_TMP}')
        for r in range(24): A(f'v_mov_b32 v{VD+r}, 0')
        A('s_barrier')
        A('s_barrier')
        A('s_waitcnt vmcnt(0)')
        self.stamp0()
        def sm(t, u):
            A(f'v_smfmac_f32_16x16x64_bf16 v[{VD+4*t}:{VD+4*t+3}], v[{VA+4*u}:{VA+4*u+3}], {self.wfrag(1, 6*u+t)}, v{VIDX}')
        def work(u):
            if u == 3: self.stamp(1)
            sm(0, u)
            if u == 3: A('s_barrier')
            sm(1, u); sm(2, u); sm(3, u)
        loop, rest = A.label('s1loop'), A.label('s1rest')
        for u in range(4): work(u)
        A(f's_branch {rest}')
        A(f'{loop}:')
        A('s_barrier')
        self.stamp(0)
        for r in range(24): A(f'v_mov_b32 v{VD+r}, 0')
        self.gather_staged([(f'buffer_load_dwordx4 v[{VA+4*u}:{VA+4*u+3}], v{VG}, s[{S_WS}:{S_WS+3}], s{S_U+u} offen sc1', VA + 4*u + 3)
                            for u in range(4)], work, 'b2')
        A(f'{rest}:')
        sm(4, 0)
        self.combine(VD, VD + 4)
        A(f'ds_write2_b32 v{VWQ}, v{VD}, v{VD+1} offset0:0 offset1:68')
        A(f'ds_write2_b32 v{VWQ}, v{VD+2}, v{VD+3} offset0:136 offset1:204')
        self.combine(VD + 8, VD + 12)
        A(f'ds_write2_b32 v{VWQ}, v{VD+8}, v{VD+9} offset0:32 offset1:100')
        A(f'ds_write2_b32 v{VWQ}, v{VD+10}, v{VD+11} offset0:168 offset1:236')
        sm(5, 0)
        A('s_waitcnt lgkmcnt(0)')
        A('s_barrier')
        for u in range(1, 4): sm(4, u); sm(5, u)
        self.stamp(2)
        A('s_nop 7')
        self.combine(VD + 16, VD + 20)
        A(f'ds_write_b128 v{VWV}, v[{VD+16}:{VD+19}]')
        A('s_waitcnt lgkmcnt(0)')
        A('s_barrier')
        A(f's_cmp_eq_u32 s{S_STEP}, {NSTEP-1}'); A(f's_cbranch_scc1 {self.done}')
        A(f's_add_u32 s{S_STEP}, s{S_STEP}, 1')
        self.ringB2(S_U, 0)
        for u in range(1, 4): A(f's_add_u32 s{S_U+u}, s{S_U}, {4096*u}')
        A('s_barrier')
        A('s_barrier')
        self.stamp(3)
        A(f's_branch {loop}')
        self.flush_cold()

    def s3_setup(self, between=None):
        A = self.A
        srd(A, S_T0, S_PO, 4096 * 2048)
        self.load_weights(3, between)
        self.idx_reg(4)
        A(f's_sub_u32 s{S_TMP2}, s{S_WAVE}, 4'); A(f's_lshl_b32 s{S_TMP}, s{S_TMP2}, 12'); A(f'v_lshl_add_u32 v5, v1, 4, s{S_TMP}')
        A('v_and_b32 v6, 1, v3'); A(f'v_mul_u32_u24 v7, {4*S3_RS}, v6')
        A('v_lshrrev_b32 v6, 5, v1'); A(f'v_lshl_add_u32 v6, v6, 4, v2'); A(f'v_lshl_add_u32 v7, v6, 2, v7')
        A(f's_mul_i32 s{S_TMP}, s{S_TMP2}, {S3_WS}'); A(f's_add_u32 s{S_TMP}, s{S_TMP}, {L_S3}'); A(f'v_add_u32 v7, s{S_TMP}, v7')

    def s3_body(self, st):
        A = self.A
        VA, VD = 12, 28
        for r in range(8): A(f'v_mov_b32 v{VD+r}, 0')
        def work(u):
            if u == 3: self.stamp(st)
            for t in range(2):
                A(f'v_smfmac_f32_16x16x64_bf16 v[{VD+4*t}:{VD+4*t+3}], v[{VA+4*u}:{VA+4*u+3}], {self.wfrag(3, 2*u+t)}, v4')
        self.gather_staged([(f'buffer_load_dwordx4 v[{VA+4*u}:{VA+4*u+3}], v5, s[{S_WS}:{S_WS+3}], s{S_A} offen offset:{1024*u} sc1', VA + 4*u + 3)
                            for u in range(4)], work, 'a')
        A('s_nop 7')
        self.combine(VD, VD + 4)
        A(f'ds_write2_b32 v7, v{VD}, v{VD+1} offset0:0 offset1:36')
        A(f'ds_write2_b32 v7, v{VD+2}, v{VD+3} offset0:72 offset1:108')
        A('s_waitcnt lgkmcnt(0)')
        A('s_barrier')
        self.stamp(st + 1)

    def w4(self):
        A, pk = self.A, self.pk
        VRQ, VCX, VCM, VG1, VG2, VG3, VGM, VRV, VAO, VLN = 36, 37, 38, 39, 40, 41, 42, 43, 44, 45
        KX0, KX1, VX0, VX1 = 48, 52, 56, 60
        P, RR, D0, D1, DM, G = 64, 96, 100, 104, 108, 112
        VM0, VM1, ONE, BX, BM = 128, 130, 132, 136, 140
        O0, O1, SU, T = 144, 148, 152, 156
        SC, SJ = 46, 48
        self.s3_setup()
        A('v_and_b32 v6, 7, v2'); A(f'v_mul_u32_u24 v{VRQ}, {QK_RS}, v6')
        A('v_lshrrev_b32 v6, 3, v2'); A(f'v_lshl_add_u32 v{VRQ}, v6, 7, v{VRQ}'); A(f'v_lshl_add_u32 v{VRQ}, v3, 4, v{VRQ}')
        A(f's_lshl_b32 s{S_TMP}, s{S_J}, 11'); A(f'v_lshl_add_u32 v{VCX}, v1, 4, s{S_TMP}')
        for k, r in ((1, VG1), (2, VG2), (3, VG3)):
            A(f's_xor_b32 s{S_TMP2}, s{S_J}, {k}'); A(f's_lshl_b32 s{S_TMP2}, s{S_TMP2}, 11'); A(f'v_lshl_add_u32 v{r}, v1, 4, s{S_TMP2}')
        A('v_and_b32 v6, 1, v3'); A('v_lshlrev_b32 v6, 3, v6'); A('v_add_u32 v6, v6, v2')
        A(f's_add_u32 s{S_TMP2}, s{S_TMP}, 1024'); A(f'v_lshl_add_u32 v{VCM}, v6, 4, s{S_TMP2}')
        A('v_and_b32 v6, 0x28, v1'); self.mask_oob(VCM, 'v_cmp_eq_u32 vcc, 0x20, v6')
        A(f'v_lshlrev_b32 v6, 4, v2'); A(f'v_lshl_add_u32 v6, v3, 2, v6'); A(f'v_add_u32 v{VGM}, 1024, v6'); A(f'v_add_u32 v{VRV}, {L_V}, v6')
        A(f'v_lshlrev_b32 v6, 7, v3'); A(f'v_lshl_add_u32 v6, v2, 4, v6'); A(f's_lshl_b32 s{S_TMP}, s{S_J}, 9'); A(f'v_add_u32 v{VAO}, s{S_TMP}, v6')
        self.mask_oob(VAO, 'v_cmp_gt_u32 vcc, 8, v2')
        A(f'v_lshlrev_b32 v{VLN}, 4, v1')
        for r in range(4): A(f'v_mov_b32 v{ONE+r}, 0x3f803f80')
        A(f'v_mov_b32 v{VM0+1}, 0'); A(f'v_mov_b32 v{VM1+1}, 0'); A(f'v_mov_b32 v{BM+1}, 0')
        A(f's_mov_b32 s{SC}, 0x3e0293ee')
        for k in range(4): A(f's_xor_b32 s{SJ+k}, s{S_J}, {k}'); A(f's_lshl_b32 s{SJ+k}, s{SJ+k}, 11')
        A('s_barrier')
        A('s_barrier')
        self.stamp0()
        loop = A.label('w4loop')
        A(f'{loop}:')
        A(f's_and_b32 s{S_TMP}, s{S_STEP}, 1'); A(f's_lshl_b32 s{S_TMP}, s{S_TMP}, 12'); A(f'v_add_u32 v6, s{S_TMP}, v{VLN}')
        for k, r in enumerate((KX0, KX1, VX0, VX1)): A(f'ds_read_b128 v[{r}:{r+3}], v6 offset:{L_KV + 1024*k}')
        self.ringC(S_C, 0); self.ringA(S_A, 0)
        for k in range(4): A(f's_add_u32 s{S_U+k}, s{SJ+k}, s{S_C}')
        A('s_waitcnt lgkmcnt(0)')
        A('s_barrier')
        A(f's_cmp_eq_u32 s{S_STEP}, {NSTEP-1}'); A(f's_cbranch_scc1 {self.done_y2}_y')
        A('s_barrier')
        self.stamp(0)
        for w in range(4):
            A(f'ds_read_b128 v[{P+8*w}:{P+8*w+3}], v{VRQ} offset:{L_QK + w*QK_WS}')
            A(f'ds_read_b128 v[{P+8*w+4}:{P+8*w+7}], v{VRQ} offset:{L_QK + w*QK_WS + 64}')
        A('s_waitcnt lgkmcnt(4)')
        for r in range(0, 8, 2): pk(P + r, P + r, P + 8 + r)
        A('s_waitcnt lgkmcnt(2)')
        for r in range(0, 8, 2): pk(P + r, P + r, P + 16 + r)
        A('s_waitcnt lgkmcnt(0)')
        for r in range(0, 8, 2): pk(P + r, P + r, P + 24 + r)
        for r in range(4): A(f'v_cvt_pk_bf16_f32 v{RR+r}, v{P+2*r}, v{P+2*r+1}')
        A('s_nop 1')
        A(f'v_mfma_f32_16x16x32_bf16 v[{D1}:{D1+3}], v[{KX1}:{KX1+3}], v[{RR}:{RR+3}], 0')
        A(f'v_mfma_f32_16x16x32_bf16 v[{D0}:{D0+3}], v[{KX0}:{KX0+3}], v[{RR}:{RR+3}], 0')
        A(f'v_mfma_f32_16x16x32_bf16 v[{DM}:{DM+3}], v[{RR}:{RR+3}], v[{RR}:{RR+3}], 0')
        A('s_nop 6')
        for r in range(4): A(f'v_mov_b32_dpp v{D0+r}, v{D1+r} row_shr:8 row_mask:0xf bank_mask:0xc')
        A(f'buffer_store_dwordx4 v[{D0}:{D0+3}], v{VCX}, s[{S_WS}:{S_WS+3}], s{S_C} offen{self.pl}')
        A(f'buffer_store_dwordx4 v[{DM}:{DM+3}], v{VCM}, s[{S_WS}:{S_WS+3}], s{S_C} offen{self.pl}')
        self.stamp(1)
        A('s_barrier')
        for w in range(4):
            for t in range(2):
                A(f'ds_read2st64_b32 v[{P+4*w+2*t}:{P+4*w+2*t+1}], v{VRV} offset0:{4*w+2*t} offset1:{4*w+2*t+1}')
        A('s_waitcnt lgkmcnt(0)')
        pk(P, P, P + 4); pk(P + 2, P + 2, P + 6); pk(P + 8, P + 8, P + 12); pk(P + 10, P + 10, P + 14)
        pk(P, P, P + 8); pk(P + 2, P + 2, P + 10)
        A(f'v_cvt_pk_bf16_f32 v{VM0}, v{P}, v{P+1}'); A(f'v_cvt_pk_bf16_f32 v{VM1}, v{P+2}, v{P+3}')
        cl = [(f'buffer_load_dwordx4 v[{G+4*k}:{G+4*k+3}], v{r}, s[{S_WS}:{S_WS+3}], s{S_C} offen sc1', G + 4*k + 3) for k, r in enumerate((VG1, VG2, VG3))]
        cl += [(f'buffer_load_dword v{G+12+k}, v{VGM}, s[{S_WS}:{S_WS+3}], s{S_U+k} offen sc1', G + 12 + k) for k in range(4)]
        self.gather(cl, 9, 'c')
        self.stamp(2)
        SM = G + 12
        pk(G + 4, G + 4, G + 8); pk(G + 6, G + 6, G + 10); pk(D0, D0, G); pk(D0 + 2, D0 + 2, G + 2)
        pk(SM, SM, G + 14)
        pk(D0, D0, G + 4); pk(D0 + 2, D0 + 2, G + 6)
        A(f'v_add_f32 v{SM}, v{SM}, v{SM+1}')
        A(f'v_max3_f32 v{T}, v{D0}, v{D0+1}, v{D0+2}')
        A(f'v_max3_f32 v{T}, v{T}, v{D0+3}, v{SM}')
        A('s_nop 1')
        A(f'v_max_f32_dpp v{T+1}, v{T}, v{T} row_ror:8 row_mask:0xf bank_mask:0xf')
        A(f'v_max_f32_dpp v{T}, v{T}, v{T} row_ror:8 row_mask:0xf bank_mask:0xf')
        A('s_nop 1')
        A(f'v_permlane16_swap_b32 v{T}, v{T+1}')
        A(f'v_max_f32 v{T+2}, v{T}, v{T+1}'); A(f'v_max_f32 v{T+1}, v{T}, v{T+1}')
        A('s_nop 1')
        A(f'v_permlane32_swap_b32 v{T+2}, v{T+1}')
        A(f'v_max_f32 v{T}, v{T+2}, v{T+1}')
        A(f'v_mul_f32 v{T}, s{SC}, v{T}')
        A(f'v_fma_f32 v{SM}, v{SM}, s{SC}, -v{T}')
        for r in range(4): A(f'v_fma_f32 v{D0+r}, v{D0+r}, s{SC}, -v{T}')
        A(f'v_exp_f32 v{SM}, v{SM}')
        for r in range(4): A(f'v_exp_f32 v{D0+r}, v{D0+r}')
        A(f'v_mov_b32_dpp v{T+1}, v{SM} row_shl:8 row_mask:0xf bank_mask:0xf')
        A(f'v_cvt_pk_bf16_f32 v{BX}, v{D0}, v{D0+1}')
        A(f'v_cvt_pk_bf16_f32 v{BX+1}, v{D0+2}, v{D0+3}')
        A(f'v_cvt_pk_bf16_f32 v{BM}, v{SM}, v{T+1}')
        A(f'v_mov_b32_dpp v{BX+2}, v{BX} row_shl:8 row_mask:0xf bank_mask:0xf')
        A(f'v_mov_b32_dpp v{BX+3}, v{BX+1} row_shl:8 row_mask:0xf bank_mask:0xf')
        A(f'v_mfma_f32_16x16x16_bf16 v[{SU}:{SU+3}], v[{ONE}:{ONE+1}], v[{BM}:{BM+1}], 0')
        A(f'v_mfma_f32_16x16x16_bf16 v[{O0}:{O0+3}], v[{VM0}:{VM0+1}], v[{BM}:{BM+1}], 0')
        A(f'v_mfma_f32_16x16x16_bf16 v[{O1}:{O1+3}], v[{VM1}:{VM1+1}], v[{BM}:{BM+1}], 0')
        A(f'v_mfma_f32_16x16x32_bf16 v[{SU}:{SU+3}], v[{ONE}:{ONE+3}], v[{BX}:{BX+3}], v[{SU}:{SU+3}]')
        A(f'v_mfma_f32_16x16x32_bf16 v[{O0}:{O0+3}], v[{VX0}:{VX0+3}], v[{BX}:{BX+3}], v[{O0}:{O0+3}]')
        A(f'v_mfma_f32_16x16x32_bf16 v[{O1}:{O1+3}], v[{VX1}:{VX1+3}], v[{BX}:{BX+3}], v[{O1}:{O1+3}]')
        A('s_nop 5')
        A(f'v_rcp_f32 v{T}, v{SU}')
        A('s_nop 0')
        for o in (O0, O1):
            for r in (0, 2): A(f'v_pk_mul_f32 v[{o+r}:{o+r+1}], v[{o+r}:{o+r+1}], v[{T}:{T+1}] op_sel_hi:[1,0]')
        for r in range(4): A(f'v_cvt_pk_bf16_f32 v{RR+r}, v{O0+2*r}, v{O0+2*r+1}')
        A(f'buffer_store_dwordx4 v[{RR}:{RR+3}], v{VAO}, s[{S_WS}:{S_WS+3}], s{S_A} offen{self.pl}')
        A('s_barrier')
        self.stamp(3)
        self.s3_body(4)
        A(f's_add_u32 s{S_STEP}, s{S_STEP}, 1')
        A('s_barrier')
        self.stamp(6)
        A(f's_branch {loop}')
        self.flush_cold()

    def kv_prefetch(self, add, VK, VV):
        A = self.A
        A(f's_add_u32 s{S_TMP}, s{S_STEP}, {add}'); A(f's_min_u32 s{S_KV}, s{S_TMP}, {NSTEP-1}'); A(f's_lshl_b32 s{S_KV}, s{S_KV}, 18')
        A(f's_and_b32 s{S_TMP}, s{S_TMP}, 1'); A(f's_lshl_b32 s{S_TMP}, s{S_TMP}, 12')
        for k, r in enumerate((VK, VK + 1, VV, VV + 1)):
            A(f's_add_u32 m0, s{S_TMP}, {L_KV + 1024*k}'); A('s_nop 0')
            A(f'buffer_load_dwordx4 v{r}, s[{S_WS}:{S_WS+3}], s{S_KV} offen sc1 lds')

    def progress_addr(self, reg, base):
        A = self.A
        A(f's_lshl_b32 s{S_TMP}, s{S_X}, 5'); A(f's_add_u32 s{S_TMP}, s{S_TMP}, s{S_J}'); A(f's_lshl_b32 s{S_TMP}, s{S_TMP}, 7')
        A(f's_add_u32 s{S_TMP}, s{S_TMP}, {hx(base)}'); A(f'v_mov_b32 v{reg}, s{S_TMP}')
        self.mask_oob(reg, 'v_cmp_eq_u32 vcc, 0, v1')

    def w5(self):
        A, pk = self.A, self.pk
        VK, VV, VRK, VRV, VKM, VVM, VPR = 36, 38, 40, 41, 42, 43, 44
        P, PV, OK_, OV = 48, 80, 96, 100
        self.s3_setup()
        A(f's_lshl_b32 s{S_TMP2}, s{S_H}, 12'); A(f's_lshl_b32 s{S_TMP}, s{S_B}, 10'); A(f's_add_u32 s{S_TMP2}, s{S_TMP2}, s{S_TMP}')
        A(f'v_lshl_add_u32 v{VK}, v1, 4, s{S_TMP2}'); A(f'v_add_u32 v{VK+1}, 131072, v{VK}')
        A(f's_lshl_b32 s{S_TMP2}, s{S_TMP2}, 1'); A(f's_add_u32 s{S_TMP2}, s{S_TMP2}, {hx(VX)}')
        A(f'v_lshl_add_u32 v{VV}, v1, 4, s{S_TMP2}'); A(f'v_add_u32 v{VV+1}, 1024, v{VV}')
        assert KX == 0
        A('v_and_b32 v6, 7, v1'); A(f'v_mul_u32_u24 v{VRK}, {QK_RS}, v6'); A(f'v_add_u32 v{VRK}, 128, v{VRK}')
        A('v_bfe_u32 v6, v1, 3, 2'); A(f'v_lshl_add_u32 v{VRK}, v6, 4, v{VRK}')
        A(f's_lshl_b32 s{S_TMP2}, s{S_H}, 11'); A(f's_lshl_b32 s{S_TMP}, s{S_B}, 9'); A(f's_add_u32 s{S_TMP2}, s{S_TMP2}, s{S_TMP}')
        A(f's_add_u32 s{S_TMP}, s{S_TMP2}, {hx(KM)}'); A(f'v_lshl_add_u32 v{VKM}, v1, 4, s{S_TMP}')
        self.mask_oob(VKM, 'v_cmp_gt_u32 vcc, 32, v1')
        A(f'v_lshlrev_b32 v{VRV}, 4, v1'); A(f'v_add_u32 v{VRV}, {L_V}, v{VRV}')
        A(f's_add_u32 s{S_TMP}, s{S_TMP2}, {hx(VM)}'); A(f'v_lshl_add_u32 v{VVM}, v1, 3, s{S_TMP}')
        self.progress_addr(VPR, FLG)
        if self.kvwait:
            A(f's_mov_b32 s{S_TMP2}, {4*DBG_INIT}'); self.poll_ge(S_DBG, S_TMP2, 256)
            A(f's_mov_b32 s{S_TMP2}, {hx(CNT + 128*C_KV)}'); self.poll_ge(S_WS, S_TMP2, 128)
        self.kv_prefetch(0, VK, VV); self.kv_prefetch(1, VK, VV)
        A('s_waitcnt vmcnt(0)')
        A('s_barrier')
        A('s_barrier')
        self.stamp0()
        def prepare():
            for w in range(4):
                A(f'ds_read_b128 v[{P+8*w}:{P+8*w+3}], v{VRK} offset:{L_QK + w*QK_WS}')
                A(f'ds_read_b128 v[{P+8*w+4}:{P+8*w+7}], v{VRK} offset:{L_QK + w*QK_WS + 64}')
            for w in range(4): A(f'ds_read_b128 v[{PV+4*w}:{PV+4*w+3}], v{VRV} offset:{1024*w}')
            A(f's_lshl_b32 s{S_KM}, s{S_STEP}, 16')
            A('s_waitcnt lgkmcnt(0)')
            for q in (8, 16, 24):
                for r in range(0, 8, 2): pk(P + r, P + r, P + q + r)
            for r in range(4): A(f'v_cvt_pk_bf16_f32 v{OK_+r}, v{P+2*r}, v{P+2*r+1}')
            for q in (4, 8, 12): pk(PV, PV, PV + q); pk(PV + 2, PV + 2, PV + q + 2)
            A(f'v_cvt_pk_bf16_f32 v{OV}, v{PV}, v{PV+1}'); A(f'v_cvt_pk_bf16_f32 v{OV+1}, v{PV+2}, v{PV+3}')
        def publish():
            A(f'buffer_store_dwordx4 v[{OK_}:{OK_+3}], v{VKM}, s[{S_WS}:{S_WS+3}], s{S_KM} offen sc1')
            A(f'buffer_store_dwordx2 v[{OV}:{OV+1}], v{VVM}, s[{S_WS}:{S_WS+3}], s{S_KM} offen sc1')
        def progress(val):
            A(f'v_mov_b32 v6, {val}'); A(f'buffer_store_dword v6, v{VPR}, s[{S_WS}:{S_WS+3}], 0 offen sc1')
        loop, last, first = A.label('w5loop'), A.label('w5last'), A.label('w5first')
        A('s_barrier')
        A(f's_branch {first}')
        A(f'{loop}:')
        A('s_barrier')
        A(f's_sub_u32 s{S_TMP}, s{S_STEP}, 1')
        if 'nokm' not in self.opts:
            progress(f's{S_TMP}')
            publish()
        if self.kvwait:
            skip = A.label('kvok')
            A(f's_add_u32 s{S_TMP2}, s{S_STEP}, 1'); A(f's_and_b32 s{S_TMP}, s{S_TMP2}, 0x47')
            A(f's_cmp_lg_u32 s{S_TMP}, 0'); A(f's_cbranch_scc1 {skip}')
            A(f's_lshl_b32 s{S_TMP2}, s{S_TMP2}, 4'); A(f's_add_u32 s{S_TMP2}, s{S_TMP2}, {hx(CNT + 128*C_KV)}')
            self.poll_ge(S_WS, S_TMP2, 128)
            A(f'{skip}:')
        if 'nokv' not in self.opts: self.kv_prefetch(1, VK, VV)
        A(f'{first}:')
        self.ringA(S_A, 0)
        A('s_barrier')
        A('s_barrier')
        prepare()
        A(f's_cmp_eq_u32 s{S_STEP}, {NSTEP-1}'); A(f's_cbranch_scc1 {last}')
        A('s_barrier')
        self.stamp(3)
        self.s3_body(4)
        A(f's_add_u32 s{S_STEP}, s{S_STEP}, 1')
        A('s_barrier')
        self.stamp(6)
        A(f's_branch {loop}')
        A(f'{last}:')
        publish()
        A('s_waitcnt vmcnt(0)')
        progress(NSTEP)
        A(f's_branch {self.done}')
        self.flush_cold()

    def b1_offsets(self, regs):
        A = self.A
        A(f's_lshr_b32 s{S_TMP2}, s{S_J}, 3'); A(f's_lshl_b32 s{S_TMP2}, s{S_TMP2}, 14')
        A(f's_and_b32 s{S_TMP}, s{S_J}, 7'); A(f's_lshl_b32 s{S_TMP}, s{S_TMP}, 10'); A(f's_add_u32 s{S_TMP2}, s{S_TMP2}, s{S_TMP}')
        for k, r in enumerate(regs):
            A(f's_xor_b32 s{S_TMP}, s{S_X}, {k}'); A(f's_lshl_b32 s{S_TMP}, s{S_TMP}, 16'); A(f's_add_u32 s{S_TMP}, s{S_TMP}, s{S_TMP2}')
            A(f'v_lshl_add_u32 v{r}, v1, 4, s{S_TMP}')

    def w6(self):
        A, pk = self.A, self.pk
        VR, VB, VM2 = 36, 37, 41
        P, G, O = 48, 64, 76
        self.s3_setup()
        A('v_and_b32 v6, 7, v1'); A(f'v_mul_u32_u24 v{VR}, {S3_RS}, v6'); A('v_lshrrev_b32 v8, 3, v1'); A(f'v_lshl_add_u32 v{VR}, v8, 4, v{VR}')
        self.b1_offsets([VB, VB + 1, VB + 2, VB + 3])
        A(f'v_lshlrev_b32 v{VM2}, 4, v6'); A(f'v_lshrrev_b32 v9, 1, v8'); A(f'v_lshl_add_u32 v{VM2}, v9, 7, v{VM2}')
        A(f'v_and_b32 v9, 1, v8'); A(f'v_lshl_add_u32 v{VM2}, v9, 3, v{VM2}')
        A(f's_lshl_b32 s{S_TMP}, s{S_J}, 9'); A(f'v_add_u32 v{VM2}, s{S_TMP}, v{VM2}')
        A('s_barrier')
        A('s_barrier')
        A(f'v_mov_b32 v6, {L_MISC+8}'); A('ds_read_b32 v6, v6'); A('s_waitcnt lgkmcnt(0)')
        A(f'v_readfirstlane_b32 s{S_TMP}, v6'); A('s_nop 3'); A(f's_add_u32 s{S_B1BASE}, s{S_B1BASE}, s{S_TMP}')
        self.stamp0()
        loop = A.label('w6loop')
        A(f'{loop}:')
        self.ringA(S_A, 0); self.ringB2(S_B2, 1); self.ringB1(S_B1, 0)
        A('s_barrier')
        A('s_barrier')
        A('s_barrier')
        A(f's_cmp_eq_u32 s{S_STEP}, {NSTEP-1}'); A(f's_cbranch_scc1 {self.done}')
        A('s_barrier')
        self.stamp(3)
        self.s3_body(4)
        for w in range(4): A(f'ds_read_b128 v[{P+4*w}:{P+4*w+3}], v{VR} offset:{L_S3 + w*S3_WS}')
        A('s_waitcnt lgkmcnt(2)')
        pk(P, P, P + 4); pk(P + 2, P + 2, P + 6)
        A('s_waitcnt lgkmcnt(0)')
        pk(P + 8, P + 8, P + 12); pk(P + 10, P + 10, P + 14)
        pk(P, P, P + 8); pk(P + 2, P + 2, P + 10)
        A(f'buffer_store_dwordx4 v[{P}:{P+3}], v{VB}, s[{S_WS}:{S_WS+3}], s{S_B1} offen sc1')
        self.stamp(6)
        A('s_waitcnt vmcnt(0)')
        self.gather([(f'buffer_load_dwordx4 v[{G+4*k}:{G+4*k+3}], v{VB+1+k}, s[{S_WS}:{S_WS+3}], s{S_B1} offen sc1', G + 4*k + 3) for k in range(3)], 9, 'b1')
        self.stamp(7)
        pk(G + 4, G + 4, G + 8); pk(G + 6, G + 6, G + 10); pk(P, P, G); pk(P + 2, P + 2, G + 2)
        pk(P, P, G + 4); pk(P + 2, P + 2, G + 6)
        A(f'v_cvt_pk_bf16_f32 v{O}, v{P}, v{P+1}'); A(f'v_cvt_pk_bf16_f32 v{O+1}, v{P+2}, v{P+3}')
        A(f'buffer_store_dwordx2 v[{O}:{O+1}], v{VM2}, s[{S_WS}:{S_WS+3}], s{S_B2} offen{self.pl}')
        A(f's_add_u32 s{S_STEP}, s{S_STEP}, 1')
        A('s_barrier')
        self.stamp(8)
        A(f's_branch {loop}')
        self.flush_cold()

    def w7(self):
        A = self.A
        VS, VA_, VC0, VC1, VB, VRO = 36, 40, 41, 42, 43, 44
        PM = 68
        for r in range(4): A(f'v_mov_b32 v{VS+r}, -1')
        A(f's_lshl_b32 s{S_TMP}, s{S_J}, 9'); A(f'v_lshl_add_u32 v{VA_}, v1, 4, s{S_TMP}')
        self.mask_oob(VA_, 'v_cmp_gt_u32 vcc, 32, v1')
        A(f's_lshl_b32 s{S_TMP}, s{S_J}, 11'); A(f'v_lshl_add_u32 v{VC0}, v1, 4, s{S_TMP}'); A(f'v_add_u32 v{VC1}, 1024, v{VC0}')
        self.b1_offsets([VB])
        def clr(sreg, vreg, pol, off=0):
            A(f'buffer_store_dwordx4 v[{VS}:{VS+3}], v{vreg}, s[{S_WS}:{S_WS+3}], s{sreg} offen{pol}')
        def dbg_add(val, word):
            A(f'v_mov_b32 v9, {val}'); A(f'v_mov_b32 v8, {4*word}')
            self.mask_oob(8, 'v_cmp_eq_u32 vcc, 0, v1')
            A(f'buffer_atomic_add v9, v8, s[{S_DBG}:{S_DBG+3}], 0 offen')
        self.pst(3)
        A(f's_mov_b32 s{PM}, -1'); A(f's_mov_b32 s{PM+1}, -1')
        def probe(u):
            if u == 3:
                A(f's_cmp_lt_u32 s{PM+1}, s{PM}'); A(f's_cselect_b32 s{S_TMP}, 1, 0'); A(f's_or_b32 s{S_TMP}, s{S_TMP}, 0x10000')
                dbg_add(f's{S_TMP}', DBG_VOTE)
                self.pst(4)
                return
            for par in range(2):
                A(f's_lshl_b32 s{S_TMP}, s{S_X}, 5'); A(f's_add_u32 s{S_TMP}, s{S_TMP}, s{S_J}')
                A(f's_and_b32 s{S_TMP3}, s{S_TMP}, 63'); A(f's_lshl_b32 s{S_TMP3}, s{S_TMP3}, 7')
                A(f's_lshr_b32 s{S_TMP}, s{S_TMP}, 6'); A(f's_lshl_b32 s{S_TMP}, s{S_TMP}, 14'); A(f's_add_u32 s{S_TMP}, s{S_TMP}, s{S_TMP3}')
                A(f's_add_u32 s{S_TMP}, s{S_TMP}, s{S_B1BASE}'); A(f's_add_u32 s{S_TMP}, s{S_TMP}, {0x100000 + u * 0x8000 + par * 8192}')
                A(f's_add_u32 s{PM+2}, s{S_WS}, s{S_TMP}'); A(f's_addc_u32 s{PM+3}, s{S_WS+1}, 0')
                A(f's_memtime s[{S_CLR}:{S_CLR+1}]'); A('s_waitcnt lgkmcnt(0)')
                A(f's_load_dword s{S_TMP}, s[{PM+2}:{PM+3}], 0'); A('s_waitcnt lgkmcnt(0)')
                A(f's_memtime s[{S_CLR+2}:{S_CLR+3}]'); A('s_waitcnt lgkmcnt(0)')
                A(f's_sub_u32 s{S_CLR+2}, s{S_CLR+2}, s{S_CLR}'); A(f's_min_u32 s{PM+par}, s{PM+par}, s{S_CLR+2}')
        self.s3_setup(probe)
        A('s_barrier')
        A(f's_mov_b32 s{S_TMP2}, {4*DBG_INIT}'); self.poll_ge(S_DBG, S_TMP2, 256, sleep=1)
        A(f's_mov_b32 s{S_TMP2}, {4*DBG_VOTE}'); self.poll_ge(S_DBG, S_TMP2, 128 << 16, sleep=1)
        A(f'v_readfirstlane_b32 s{S_TMP2}, v6'); A('s_nop 3')
        A(f's_and_b32 s{S_TMP2}, s{S_TMP2}, 0xffff'); A(f's_cmp_gt_u32 s{S_TMP2}, 64'); A(f's_cselect_b32 s{S_TMP}, 8192, 0')
        if 'par0' in self.opts: A(f's_mov_b32 s{S_TMP}, 0')
        if 'par1' in self.opts: A(f's_mov_b32 s{S_TMP}, 8192')
        A(f'v_mov_b32 v6, s{S_TMP}'); A(f'v_mov_b32 v8, {L_MISC+8}'); A('ds_write_b32 v8, v6'); A('s_waitcnt lgkmcnt(0)')
        A('s_barrier')
        A(f's_add_u32 s{S_B1BASE}, s{S_B1BASE}, s{S_TMP}')
        A(f'v_lshlrev_b32 v{VRO}, 4, v1')
        A(f's_lshl_b32 s{S_U}, s{S_X}, 15'); A(f's_lshl_b32 s{S_TMP}, s{S_J}, 10'); A(f's_add_u32 s{S_U}, s{S_U}, s{S_TMP}'); A(f's_add_u32 s{S_U}, s{S_U}, {hx(RO)}')
        self.stamp0()
        loop = A.label('w7loop')
        A(f'{loop}:')
        self.ringA(S_A, 0); self.ringA(S_CLR, -1); self.ringC(S_CLR + 1, -1); self.ringB2(S_CLR + 2, -1); self.ringB1(S_CLR + 3, -2)
        A('s_barrier')
        if NRO:
            nc = A.label('noro')
            A(f's_cmp_ge_u32 s{S_STEP}, {4*NRO}'); A(f's_cbranch_scc1 {nc}')
            A(f's_lshl_b32 s{S_TMP}, s{S_STEP}, 17'); A(f's_add_u32 s{S_TMP}, s{S_TMP}, s{S_U}')
            A(f'buffer_store_dwordx4 v[{VS}:{VS+3}], v{VRO}, s[{S_WS}:{S_WS+3}], s{S_TMP} offen sc1')
            A(f'{nc}:')
        clr(S_CLR + 3, VB, ' sc1'); clr(S_CLR, VA_, self.pl); clr(S_CLR + 1, VC0, self.pl); clr(S_CLR + 1, VC1, self.pl); clr(S_CLR + 2, VA_, self.pl)
        A('s_barrier')
        A('s_barrier')
        A(f's_cmp_eq_u32 s{S_STEP}, {NSTEP-1}'); A(f's_cbranch_scc1 {self.done}')
        A('s_barrier')
        self.stamp(3)
        self.s3_body(4)
        A(f's_add_u32 s{S_STEP}, s{S_STEP}, 1')
        A('s_barrier')
        self.stamp(6)
        A(f's_branch {loop}')
        self.flush_cold()

    def final_rows(self):
        A, pk = self.A, self.pk
        fin, out = A.label('rofin'), A.label('roout')
        A(f's_mov_b32 s{S_STEP}, 0')
        A(f's_cmp_lt_u32 s{S_WAVE}, 4'); A(f's_cbranch_scc1 {fin}')
        VO, VA, VD, VW = 36, 64, 128, 38
        A('v_lshrrev_b32 v6, 5, v1'); A(f'v_lshlrev_b32 v{VO}, 10, v6'); A('v_bfe_u32 v6, v1, 3, 2'); A(f'v_lshl_add_u32 v{VO}, v6, 8, v{VO}')
        A('v_and_b32 v6, 7, v1'); A(f'v_lshl_add_u32 v{VO}, v6, 4, v{VO}')
        A(f's_lshl_b32 s{S_TMP}, s{S_X}, 2'); A(f's_add_u32 s{S_TMP}, s{S_TMP}, s{S_WAVE}'); A(f's_sub_u32 s{S_TMP}, s{S_TMP}, 4'); A(f's_lshl_b32 s{S_TMP}, s{S_TMP}, 13')
        A(f's_add_u32 s{S_TMP}, s{S_TMP}, {hx(OO + (64 - NRO) * 262144)}')
        A(f'v_add_u32 v{VO}, s{S_TMP}, v{VO}'); A(f'v_add_u32 v{VO+1}, 4096, v{VO}')
        loop = A.label('romm')
        A(f'{loop}:')
        A(f's_lshl_b32 s{S_TMP2}, s{S_STEP}, 2'); A(f's_add_u32 s{S_TMP2}, s{S_TMP2}, s{S_X}'); A(f's_lshl_b32 s{S_TMP2}, s{S_TMP2}, 7')
        A(f's_add_u32 s{S_TMP2}, s{S_TMP2}, {hx(CNT + 128 * C_RO)}')
        self.poll_ge(S_WS, S_TMP2, 8, sleep=2)
        A(f's_lshl_b32 s{S_A}, s{S_STEP}, 18'); A(f's_add_u32 s{S_B2}, s{S_A}, 131072')
        for p in range(4):
            for u in range(4):
                r = VA + 16 * p + 4 * u
                A(f'buffer_load_dwordx4 v[{r}:{r+3}], v{VO + (u >> 1)}, s[{S_WS}:{S_WS+3}], s{S_A if p < 2 else S_B2} offen offset:{(p & 1) * 128 + (u & 1) * 2048} sc1')
        for r in range(32): A(f'v_mov_b32 v{VD+r}, 0')
        A(f's_and_b32 s{S_TMP}, s{S_STEP}, 1'); A(f's_mul_i32 s{S_TMP}, s{S_TMP}, 18432'); A(f's_add_u32 s{S_TMP}, s{S_TMP}, {L_RO - L_S3}')
        for p in range(4): A(f'v_add_u32 v{VW+p}, s{S_TMP}, v7'); A(f's_add_u32 s{S_TMP}, s{S_TMP}, 4608')
        for p in range(4):
            A(f's_waitcnt vmcnt({12 - 4 * p})')
            for u in range(4):
                for t in range(2):
                    d = VD + 8 * p + 4 * t; r = VA + 16 * p + 4 * u
                    A(f'v_smfmac_f32_16x16x64_bf16 v[{d}:{d+3}], v[{r}:{r+3}], {self.wfrag(3, 2*u+t)}, v4')
        for p in range(4):
            if p == 3: A('s_nop 7')
            d = VD + 8 * p
            self.combine(d, d + 4)
            A(f'ds_write2_b32 v{VW+p}, v{d}, v{d+1} offset0:0 offset1:36')
            A(f'ds_write2_b32 v{VW+p}, v{d+2}, v{d+3} offset0:72 offset1:108')
        A('s_waitcnt lgkmcnt(0)')
        A('s_barrier')
        A(f's_add_u32 s{S_STEP}, s{S_STEP}, 1'); A(f's_cmp_lt_u32 s{S_STEP}, {NRO}'); A(f's_cbranch_scc1 {loop}')
        A(f's_branch {out}')
        A(f'{fin}:')
        VR, VS_, VB_, VG_, VOUT, P, G, B, T = 12, 13, 16, 17, 18, 20, 36, 48, 52
        mine, snd = A.label('romine'), A.label('rosend')
        A('v_and_b32 v6, 7, v1'); A(f'v_mul_u32_u24 v{VR}, {S3_RS}, v6'); A('v_lshrrev_b32 v8, 3, v1'); A(f'v_lshl_add_u32 v{VR}, v8, 4, v{VR}')
        A(f's_mul_i32 s{S_TMP}, s{S_WAVE}, 4608'); A(f's_add_u32 s{S_TMP}, s{S_TMP}, {L_RO}'); A(f'v_add_u32 v{VR}, s{S_TMP}, v{VR}')
        for k in range(4):
            A(f's_xor_b32 s{S_TMP}, s{S_X}, {k}'); A(f's_lshl_b32 s{S_TMP}, s{S_TMP}, 15'); A(f's_lshl_b32 s{S_TMP2}, s{S_WAVE}, 17'); A(f's_add_u32 s{S_TMP}, s{S_TMP}, s{S_TMP2}')
            A(f's_lshl_b32 s{S_TMP2}, s{S_J}, 10'); A(f's_add_u32 s{S_TMP}, s{S_TMP}, s{S_TMP2}'); A(f's_add_u32 s{S_TMP}, s{S_TMP}, {hx(RO)}')
            A(f'v_lshl_add_u32 v{VS_ + k if k < 3 else 19}, v1, 4, s{S_TMP}')
        A(f's_cmp_eq_u32 s{S_WAVE}, s{S_X}'); A(f's_cbranch_scc1 {mine}')
        A(f'{snd}:')
        A('s_barrier')
        A(f's_and_b32 s{S_TMP}, s{S_STEP}, 1'); A(f's_mul_i32 s{S_TMP}, s{S_TMP}, 18432'); A(f'v_add_u32 v9, s{S_TMP}, v{VR}')
        for w in range(4): A(f'ds_read_b128 v[{P+4*w}:{P+4*w+3}], v9 offset:{w*S3_WS}')
        A(f's_lshl_b32 s{S_A}, s{S_STEP}, 19')
        A('s_waitcnt lgkmcnt(0)')
        for q in (4, 8, 12): pk(P, P, P + q); pk(P + 2, P + 2, P + q + 2)
        A(f'buffer_store_dwordx4 v[{P}:{P+3}], v{VS_}, s[{S_WS}:{S_WS+3}], s{S_A} offen sc1')
        A(f's_add_u32 s{S_STEP}, s{S_STEP}, 1'); A(f's_cmp_lt_u32 s{S_STEP}, {NRO}'); A(f's_cbranch_scc1 {snd}')
        A(f's_branch {out}')
        A(f'{mine}:')
        A(f's_load_dwordx2 s[{S_PM}:{S_PM+1}], s[0:1], {KA_OUT}'); A('s_waitcnt lgkmcnt(0)')
        srd(A, S_T1, S_PM, 2048 * 2048)
        A(f's_lshl_b32 s{S_TMP}, s{S_X}, 3'); A(f's_add_u32 s{S_TMP}, s{S_TMP}, {32 * (64 - NRO)}'); A(f'v_add_u32 v9, s{S_TMP}, v6')
        A(f'v_lshlrev_b32 v{VG_}, 2, v9'); A(f'v_add_u32 v{VG_}, {hx(GG)}, v{VG_}')
        A(f'v_lshlrev_b32 v{VOUT}, 11, v9'); A(f'v_lshl_add_u32 v{VOUT}, v8, 3, v{VOUT}'); A(f's_lshl_b32 s{S_TMP}, s{S_J}, 6'); A(f'v_add_u32 v{VOUT}, s{S_TMP}, v{VOUT}')
        A(f'v_lshrrev_b32 v10, 4, v9'); A(f'v_lshlrev_b32 v{VB_}, 15, v10'); A('v_and_b32 v10, 15, v9'); A(f'v_lshl_add_u32 v{VB_}, v10, 4, v{VB_}')
        A('v_and_b32 v10, 3, v8'); A(f'v_lshl_add_u32 v{VB_}, v10, 8, v{VB_}'); A('v_lshrrev_b32 v10, 2, v8'); A(f'v_lshl_add_u32 v{VB_}, v10, 3, v{VB_}')
        A(f's_lshl_b32 s{S_TMP}, s{S_J}, 10'); A(f's_add_u32 s{S_TMP}, s{S_TMP}, {hx(BB)}'); A(f'v_add_u32 v{VB_}, s{S_TMP}, v{VB_}')
        A(f's_mov_b32 s{S_TMP2}, {hx(CNT + 128 * (C_B + 7))}'); self.poll_ge(S_WS, S_TMP2, 64)
        loop = A.label('romine')
        A(f'{loop}:')
        A(f's_lshl_b32 s{S_B2}, s{S_STEP}, 16'); A(f's_lshl_b32 s{S_C}, s{S_STEP}, 7')
        A(f'buffer_load_dwordx2 v[{B}:{B+1}], v{VB_}, s[{S_WS}:{S_WS+3}], s{S_B2} offen sc1')
        A(f'buffer_load_dword v{B+2}, v{VG_}, s[{S_WS}:{S_WS+3}], s{S_C} offen sc1')
        A('s_barrier')
        A(f's_and_b32 s{S_TMP}, s{S_STEP}, 1'); A(f's_mul_i32 s{S_TMP}, s{S_TMP}, 18432'); A(f'v_add_u32 v9, s{S_TMP}, v{VR}')
        for w in range(4): A(f'ds_read_b128 v[{P+4*w}:{P+4*w+3}], v9 offset:{w*S3_WS}')
        A(f's_lshl_b32 s{S_A}, s{S_STEP}, 19')
        A('s_waitcnt lgkmcnt(0)')
        for q in (4, 8, 12): pk(P, P, P + q); pk(P + 2, P + 2, P + q + 2)
        self.gather([(f'buffer_load_dwordx4 v[{G+4*k}:{G+4*k+3}], v{(VS_ + 1, VS_ + 2, 19)[k]}, s[{S_WS}:{S_WS+3}], s{S_A} offen sc1', G + 4*k + 3) for k in range(3)], 9, 'ro')
        for q in (0, 4, 8): pk(P, P, G + q); pk(P + 2, P + 2, G + q + 2)
        A(f'v_sub_f32 v{T}, 1.0, v{B+2}'); A(f'v_cvt_pk_bf16_f32 v{T}, v{T}, v{T}'); A(f'v_and_b32 v{T}, 0xffff0000, v{T}')
        def rnd(r, t):
            A(f'v_cvt_pk_bf16_f32 v{t}, v{r}, v{r+1}'); A(f'v_lshlrev_b32 v{r}, 16, v{t}'); A(f'v_and_b32 v{r+1}, 0xffff0000, v{t}')
        for h in range(2):
            a0, b0 = P + 2 * h, G + 2 * h
            rnd(a0, T + 2)
            A(f'v_pk_mul_f32 v[{a0}:{a0+1}], v[{a0}:{a0+1}], v[{B+2}:{B+3}] op_sel_hi:[1,0]')
            A(f'v_lshlrev_b32 v{b0}, 16, v{B+h}'); A(f'v_and_b32 v{b0+1}, 0xffff0000, v{B+h}')
            A(f'v_pk_mul_f32 v[{b0}:{b0+1}], v[{b0}:{b0+1}], v[{T}:{T+1}] op_sel_hi:[1,0]')
            rnd(a0, T + 2); rnd(b0, T + 2)
            pk(a0, a0, b0)
            A(f'v_cvt_pk_bf16_f32 v{T+4+h}, v{a0}, v{a0+1}')
        A(f'buffer_store_dwordx2 v[{T+4}:{T+5}], v{VOUT}, s[{S_T1}:{S_T1+3}], s{S_B2} offen')
        A(f's_add_u32 s{S_STEP}, s{S_STEP}, 1'); A(f's_cmp_lt_u32 s{S_STEP}, {NRO}'); A(f's_cbranch_scc1 {loop}')
        A(f's_branch {out}')
        self.flush_cold()
        A(f'{out}:')

    def emit(self):
        A = self.A
        A(f's_lshl_b32 s{S_H}, s{S_X}, 3'); A(f's_lshr_b32 s{S_TMP}, s{S_J}, 2'); A(f's_add_u32 s{S_H}, s{S_H}, s{S_TMP}')
        A(f's_and_b32 s{S_B}, s{S_J}, 3')
        A(f's_mov_b32 s{S_STEP}, 0'); A(f's_mov_b32 s{S_TO}, 0')
        A(f's_add_u32 s{S_TMP}, s{S_WS}, {hx(RB1 + 0x1fffff)}'); A(f's_and_b32 s{S_TMP}, s{S_TMP}, 0xffe00000'); A(f's_sub_u32 s{S_B1BASE}, s{S_TMP}, s{S_WS}')
        self.pst(1)
        if self.stamps == 'pro': A(f's_mov_b32 s{S_ST+4}, s98')
        A('v_and_b32 v1, 63, v0'); A('v_and_b32 v2, 15, v1'); A('v_lshrrev_b32 v3, 4, v1')
        labs = {w: A.label(f'w{w}') for w in (4, 5, 6, 7)}
        for w in labs: A(f's_cmp_eq_u32 s{S_WAVE}, {w}'); A(f's_cbranch_scc1 {labs[w]}')
        self.late = (3,); self.s1()
        for w, f, late in ((4, self.w4, (6,)), (5, self.w5, (6,)), (6, self.w6, (8,)), (7, self.w7, (6,))):
            A(f'{labs[w]}:'); self.late = late; f()
        A(f'{self.done_y2}_y:')
        A('s_barrier')
        A('s_barrier')
        A(f'{self.done}:')
        if self.stamps:
            if self.stamps == 'light':
                A(f's_memtime s[{S_ST+2}:{S_ST+3}]'); A('s_waitcnt lgkmcnt(0)'); A(f's_sub_u32 s{S_ST+15}, s{S_ST+2}, s{S_ST}')
                A(f's_memrealtime s[{S_ST}:{S_ST+1}]'); A('s_waitcnt lgkmcnt(0)'); A(f's_mov_b32 s{S_ST+5}, s{S_ST}')
            A(f's_lshl_b32 s{S_TMP}, s{S_X}, 5'); A(f's_add_u32 s{S_TMP}, s{S_TMP}, s{S_J}'); A(f's_lshl_b32 s{S_TMP}, s{S_TMP}, 3')
            A(f's_add_u32 s{S_TMP}, s{S_TMP}, s{S_WAVE}'); A(f's_lshl_b32 s{S_TMP}, s{S_TMP}, 6'); A(f's_add_u32 s{S_TMP}, s{S_TMP}, {hx(STAMP)}')
            A(f'v_mov_b32 v8, s{S_TMP}')
            A(f's_mov_b32 s{S_ST+3}, s{S_B1BASE}')
            for k in range(14):
                A(f'v_mov_b32 v6, s{S_ST+3+k}')
                A(f'buffer_store_dword v6, v8, s[{S_WS}:{S_WS+3}], 0 offen offset:{4*k}')
        if NRO and 'noro' not in self.opts: self.final_rows()
```

```python
from layout import *
MAXT = 24
MODE = 'v5'
KINDS = {1: ('K', 'big'), 2: ('V', 'big'), 3: ('Q', 'big'), 4: ('H', 'big'), 5: ('F', 'big'), 6: ('O', 'big'), 7: ('A', None), 8: ('G', None),
         9: ('K', 'half'), 10: ('V', 'half'), 11: ('O', 'q128'), 12: ('O', 'q64'), 13: ('F', 'half'), 14: ('O', 'half'), 15: ('F', 'q128'), 16: ('K', 'q128'), 17: ('V', 'q128')}
KID = {v: k for k, v in KINDS.items()}
TM = {'big': 256, 'half': 256, 'q128': 128, 'q64': 64}
TN = {'big': 256, 'half': 128, 'q128': 128, 'q64': 64}
def w(idx, target): return (idx << 24) | target
def sig(idx, n): return (idx << 8) | n
def ocnt(seg):
    return (C_O + seg // 8, 256) if seg < 40 else (C_O + seg - seg % 2, 64)
def task(name, shape, m0, n0, extra=0):
    waits, s = [], 0
    area = TM[shape] * TN[shape] // 4096 if shape else 0
    if name in 'KV': s = sig(C_KV + m0 // 256, area // 4)
    elif name == 'Q': s = sig(C_Q + m0 // 256, 1)
    elif name == 'H': s = sig(C_H + m0 // 256, 1)
    elif name == 'F': waits = [w(C_H + m0 // 256, 14), w(C_GATE, 128)]; s = sig(C_B + m0 // 256, area)
    elif name == 'G': s = sig(C_GATE, 1)
    elif name == 'A':
        waits = [w(C_Q + m0 // 8, 16)]; s = sig(ocnt(m0)[0], 8 * extra) if m0 < 64 - NRO else sig(C_RO + 4 * (m0 - 64 + NRO) + n0 // 8, 8)
    elif name == 'O':
        cs = sorted(set(ocnt(s_) for s_ in range(m0 // 32, (m0 + TM[shape]) // 32)))
        assert len(cs) <= 2
        waits = ([w(*c) for c in cs] + [0])[:2] + [w(C_B + m0 // 256, 64)]
    if name in 'KVQH' and shape == 'big': waits = [w(C_GATE, 128)]
    waits += [0] * (3 - len(waits))
    return (KID[(name, shape)], m0, n0, extra, *waits, s)


_cache = {}
def both():
    if MODE not in _cache: _cache[MODE] = globals()['sched_' + MODE]()
    return _cache[MODE]
def table(): return both()[0]
def dyn(): return both()[1]

DUR = {('K', 'half'): 18, ('V', 'half'): 18, ('K', 'big'): 23, ('V', 'big'): 23.5, ('Q', 'big'): 23, ('H', 'big'): 25,
       ('F', 'big'): 72, ('F', 'half'): 38, ('F', 'q128'): 22, ('O', 'big'): 82, ('O', 'half'): 42, ('O', 'q128'): 24.5, ('O', 'q64'): 12.4,
       ('G', None): 4, ('A', 1): 4.6, ('A', 2): 9, ('A', 4): 17.8}
P = dict(rec0=24.0, dt=2.33, T=185.0)
def dur(t):
    name, shape = KINDS[t[0]]
    return DUR[(name, t[3] if name == 'A' else shape)]

class Sim:
    def __init__(self):
        self.ev = {}
        self.memo = {}; self.wc = {}
    def when(self, idx, target):
        key = (idx, target)
        if key in self.wc: return self.wc[key]
        acc = 0; r = None
        for tm, n in self.ev.get(idx, []):
            acc += n
            if acc >= target: r = tm; break
        self.wc[key] = r
        return r
    def post(self, idx, tm, n):
        l = self.ev.setdefault(idx, []); l.append((tm, n)); l.sort()
        for key in [k for k in self.wc if k[0] == idx]: del self.wc[key]
        if C_KV <= idx < C_KV + 8: self.memo = {}
    def rec(self, step):
        if step in self.memo: return self.memo[step]
        if step == 0:
            k = self.when(C_KV, 128); r = None if k is None else max(P['rec0'], k + 1)
        else:
            r = self.rec(step - 1)
            if r is not None:
                r += P['dt']
                if (step + 1) % 8 == 0 and step + 1 < 64:
                    k = self.when(C_KV + (step + 1) // 8, 128); r = None if k is None else max(r, k + 0.5)
        self.memo[step] = r
        return r
    def ready(self, t):
        r = 0.0
        name = KINDS[t[0]][0]
        for i, wd in enumerate(t[4:7]):
            if wd == 0: continue
            ok = self.when(wd >> 24, wd & 0xffffff)
            if ok is None: return None
            if name == 'O' and i == 2: ok -= dur(t) - 3.5
            r = max(r, ok)
        if name == 'A':
            k = self.rec(min(t[1] + 1, 63))
            if k is None: return None
            r = max(r, k + (2.0 if t[1] < 63 else 1.5))
        return r


def simulate(static, dynq, plan, verbose=False, jitter=0.0):
    import heapq, random
    rnd = random.Random(1)
    S = Sim()
    L = [[] for _ in range(256)]
    free = [(P['start'] + 0.04 * j, 32 * x + j) for x in range(4) for j in range(32)]
    heapq.heapify(free)
    pools = [sorted(q, key=lambda it: it[0]) for q in static]
    dq = [list(q) for q in dynq]
    isdyn = set(); log = []; end = 0; added = False
    def run(t, wk, tm, r):
        nonlocal end
        st = max(r, tm); e = st + dur(t) * (1 + jitter * rnd.uniform(-1, 1))
        if KINDS[t[0]][0] == 'A' and t[3] == 1 and r > tm + 2: e -= 2.0
        log.append((st, e, wk, t)); end = max(end, e)
        if t[7]: S.post(t[7] >> 8, e, t[7] & 0xff)
        heapq.heappush(free, (e + 0.3, wk))
    while any(pools) or any(dq):
        if not added and S.rec(63) is not None:
            for h in range(128, 256): heapq.heappush(free, (S.rec(63) + 1.5 + (7 if NRO else 0), h)); isdyn.add(h)
            added = True
        tm, wk = heapq.heappop(free)
        if tm > 1000: raise RuntimeError('schedule stuck')
        x = (wk >> 5) & 3
        if wk not in isdyn:
            pool = pools[x]
            quota = plan['ndyn'](tm)
            want_dyn = dq[x] and sum(1 for w_ in isdyn if w_ < 128 and w_ >> 5 == x) < quota
            if not pool or want_dyn: isdyn.add(wk)
            else:
                i = None
                for i_, (ls, t) in enumerate(pool):
                    r = S.ready(t)
                    if r is not None and r <= tm + 0.5: i = i_; break
                if i is None:
                    heapq.heappush(free, (tm + 1.0, wk)); continue
                t = pool.pop(i)[1]; L[wk].append(t); run(t, wk, tm, r); continue
        if not dq[x]: continue
        r = S.ready(dq[x][0])
        if r is None:
            heapq.heappush(free, (tm + 0.5, wk)); continue
        run(dq[x].pop(0), wk, tm + 1.0, r)
    if NRO:
        tm = S.rec(63) + 1.5
        for s in range(NRO): tm = max(tm, max(S.when(C_RO + 4 * s + x, 8) for x in range(4)) + 0.5) + 1.2
        end = max(end, tm + 0.5)
    if verbose:
        print('rec end %.1f end %.1f busy per worker %.1f' % (S.rec(63), end, sum(e - s_ for s_, e, wk, t in log if wk < 128) / 128))
    return L, log, end

def build_v4(plan):
    T, r0, dt = P['T'], P['rec0'], P['dt']
    Q = [[] for _ in range(4)]; D = [[] for _ in range(4)]
    oshape = {}
    for (a_, b_, shape) in plan['o']:
        for m0 in range(a_, b_, TM[shape]): oshape[m0] = shape
    def o_ls(row):
        m0 = max(m for m in oshape if m <= row)
        return T - DUR[('O', oshape[m0])]
    for x in range(4):
        nm = 'K' if x < 2 else 'V'
        q = Q[x]
        def add(ls, ts): q.extend((ls + 1e-4 * i, t) for i, t in enumerate(ts))
        for k, (shape, ms) in enumerate(plan['first']):
            add(-100 + k, [task(nm, shape, m0, 2048 * (x & 1) + n) for n in range(0, 2048, TN[shape]) for m0 in ms])
        for ms in plan['kvm']:
            add(r0 + 8 * dt * ms[0] - 6 - DUR[(nm, 'big')] - plan['kvlead'], [task(nm, 'big', 256 * m, 2048 * (x & 1) + 256 * n) for n in range(8) for m in ms])
        for ms in plan['qm']:
            add(min(o_ls(256 * ms[0]) - 20, r0 + 8 * dt * ms[0] + plan['qlag']) - DUR[('Q', 'big')], [task('Q', 'big', 256 * m, 1024 * x + 256 * n) for n in range(4) for m in ms])
        fs = plan['fshape']
        for im, ms in enumerate(plan['hm']):
            add(T - 4 - DUR[('F', fs)] - DUR[('H', 'big')] - plan['hlead'] * (len(plan['hm']) - im), [task('H', 'big', 256 * m, 256 * n) for n in range(x, 14, 4) for m in ms])
        for m in range(8):
            add(T - 4 - DUR[('F', fs)] - plan['flead'] * (8 - m), [task('F', fs, 256 * m, 256 * x + n) for n in range(0, 256, TN[fs])])
        add(20, [task('G', None, 256 * m, 0, 8) for m in (2 * x, 2 * x + 1)])
        d = []
        for s in range(64):
            rdy = r0 + dt * (s + 1) + 2
            if s < plan['att_dyn']:
                if s % 4 == x: add(o_ls(32 * s) - 19 - 0.3 * (8 - s % 8), [task('A', None, s, 0, 4)])
            else:
                nh = plan['nh'](s)
                if nh == 1: d.append((rdy - 3, task('A', None, s, 8 * x, 1)))
                elif nh == 2 and (x >> 1) == (s & 1) ^ ((s >> 1) & 1): d.append((rdy - 3, task('A', None, s, 16 * (x & 1), 2)))
                elif nh == 4 and s % 4 == x: d.append((rdy - 3, task('A', None, s, 0, 4)))
        for m0, shape in oshape.items():
            ts = [task('O', shape, m0, 256 * x + n) for n in range(0, 256, TN[shape])]
            if m0 < plan['o_dyn']: add(T - DUR[('O', shape)] - plan['olead'] * (2048 - m0) / 256, ts)
            else:
                rdy = r0 + dt * ((m0 + TM[shape]) // 32) + 2 + 4
                d += [(rdy, t) for t in ts]
        d.sort(key=lambda it: it[0])
        D[x] = [t for _, t in d]
    return Q, D

P.update(start=6.5, rec0=23.0, dt=2.40, T=190.0)
DUR.update({('K', 'half'): 18.5, ('V', 'half'): 18.5, ('K', 'big'): 23.5, ('V', 'big'): 23.5, ('Q', 'big'): 22.5, ('H', 'big'): 26, ('F', 'big'): 74,
            ('K', 'q128'): 10, ('V', 'q128'): 10,
            ('O', 'big'): 80, ('O', 'half'): 44.5, ('O', 'q128'): 25.5, ('O', 'q64'): 12.5, ('G', None): 2.5, ('A', 1): 5.4, ('A', 2): 9, ('A', 4): 18.5, ('F', 'half'): 42})
OPL = [
 [(0, 768, 'big'), (768, 1280, 'half'), (1280, 1664, 'q128'), (1664, 2048 - 32 * NRO, 'q64')],
 [(0, 512, 'big'), (512, 1280, 'half'), (1280, 1664, 'q128'), (1664, 2048 - 32 * NRO, 'q64')],
 [(0, 512, 'big'), (512, 1024, 'half'), (1024, 1664, 'q128'), (1664, 2048 - 32 * NRO, 'q64')],
 [(0, 768, 'big'), (768, 1024, 'half'), (1024, 1664, 'q128'), (1664, 2048 - 32 * NRO, 'q64')],
 [(0, 768, 'big'), (768, 1280, 'half'), (1280, 1792, 'q128'), (1792, 2048 - 32 * NRO, 'q64')],
 [(0, 512, 'big'), (512, 1024, 'half'), (1024, 1536, 'q128'), (1536, 2048 - 32 * NRO, 'q64')],
 [(0, 768, 'big'), (768, 1280, 'half'), (1280, 1536, 'q128'), (1536, 2048 - 32 * NRO, 'q64')],
 [(0, 1024, 'half'), (1024, 1664, 'q128'), (1664, 2048 - 32 * NRO, 'q64')],
]
def mk(v):
    return dict(o=OPL[v['o']], att_dyn=v['att_dyn'], o_dyn=v['o_dyn'], nh=lambda s: 1, first=[('q128', (0, 128)), ('half', (256, 512))],
        kvm=[[(3, 4), (5, 6, 7)], [(3, 4), (5, 6), (7,)], [(3, 4, 5, 6), (7,)]][v['kvm']], qm=[[(0, 1), (2, 3), (4, 5), (6, 7)], [(0, 1), (2, 3), (4, 5, 6, 7)]][v['qm']],
        hm=[[(0, 1, 2, 3), (4, 5, 6, 7)], [(0, 1), (2, 3), (4, 5), (6, 7)]][v['hm']], fshape=v['fshape'], kvlead=v['kvlead'], qlag=v['qlag'], hlead=v['hlead'],
        flead=v['flead'], olead=v['olead'], ndyn=lambda t: 0 if t < v['t1'] else v['n1'] if t < v['t2'] else v['n2'])
import json, os
_v = json.load(open(os.path.join(os.path.dirname(os.path.abspath(__file__)), 'plan.json')))
P['T'] = _v['T']
PLAN = mk(_v)
def sched_v4(verbose=False):
    Q, D = build_v4(PLAN)
    return simulate(Q, D, PLAN, verbose)[0], D


def build_v5(plan):
    T, r0, dt = P['T'], P['rec0'], P['dt']
    Q = [[] for _ in range(4)]; D = [[] for _ in range(4)]
    oshape = {}
    for (a_, b_, shape) in plan['o']:
        for m0 in range(a_, b_, TM[shape]): oshape[m0] = shape
    for x in range(4):
        nm = 'K' if x < 2 else 'V'
        mh, nh = x & 1, x >> 1
        q = Q[x]
        def add(ls, ts): q.extend((ls + 1e-4 * i, t) for i, t in enumerate(ts))
        def kv(shape, ms): return [task(nm, shape, m0, 2048 * (x & 1) + n) for n in range(0, 2048, TN[shape]) for m0 in ms]
        for k, (shape, ms) in enumerate(plan['first']): add(-100 + k, kv(shape, ms))
        for pri, ms in plan['kv']: add(pri, kv('big', [256 * m for m in ms]))
        for pri, ms in plan['h']:
            add(pri, [task('H', 'big', 256 * (4 * mh + m), 256 * n) for n in range(7 * nh, 7 * nh + 7) for m in ms])
        for pri, ms in plan['q']: add(pri, [task('Q', 'big', 256 * m, 1024 * x + 256 * n) for n in range(4) for m in ms])
        fs = plan['fshape']
        for pri, ms in plan['f']:
            add(pri, [task('F', fs, 256 * (4 * mh + m), 512 * nh + n) for m in ms for n in range(0, 512, TN[fs])])
        add(-99.5, [task('G', None, 16 * (32 * x + j), 0) for j in range(32)])
        d = []
        for s in range(64):
            rdy = r0 + dt * (s + 2) + 1
            if s < plan['att_dyn']:
                if s % 4 == x: add(plan['a'] + 0.01 * s, [task('A', None, s, 0, 4)])
            else: d.append((rdy - 3, task('A', None, s, 8 * x, 1)))
        for m0, shape in oshape.items():
            ts = [task('O', shape, m0, 256 * x + n) for n in range(0, 256, TN[shape])]
            if m0 < plan['o_dyn']: add(plan['o_pri'] + 0.001 * m0, ts)
            else: d += [(r0 + dt * ((m0 + TM[shape]) // 32 + 1) + 1 + 4, t) for t in ts]
        d.sort(key=lambda it: it[0])
        D[x] = [t for _, t in d]
    return Q, D

OP5 = [
 [(0, 1280, 'half'), (1280, 1664, 'q128'), (1664, 2048 - 32 * NRO, 'q64')],
 [(0, 512, 'big'), (512, 1280, 'half'), (1280, 1664, 'q128'), (1664, 2048 - 32 * NRO, 'q64')],
 [(0, 1024, 'half'), (1024, 1664, 'q128'), (1664, 2048 - 32 * NRO, 'q64')],
 [(0, 1280, 'half'), (1280, 1536, 'q128'), (1536, 2048 - 32 * NRO, 'q64')],
 [(0, 1280, 'half'), (1280, 1792, 'q128'), (1792, 2048 - 32 * NRO, 'q64')],
 [(0, 256, 'big'), (256, 1280, 'half'), (1280, 1664, 'q128'), (1664, 2048 - 32 * NRO, 'q64')],
]
FIRST = [[('q128', (0, 128))], [('q128', (0, 128)), ('q128', (256, 384))], [('half', (0, 256))], [('q128', (0, 128)), ('half', (256, 512))]]
def mk5(v):
    f = v['first']; n0 = (1, 2, 2, 3)[f]
    rest = list(range(n0, 8))
    kv = [(1, rest[:4]), (v['pkv2'], rest[4:])]
    return dict(o=OP5[v['o']], first=FIRST[f], kv=kv, h=[(v['ph0'], (0, 1, 2, 3))] if v['hs'] == 0 else [(v['ph0'], (0, 1)), (v['ph1'], (2, 3))],
                q=[(v['pq0'], (0, 1, 2, 3)), (v['pq1'], (4, 5, 6, 7))] if v['qs'] == 0 else [(v['pq0'], (0, 1)), (v['pq0'] + 3, (2, 3)), (v['pq1'], (4, 5)), (v['pq1'] + 3, (6, 7))],
                f=[(v['pf'], (0, 1, 2, 3))], fshape=v['fshape'], g=v['pg'], a=v['pa'], o_pri=v['po'], att_dyn=v['att_dyn'], o_dyn=v['o_dyn'],
                ndyn=lambda t: 0 if t < v['t1'] else v['n1'] if t < v['t2'] else v['n2'])
def sched_v5(verbose=False):
    v = json.load(open(os.path.join(os.path.dirname(os.path.abspath(__file__)), 'plan5.json')))
    plan = mk5(v); Q, D = build_v5(plan)
    L, log, end = simulate(Q, D, plan, verbose)
    sched_v5.log = log
    return L, D

def sched_load():
    L, D = sched_v5()
    out = []
    for w_, l in enumerate(L):
        l = [t for t in l if KINDS[t[0]][0] not in 'AO']
        if w_ < 128:
            x, j = w_ >> 5, w_ & 31
            n = sum(dur(t) for t in l)
            while n < 165:
                t = task('Q', 'big', 256 * (j & 3) + 1024 * (len(l) & 1), 2048 * (x & 1) + 256 * (j >> 2)); l.append(t[:7] + (sig(127, 1),)); n += 23
        out.append(l)
    return out, [[], [], [], []]

def show(log, wks):
    for wk in wks:
        print(wk, ' '.join(f"{KINDS[t[0]][0]}{KINDS[t[0]][1] or ''}({t[1]},{t[2]})@{s:.0f}" for s, e, w_, t in sorted(log) if w_ == wk))
if __name__ == '__main__':
    L, D = sched_v5(True)
    show(sched_v5.log, range(0, 32, 1)); show(sched_v5.log, (128, 200))
    print(max(len(l) for l in L), sum(len(l) for l in L), [len(d) for d in D])
```

```python
import sys
from asmlib import *
from layout import *
import gemm16 as G
from gemm16 import *
import att
import rec
import schedule as SC

NAME = 'gated_mix__memory_aug_recurrent_mem_tr__dense_activation_silu__prompt_kernel'
S_X, S_J = 24, 25
S_TAB, S_TASK, S_CODE = 70, 72, 80
S_IDX, S_TO, S_INIT, S_DYN, S_TAB0 = 82, 83, 87, 58, 68
S_PTR, S_NEXT, S_NOB, S_NOTS = 50, 88, 30, 31
L_MISC = rec.L_MISC
TIMEOUT = 1 << 20

def load_ptr(A, dst, ka):
    A(f's_load_dwordx2 s[{dst}:{dst+1}], s[0:1], {ka}')

def executor(A, opts):
    stamps = 'stamps' in opts
    def tstamp(k, clk=None):
        if not stamps: return
        f = A.label('nost')
        A(f's_cmp_lg_u32 s{S_WAVE}, 0'); A(f's_cbranch_scc1 {f}')
        A('s_memrealtime s[84:85]'); A('s_memtime s[96:97]'); A('s_waitcnt lgkmcnt(0)')
        A(f's_lshl_b32 s86, s{S_J}, 5'); A(f's_add_u32 s86, s86, s{S_IDX}'); A('s_lshl_b32 s86, s86, 5'); A(f's_add_u32 s86, s86, {hx(STAMP + 0x20000)}')
        A('v_mov_b32 v2, s86'); A('v_mov_b32 v3, s84')
        A(f'buffer_store_dword v3, v2, s[{S_WS}:{S_WS+3}], 0 offen offset:{4*k}')
        if clk is not None:
            A('v_mov_b32 v3, s96')
            A(f'buffer_store_dword v3, v2, s[{S_WS}:{S_WS+3}], 0 offen offset:{4*clk}')
        A(f'{f}:')
    A('v_and_b32 v1, 63, v0')
    load_ptr(A, S_CODE, KA_OUT); A('s_waitcnt lgkmcnt(0)'); srd(A, S_OD, S_CODE, 2048 * 2048)
    A(f's_getpc_b64 s[{S_TAB}:{S_TAB+1}]')
    A('L_pc:')
    A(f's_add_u32 s{S_TAB}, s{S_TAB}, L_table-L_pc'); A(f's_addc_u32 s{S_TAB+1}, s{S_TAB+1}, 0')
    A(f's_mov_b32 s{S_TAB0}, s{S_TAB}'); A(f's_mov_b32 s{S_TAB0+1}, s{S_TAB+1}'); A(f's_mov_b32 s{S_DYN}, 0')
    A(f's_lshl_b32 s{G_T0}, s{S_J}, 2')
    A(f's_load_dword s{G_T0}, s[{S_TAB}:{S_TAB+1}], s{G_T0}'); A('s_waitcnt lgkmcnt(0)')
    A(f's_add_u32 s{S_TAB}, s{S_TAB}, s{G_T0}'); A(f's_addc_u32 s{S_TAB+1}, s{S_TAB+1}, 0')
    A(f's_mov_b32 s{S_IDX}, 0'); A(f's_mov_b32 s{S_INIT}, 0')
    for i, ka in enumerate((KA_WK, KA_WQ, KA_WV, KA_W1)): load_ptr(A, S_PTR + 2 * i, ka)
    A('L_task:')
    A(f's_lshl_b32 s{G_T0}, s{S_IDX}, 5')
    A(f's_load_dwordx8 s[{S_TASK}:{S_TASK+7}], s[{S_TAB}:{S_TAB+1}], s{G_T0}')
    A(f's_add_u32 s{G_T0}, s{G_T0}, 32')
    A(f's_load_dwordx8 s[{S_NEXT}:{S_NEXT+7}], s[{S_TAB}:{S_TAB+1}], s{G_T0}')
    A('s_waitcnt lgkmcnt(0)')
    A(f's_cmp_eq_u32 s{S_TASK}, 0'); A('s_cbranch_scc1 L_dyn')
    A('L_run:')
    tstamp(0)
    go, go2 = A.label('go'), A.label('go2')
    A(f's_cmp_lg_u32 s{S_WAVE}, 0'); A(f's_cbranch_scc1 {go}')
    def ensure_init():
        ok, lp = A.label('inok'), A.label('inlp')
        A(f's_cmp_lg_u32 s{S_INIT}, 0'); A(f's_cbranch_scc1 {ok}')
        A(f'v_mov_b32 v2, {4*DBG_INIT}'); A(f's_mov_b32 s{S_TO}, 0'); A(f's_mov_b32 s{S_INIT}, 256')
        A(f'{lp}:')
        A(f'buffer_load_dword v3, v2, s[{S_DBG}:{S_DBG+3}], 0 offen sc1')
        A('s_waitcnt vmcnt(0)')
        A(f'v_cmp_le_u32 vcc, s{S_INIT}, v3')
        A(f's_cbranch_vccnz {ok}')
        A('s_sleep 4')
        A(f's_add_u32 s{S_TO}, s{S_TO}, 1'); A(f's_cmp_lt_u32 s{S_TO}, {TIMEOUT}'); A(f's_cbranch_scc1 {lp}')
        A('s_branch L_abort')
        A(f'{ok}:')
    def poll(words, done):
        A(f's_mov_b32 s{G_T0}, s{words[0]}')
        for r in words[1:]: A(f's_or_b32 s{G_T0}, s{G_T0}, s{r}')
        A(f's_cmp_eq_u32 s{G_T0}, 0'); A(f's_cbranch_scc1 {done}')
        ensure_init()
        A('v_mov_b32 v2, 0')
        for k, r in enumerate(words): A(f'v_writelane_b32 v2, s{r}, {k}')
        A('v_lshrrev_b32 v3, 24, v2'); A('v_lshlrev_b32 v3, 7, v3'); A('v_and_b32 v2, 0xffffff, v2')
        A(f's_mov_b32 s{S_TO}, 0'); A(f's_mov_b32 s{G_T0}, {hx(CNT)}')
        lp = A.label('poll')
        A(f'{lp}:')
        A(f'buffer_load_dword v{V_T}, v3, s[{S_WS}:{S_WS+3}], s{G_T0} offen sc1')
        A('s_waitcnt vmcnt(0)')
        A(f'v_cmp_lt_u32 vcc, v{V_T}, v2')
        A(f's_cbranch_vccz {done}')
        A('s_sleep 4')
        A(f's_add_u32 s{S_TO}, s{S_TO}, 1'); A(f's_cmp_lt_u32 s{S_TO}, {TIMEOUT}'); A(f's_cbranch_scc1 {lp}')
        A('s_branch L_abort')
    poll([S_TASK + 4, S_TASK + 5], go)
    A(f'{go}:')
    A('s_barrier')
    tstamp(1)
    A(f's_mov_b32 s{G_M0}, s{S_TASK+1}'); A(f's_mov_b32 s{G_N0}, s{S_TASK+2}')
    kinds = sorted(set(t[0] for lst in SC.table() + SC.dyn() for t in lst))
    for k in kinds:
        A(f's_cmp_eq_u32 s{S_TASK}, {k}'); A(f's_cbranch_scc1 L_t{k}')
    A('s_branch L_abort')

    XM = {'K': (0, 8192, KX, 131072), 'Q': (1, 8192, QX, 131072), 'V': (2, 8192, VX, 262144), 'H': (3, 7168, HH, 112 * 1024)}
    def xmat(name, g, m0, n0, ob, ots):
        pi, row, base, stride = XM[name]
        srd(A, S_WD, S_PTR + 2 * pi, 1024 * row)
        A(f's_lshl_b32 s{G_XO}, s{m0}, 11')
        if g is gens['big']: A(f's_add_u32 s{G_XO}, s{G_XO}, {hx(XF)}')
        A(f's_lshl_b32 s{G_WO}, s{n0}, 1'); A(f's_mov_b32 s{G_ROW}, {row}'); A(f's_mov_b32 s{G_WS}, {row * g.KS}')
        A(f's_mov_b32 s{ots}, {stride}')
        if name == 'V': A(f's_lshl_b32 s{ob}, s{m0}, 13'); A(f's_lshl_b32 s{G_T0}, s{n0}, 6')
        else: A(f's_mul_i32 s{ob}, s{m0}, {stride // 16}'); A(f's_lshl_b32 s{G_T0}, s{n0}, 5')
        A(f's_add_u32 s{ob}, s{ob}, s{G_T0}'); A(f's_add_u32 s{ob}, s{ob}, {hx(base)}')
    def xfirst(name, g):
        if g is gens['big']:
            srd(A, S_XD, S_WS, WS_BYTES); A(f's_mov_b32 s{G_XS}, {g.KS * 32}'); A(f's_mov_b32 s{G_TB}, 32768')
        else:
            load_ptr(A, S_CODE + 4, KA_X); A('s_waitcnt lgkmcnt(0)'); srd(A, S_XD, S_CODE + 4, 2048 * 2048)
            A(f's_mov_b32 s{G_XS}, {g.KS * 2}')
        A(f's_mov_b32 s{G_NK}, {1024 // g.KS // g.R_ - 1}')
        xmat(name, g, G_M0, G_N0, G_OB, G_OTS)
    def fmat(ptr_ka, K, base, g):
        load_ptr(A, S_CODE, ptr_ka); A('s_waitcnt lgkmcnt(0)')
        srd(A, S_WD, S_CODE, K * 2048); srd(A, S_XD, S_WS, WS_BYTES)
        A(f's_mov_b32 s{G_TB}, {K * 32}'); A(f's_mul_i32 s{G_XO}, s{G_M0}, {K * 2}'); A(f's_add_u32 s{G_XO}, s{G_XO}, {hx(base)}'); A(f's_mov_b32 s{G_XS}, {g.KS * 32}')
        A(f's_lshl_b32 s{G_WO}, s{G_N0}, 1'); A(f's_mov_b32 s{G_ROW}, 2048'); A(f's_mov_b32 s{G_WS}, {2048 * g.KS}'); A(f's_mov_b32 s{G_NK}, {K // g.KS // g.R_ - 1}')
        assert K % (g.KS * g.R_) == 0

    shapes = {'big': (8, 4, 2, 4, 32, 4), 'half': (4, 4, 4, 2, 32, 4), 'q128': (4, 2, 2, 4, 64, 4), 'q64': (1, 2, 4, 2, 64, 8)}
    gens = {n: Gemm(A, *p, opts=opts) for n, p in shapes.items()}
    shared = {}
    def body(shape, xt, orient, epi):
        key = (shape, xt, orient)
        if key in shared:
            A(f's_branch {shared[key][0]}'); shared[key][1].append(epi); return
        lab = f'L_body_{shape}_{xt}_{orient}'
        shared[key] = (lab, [epi])
        A(f's_branch {lab}')
    for k in kinds:
        A(f'L_t{k}:')
        name, shape = SC.KINDS[k]
        if name in XM: xfirst(name, gens[shape]); body(shape, 'fn' if shape == 'big' else 'rm', 'v' if name == 'V' else 'kq', 'silu' if name == 'H' else 'plain')
        elif name == 'F':
            fmat(KA_W2, 3584, HH, gens[shape])
            A(f's_mov_b32 s{G_OTS}, 32768'); A(f's_lshl_b32 s{G_OB}, s{G_M0}, 11'); A(f's_lshl_b32 s{G_T0}, s{G_N0}, 5')
            A(f's_add_u32 s{G_OB}, s{G_OB}, s{G_T0}'); A(f's_add_u32 s{G_OB}, s{G_OB}, {hx(BB)}')
            body(shape, 'fm', 'kq', 'plain')
        elif name == 'O':
            fmat(KA_WO, 4096, OO, gens[shape])
            body(shape, 'fm', 'kq', 'final')
        elif name == 'A':
            A(f's_mov_b32 s{G_NK}, s{S_TASK+3}')
            def wait_progress():
                lp, ok, far = A.label('pw'), A.label('pwok'), A.label('pwfar')
                A(f's_cmp_lg_u32 s{S_WAVE}, 0'); A(f's_cbranch_scc1 {ok}')
                A(f's_lshl_b32 s{G_T0}, s{S_TASK+3}, 5'); A(f's_sub_u32 s{G_T0}, s{G_T0}, 1')
                A(f'v_min_u32 v7, s{G_T0}, v1'); A('v_add_u32 v8, 64, v1'); A(f'v_min_u32 v8, s{G_T0}, v8')
                A('v_lshlrev_b32 v7, 7, v7'); A('v_lshlrev_b32 v8, 7, v8')
                A(f's_lshl_b32 s{G_T0}, s{S_TASK+2}, 9'); A(f's_add_u32 s{G_T0}, s{G_T0}, {hx(FLG)}')
                A(f's_mov_b32 s{S_TO}, 0')
                A(f'{lp}:')
                A(f'buffer_load_dword v9, v7, s[{S_WS}:{S_WS+3}], s{G_T0} offen sc1')
                A(f'buffer_load_dword v10, v8, s[{S_WS}:{S_WS+3}], s{G_T0} offen sc1')
                A('s_waitcnt vmcnt(0)')
                A('v_min_u32 v9, v9, v10')
                A(f'v_cmp_ge_u32 vcc, s{S_TASK+1}, v9')
                A(f's_cbranch_vccz {ok}')
                A(f's_add_u32 s{S_TO}, s{S_TO}, 1'); A(f's_cmp_ge_u32 s{S_TO}, {TIMEOUT}'); A('s_cbranch_scc1 L_abort')
                A(f'v_readfirstlane_b32 s{G_T1}, v9'); A('s_nop 3'); A(f's_add_u32 s{G_T1}, s{G_T1}, 1')
                A(f's_add_u32 s{G_T1}, s{G_T1}, {0}') if False else None
                A(f's_cmp_gt_u32 s{S_TASK+1}, s{G_T1}'); A(f's_cbranch_scc1 {far}')
                A('s_sleep 4'); A(f's_branch {lp}')
                A(f'{far}:')
                A('s_sleep 60'); A(f's_branch {lp}')
                A(f'{ok}:')
                A('s_barrier')
            att.attention(A, wait_progress)
            A('s_branch L_done')
        elif name == 'G':
            load_ptr(A, S_CODE, KA_GW); load_ptr(A, S_CODE + 4, KA_X); A('s_waitcnt lgkmcnt(0)')
            srd(A, S_WD, S_CODE, 2048); srd(A, S_XD, S_CODE + 4, 2048 * 2048)
            att.gate(A)
            A('s_branch L_done')
    def signal(word):
        ensure_init()
        A(f's_lshr_b32 s{G_T0}, s{word}, 8'); A(f's_lshl_b32 s{G_T0}, s{G_T0}, 7'); A(f's_add_u32 s{G_T0}, s{G_T0}, {hx(CNT)}')
        A(f's_and_b32 s{G_T1}, s{word}, 0xff')
        A(f'v_mov_b32 v2, s{G_T0}'); A(f'v_mov_b32 v3, s{G_T1}'); A(f'v_mov_b32 v{V_T}, {hx(OOB)}'); A('v_cmp_eq_u32 vcc, 0, v1'); A('s_nop 1')
        A(f'v_cndmask_b32 v2, v{V_T}, v2, vcc')
        A(f'buffer_atomic_add v3, v2, s[{S_WS}:{S_WS+3}], 0 offen')
    EPI = {'K': 'plain', 'Q': 'plain', 'V': 'plain', 'F': 'plain', 'H': 'silu', 'O': 'final'}
    for (shape, xt, orient), (lab, epis) in shared.items():
        g = gens[shape]
        chain = g.chain = (shape, xt) == ('big', 'fn') and 'nochain' not in opts
        A(f'{lab}:')
        g.setup(xt)
        g.stamp = lambda k: tstamp(4, 5)
        if chain: A(f's_mov_b32 s{G_HEAD}, 0'); A(f's_mov_b32 s{G_PHASE}, 0')
        g.prologue(xt)
        lp = f'L_loop_{shape}_{xt}_{orient}'
        g.loop(xt, orient, lp)
        epis = sorted(set(epis))
        labs = {e: A.label('epi_' + e) for e in epis}
        sel = A.label('episel')
        if chain:
            tl = A.label('tail')
            A(f's_cmp_lg_u32 s{G_PHASE}, 0'); A(f's_cbranch_scc1 {sel}')
            A(f's_cmp_eq_u32 s{S_TASK+3}, 0'); A(f's_cbranch_scc1 {tl}')
            go_ = A.label('sw')
            for nm in XM:
                if (nm, 'big') not in SC.KID or SC.KID[(nm, 'big')] not in kinds: continue
                nx = A.label('swn')
                A(f's_cmp_lg_u32 s{S_NEXT}, {SC.KID[(nm, "big")]}'); A(f's_cbranch_scc1 {nx}')
                xmat(nm, g, S_NEXT + 1, S_NEXT + 2, S_NOB, S_NOTS)
                A(f's_branch {go_}')
                A(f'{nx}:')
            A('s_branch L_abort')
            A(f'{go_}:')
            g.setup_wg(xt)
            A(f's_mov_b32 s{G_PHASE}, 1'); A(f's_mov_b32 s{G_NK}, 1')
            A(f's_branch {lp}')
            A(f'{tl}:')
        g.tail(xt, orient)
        A(f'{sel}:')
        A('s_nop 7')
        tstamp(2, 6)
        kind_of = {e: [k for k in kinds if SC.KINDS[k][1] == shape and EPI.get(SC.KINDS[k][0]) == e] for e in epis}
        for e in epis[1:]:
            for k in kind_of[e]:
                A(f's_cmp_eq_u32 s{S_TASK}, {k}'); A(f's_cbranch_scc1 {labs[e]}')
        for e in epis:
            A(f'{labs[e]}:')
            if e == 'plain': g.epi_frag(orient, zero=chain)
            elif e == 'silu':
                A(f's_mov_b32 s{G_C0}, 0xbfb8aa3b'); A(f's_mov_b32 s{G_C0+1}, 0xbfb8aa3b')
                g.epi_frag(orient, True, zero=chain)
            else:
                lw = A.label('latew')
                A(f's_cmp_lg_u32 s{S_WAVE}, 0'); A(f's_cbranch_scc1 {lw}')
                poll([S_TASK + 6], lw)
                A(f'{lw}:')
                A('s_barrier')
                g.epi_final()
            A(f's_branch {"L_chained" if chain else "L_done"}')
        for o, b in g.outofline:
            A(f'{o}:')
            A(f's_mov_b32 s{G_HEAD}, 0')
            A(f's_cmp_lg_u32 s{S_WAVE}, 0'); A(f's_cbranch_scc1 {b}')
            signal(G_PSIG)
            A(f's_branch {b}')
        g.outofline = []
    if ('big', 'fn', 'kq') in shared and 'nochain' not in opts:
        A('L_chained:')
        A(f's_cmp_eq_u32 s{G_PHASE}, 0'); A('s_cbranch_scc1 L_done')
        tstamp(3)
        A(f's_mov_b32 s{G_PSIG}, s{S_TASK+7}')
        for i in range(8): A(f's_mov_b32 s{S_TASK+i}, s{S_NEXT+i}')
        A(f's_add_u32 s{S_IDX}, s{S_IDX}, 1')
        A(f's_lshl_b32 s{G_T0}, s{S_IDX}, 5'); A(f's_add_u32 s{G_T0}, s{G_T0}, 32')
        A(f's_load_dwordx8 s[{S_NEXT}:{S_NEXT+7}], s[{S_TAB}:{S_TAB+1}], s{G_T0}')
        A(f's_mov_b32 s{G_OB}, s{S_NOB}'); A(f's_mov_b32 s{G_OTS}, s{S_NOTS}')
        A(f's_mov_b32 s{G_NK}, 7'); A(f's_mov_b32 s{G_PHASE}, 0'); A(f's_mov_b32 s{G_HEAD}, 1')
        tstamp(0); tstamp(1); tstamp(4, 5)
        A('s_waitcnt lgkmcnt(0)')
        A(f's_cmp_eq_u32 s{S_TASK}, {SC.KID[("V", "big")]}'); A('s_cbranch_scc1 L_loop_big_fn_v')
        A('s_branch L_loop_big_fn_kq')
    A('L_done:')
    A('s_waitcnt vmcnt(0)')
    A('s_barrier')
    tstamp(3)
    nxt = A.label('nosig')
    A(f's_cmp_lg_u32 s{S_WAVE}, 0'); A(f's_cbranch_scc1 {nxt}')
    A(f's_cmp_eq_u32 s{S_TASK+7}, 0'); A(f's_cbranch_scc1 {nxt}')
    signal(S_TASK + 7)
    A(f'{nxt}:')
    A(f's_add_u32 s{S_IDX}, s{S_IDX}, 1')
    A(f's_cmp_eq_u32 s{S_DYN}, 0'); A('s_cbranch_scc1 L_task')
    A('L_dyn:')
    A(f's_mov_b32 s{S_DYN}, 1')
    A(f's_lshr_b32 s{G_T1}, s{S_J}, 5'); A(f's_and_b32 s{G_T1}, s{G_T1}, 3')
    d1 = A.label('dyn')
    A(f's_cmp_lg_u32 s{S_WAVE}, 0'); A(f's_cbranch_scc1 {d1}')
    A(f's_lshl_b32 s{G_T0}, s{G_T1}, 2'); A(f's_add_u32 s{G_T0}, s{G_T0}, {4*DBG_QUEUE}')
    A(f'v_mov_b32 v2, s{G_T0}'); A('v_mov_b32 v3, 1'); A(f'v_mov_b32 v4, {hx(OOB)}'); A('v_cmp_eq_u32 vcc, 0, v1'); A('s_nop 1')
    A('v_cndmask_b32 v2, v4, v2, vcc')
    A(f'buffer_atomic_add v3, v2, s[{S_DBG}:{S_DBG+3}], 0 offen sc0')
    A('s_waitcnt vmcnt(0)')
    A(f'v_readfirstlane_b32 s{G_T0}, v3'); A('s_nop 1')
    A(f'v_mov_b32 v3, s{G_T0}'); A(f'v_mov_b32 v2, {L_MISC}'); A('ds_write_b32 v2, v3'); A('s_waitcnt lgkmcnt(0)')
    A(f'{d1}:')
    A('s_barrier')
    A(f'v_mov_b32 v2, {L_MISC}'); A('ds_read_b32 v3, v2')
    A(f's_lshl_b32 s{G_T1}, s{G_T1}, 3'); A(f's_add_u32 s{G_T1}, s{G_T1}, 1024')
    A(f's_load_dwordx2 s[{G_C0}:{G_C0+1}], s[{S_TAB0}:{S_TAB0+1}], s{G_T1}')
    A('s_waitcnt lgkmcnt(0)')
    A(f'v_readfirstlane_b32 s{G_T0}, v3'); A('s_nop 3')
    A(f's_cmp_ge_u32 s{G_T0}, s{G_C0+1}'); A('s_cbranch_scc1 L_end')
    if stamps:
        f_ = A.label('nost')
        A(f's_cmp_lg_u32 s{S_WAVE}, 0'); A(f's_cbranch_scc1 {f_}')
        A(f's_lshl_b32 s86, s{S_J}, 5'); A(f's_add_u32 s86, s86, s{S_IDX}'); A('s_lshl_b32 s86, s86, 5'); A(f's_add_u32 s86, s86, {hx(STAMP + 0x20000)}')
        A('v_mov_b32 v2, s86'); A(f's_add_u32 s86, s{G_T0}, 1'); A('v_mov_b32 v3, s86')
        A(f'buffer_store_dword v3, v2, s[{S_WS}:{S_WS+3}], 0 offen offset:28')
        A(f'{f_}:')
    A(f's_lshl_b32 s{G_T0}, s{G_T0}, 5'); A(f's_add_u32 s{G_T0}, s{G_T0}, s{G_C0}')
    A(f's_load_dwordx8 s[{S_TASK}:{S_TASK+7}], s[{S_TAB0}:{S_TAB0+1}], s{G_T0}')
    A('s_waitcnt lgkmcnt(0)')
    A('s_branch L_run')

def build(opts=()):
    opts = list(opts)
    A = Asm()
    A.lines += open('header.txt').read().rstrip('\n').split('\n')
    A.lines.append('; @launch grid=(256,1,1) block=(512,1,1) lds=163840')
    A('.amdgcn_target "amdgcn-amd-amdhsa--gfx950"')
    A('.text'); A(f'.globl {NAME}'); A('.p2align 8'); A(f'.type {NAME},@function'); A(f'{NAME}:')
    A('s_cmp_ge_u32 s2, 256'); A('s_cbranch_scc1 L_end')
    if set(opts) & {'stamps', 'light', 'pro', 'abs'}: A('s_memrealtime s[98:99]')
    A(f's_load_dwordx4 s[56:59], s[0:1], {KA_DBG}')
    A(f's_load_dwordx4 s[60:63], s[0:1], {KA_WK}')
    A(f's_load_dwordx2 s[64:65], s[0:1], {KA_WQ}'); A(f's_load_dwordx2 s[66:67], s[0:1], {KA_WO}'); A(f's_load_dwordx2 s[68:69], s[0:1], {KA_X}')
    A(f's_getreg_b32 s{S_X}, hwreg(HW_REG_XCC_ID, 0, 4)')
    A('v_lshrrev_b32 v1, 6, v0'); A('s_nop 0'); A(f'v_readfirstlane_b32 s{S_WAVE}, v1')
    A('s_waitcnt lgkmcnt(0)')
    srd(A, S_WS, 58, WS_BYTES); srd(A, S_DBG, 56, 256)
    A('v_and_b32 v1, 63, v0'); A('v_lshlrev_b32 v2, 4, v1')
    for r in range(4): A(f'v_mov_b32 v{4+r}, -1'); A(f'v_mov_b32 v{8+r}, 0')
    A(f's_lshl_b32 s{G_T0}, s{S_WAVE}, 8'); A(f's_add_u32 s{G_T0}, s{G_T0}, s2'); A(f's_lshl_b32 s{G_T0}, s{G_T0}, 10')
    A(f's_add_u32 s{G_T1}, s{S_WS}, {hx(RB1 + 0x1fffff)}'); A(f's_and_b32 s{G_T1}, s{G_T1}, 0xffe00000'); A(f's_sub_u32 s{G_T1}, s{G_T1}, s{S_WS}')
    A(f's_add_u32 s{G_T2}, s{G_T0}, {hx(RA)}')
    A(f's_cmp_lt_u32 s{S_WAVE}, 2'); A(f's_cselect_b32 s{G_TB}, s{G_T2}, 0')
    A(f's_add_u32 s{G_T2}, s{G_T0}, {hx(RC - 0x80000)}')
    A(f's_cmp_ge_u32 s{S_WAVE}, 2'); A(f's_cselect_b32 s{G_TB}, s{G_T2}, s{G_TB}')
    A(f's_add_u32 s{G_T2}, s{G_T0}, s{G_T1}'); A(f's_sub_u32 s{G_T2}, s{G_T2}, 0x180000')
    A(f's_cmp_ge_u32 s{S_WAVE}, 6'); A(f's_cselect_b32 s{G_TB}, s{G_T2}, s{G_TB}')
    A(f'buffer_store_dwordx4 v[4:7], v2, s[{S_WS}:{S_WS+3}], s{G_TB} offen sc1')
    c2, c3 = A.label('clr'), A.label('clr')
    A(f's_cmp_lt_u32 s{S_WAVE}, 6'); A(f's_cbranch_scc1 {c2}')
    A(f's_add_u32 s{G_TB}, s{G_TB}, 0x80000')
    A(f'buffer_store_dwordx4 v[4:7], v2, s[{S_WS}:{S_WS+3}], s{G_TB} offen sc1')
    A(f'{c2}:')
    A(f's_cmp_lg_u32 s{S_WAVE}, 1'); A(f's_cbranch_scc1 {c3}')
    A('s_cmp_ge_u32 s2, 32'); A(f's_cbranch_scc1 {c3}')
    A(f's_lshl_b32 s{G_T2}, s2, 10'); A(f's_add_u32 s{G_T2}, s{G_T2}, {hx(FLG)}')
    A(f'buffer_store_dwordx4 v[8:11], v2, s[{S_WS}:{S_WS+3}], s{G_T2} offen sc1')
    A(f'{c3}:')
    tk = A.label('tk')
    A(f's_cmp_lg_u32 s{S_WAVE}, 0'); A(f's_cbranch_scc1 {tk}')
    A(f's_and_b32 s{G_T0}, s{S_X}, 3'); A(f's_lshl_b32 s{G_T0}, s{G_T0}, 6'); A(f's_and_b32 s{G_T1}, s{S_X}, 12'); A(f's_add_u32 s{G_T0}, s{G_T0}, s{G_T1}')
    A(f'v_mov_b32 v2, s{G_T0}'); A(f'v_mov_b32 v3, {hx(OOB)}'); A('v_cmp_eq_u32 vcc, 0, v0'); A('v_mov_b32 v1, 1'); A('s_nop 0')
    A('v_cndmask_b32 v2, v3, v2, vcc')
    A(f'buffer_atomic_add v1, v2, s[{S_DBG}:{S_DBG+3}], 0 offen sc0')
    A(f'{tk}:')
    A('s_waitcnt vmcnt(0)')
    tk2 = A.label('tk2')
    A(f's_cmp_lg_u32 s{S_WAVE}, 0'); A(f's_cbranch_scc1 {tk2}')
    A(f'v_readfirstlane_b32 s{G_T0}, v1'); A('s_nop 1')
    A(f'v_mov_b32 v1, s{G_T0}'); A(f'v_mov_b32 v2, {L_MISC}')
    A('ds_write_b32 v2, v1'); A('s_waitcnt lgkmcnt(0)')
    A(f'{tk2}:')
    A('s_barrier')
    ini = A.label('ini')
    A(f's_cmp_lg_u32 s{S_WAVE}, 0'); A(f's_cbranch_scc1 {ini}')
    A(f'v_mov_b32 v2, {4*DBG_INIT}'); A(f'v_mov_b32 v3, {hx(OOB)}'); A('v_cmp_eq_u32 vcc, 0, v0'); A('v_mov_b32 v1, 1'); A('s_nop 0')
    A('v_cndmask_b32 v2, v3, v2, vcc')
    A(f'buffer_atomic_add v1, v2, s[{S_DBG}:{S_DBG+3}], 0 offen')
    A(f'{ini}:')
    A(f'v_mov_b32 v2, {L_MISC}'); A('ds_read_b32 v1, v2'); A('s_waitcnt lgkmcnt(0)')
    A(f'v_readfirstlane_b32 s{S_J}, v1'); A('s_nop 3')
    A('s_barrier')
    A(f's_cmp_ge_u32 s{S_J}, 32'); A('s_cbranch_scc1 L_end')
    if 'nopf' not in opts:
        pr, pg = A.label('pfr'), A.label('pfg')
        A(f's_lshl_b32 s{G_T0}, s{S_J}, 3'); A(f's_add_u32 s{G_T0}, s{G_T0}, s{S_WAVE}')
        A('v_and_b32 v12, 63, v0'); A('v_lshlrev_b32 v12, 4, v12')
        A(f's_cmp_lt_u32 s{S_X}, 4'); A(f's_cbranch_scc1 {pr if "rpf" in opts else "L_rec"}')
        srd(A, S_XD, 68, 2048 * 2048)
        A(f's_lshl_b32 s{G_T1}, s{G_T0}, 11')
        for q in range(2): A(f'buffer_load_dwordx4 a[60:63], v12, s[{S_XD}:{S_XD+3}], s{G_T1} offen offset:{1024*q}')
        A(f's_and_b32 s{G_T1}, s{S_X}, 2'); A(f's_cmp_eq_u32 s{G_T1}, 0'); A(f's_cselect_b32 s{S_XD}, s60, s62'); A(f's_cselect_b32 s{S_XD+1}, s61, s63')
        A(f's_and_b32 s{G_T1}, s{S_X}, 1'); A(f's_lshl_b32 s{G_T1}, s{G_T1}, 12')
        A(f's_lshl_b32 s{G_T2}, s{G_T0}, 13'); A(f's_add_u32 s{G_T1}, s{G_T1}, s{G_T2}')
        A(f's_mov_b32 s{G_TB}, {256 * 8192}'); A(f's_mov_b32 s{G_C0}, 4')
        A(f's_branch {pg}')
        A(f'{pr}:')
        A(f's_cmp_lt_u32 s{G_T0}, 128'); A(f's_cselect_b32 s{S_XD}, s64, s66'); A(f's_cselect_b32 s{S_XD+1}, s65, s67')
        A(f's_and_b32 s{G_T2}, s{G_T0}, 127')
        A(f's_lshl_b32 s{G_T1}, s{G_T2}, 14'); A(f's_lshl_b32 s{G_TB}, s{S_X}, 11'); A(f's_add_u32 s{G_T1}, s{G_T1}, s{G_TB}')
        A(f's_lshl_b32 s{G_T2}, s{G_T2}, 12'); A(f's_lshl_b32 s{G_TB}, s{S_X}, 21'); A(f's_add_u32 s{G_T2}, s{G_T2}, s{G_TB}')
        A(f's_cmp_lt_u32 s{G_T0}, 128'); A(f's_cselect_b32 s{G_T1}, s{G_T1}, s{G_T2}')
        A(f's_mov_b32 s{G_TB}, {256 * 8192}'); A(f's_cselect_b32 s{G_TB}, s{G_TB}, {128 * 4096}')
        A(f's_cselect_b32 s{G_C0}, 1, 0')
        A(f'{pg}:')
        A(f's_mov_b32 s{S_XD+2}, 0x800000'); A(f's_mov_b32 s{S_XD+3}, 0x20000')
        A(f's_cmp_eq_u32 s{G_C0}, 1'); A(f's_cselect_b32 s{G_T2}, {8192 - 2048}, 0'); A(f'v_add_u32 v13, s{G_T2}, v12')
        for i in range(4):
            for q in range(4):
                A(f'buffer_load_dwordx4 a[60:63], v{12 if q < 2 else 13}, s[{S_XD}:{S_XD+3}], s{G_T1} offen offset:{1024*q}')
            A(f's_add_u32 s{G_T1}, s{G_T1}, s{G_TB}')
    A(f's_cmp_lt_u32 s{S_X}, 4'); A('s_cbranch_scc1 L_rec')
    A(f's_sub_u32 s{S_X}, s{S_X}, 4')
    if 'nogemm' in opts: A('s_branch L_end')
    A('L_exec:')
    A(f's_lshl_b32 s{S_X}, s{S_X}, 5'); A(f's_add_u32 s{S_J}, s{S_J}, s{S_X}')
    executor(A, opts)
    A('L_rec:')
    if 'norec' not in opts:
        A(f's_load_dwordx4 s[44:47], s[0:1], {KA_MEM0}')
        A(f's_load_dwordx4 s[48:51], s[0:1], {KA_WK}')
        A(f's_load_dwordx2 s[54:55], s[0:1], {KA_WO}')
        A('s_waitcnt lgkmcnt(0)')
        A('s_mov_b32 s52, s44'); A('s_mov_b32 s53, s45')
        st = 'abs' if 'abs' in opts else 'pro' if 'pro' in opts else 'light' if 'stamps' in opts or 'light' in opts else False
        rec.Rec(A, st, True, opts=opts).emit()
        A('s_waitcnt vmcnt(0) lgkmcnt(0)')
        A('s_barrier')
        A(f's_add_u32 s{S_X}, s{S_X}, 4')
        A('s_branch L_exec' if 'nogemm' not in opts else 's_branch L_end')
    A('s_branch L_end')
    A('L_abort:')
    A(f'v_mov_b32 v1, 1'); A(f'v_mov_b32 v2, {4*DBG_ERR}')
    A(f'buffer_atomic_add v1, v2, s[{S_DBG}:{S_DBG+3}], 0 offen')
    A('L_end:')
    A('s_endpgm')
    A('.p2align 6')
    A('.type L_table,@object')
    A('L_table:')
    rows, offs, pos = [], [], 1056
    isx = lambda t: SC.KINDS[t[0]][0] in 'KQVH' and SC.KINDS[t[0]][1] == 'big'
    tab = list(SC.table()); tab += [[]] * (256 - len(tab))
    for lst in tab:
        assert len(lst) < 32
        lst = [t[:3] + (1,) + t[4:] if isx(t) and i + 1 < len(lst) and isx(lst[i + 1]) else t for i, t in enumerate(lst)]
        seen = False
        for i, t in enumerate(lst):
            if isx(t):
                if seen: lst[i] = t[:4] + (0,) + t[5:]
                seen = True
        offs.append(pos); rows += lst + [(0,) * 8]; pos += 32 * (len(lst) + 1)
    rows.append((0,) * 8); pos += 32
    qh = []
    for lst in SC.dyn():
        qh += [pos, len(lst)]; rows += lst; pos += 32 * len(lst)
    for i in range(0, 256, 8): A.lines.append('.long ' + ','.join(str(w) for w in offs[i:i+8]))
    A.lines.append('.long ' + ','.join(str(w) for w in qh))
    for t in rows: A.lines.append('.long ' + ','.join(str(w) for w in t))
    A('.size L_table, .-L_table')
    A('.section .rodata,"a"'); A('.p2align 6'); A(f'.amdhsa_kernel {NAME}')
    for k in ('next_free_vgpr 256', 'next_free_sgpr 102', 'accum_offset 192', 'group_segment_fixed_size 0', 'kernarg_size 112',
              'user_sgpr_count 2', 'user_sgpr_kernarg_segment_ptr 1', 'system_sgpr_workgroup_id_x 1', 'float_denorm_mode_32 3'):
        A.lines.append('  .amdhsa_' + k)
    A('.end_amdhsa_kernel')
    return A.text()

if __name__ == '__main__':
    opts = sys.argv[2:]
    for o in opts:
        if o.startswith('sched='): SC.MODE = o[6:]
    open(sys.argv[1], 'w').write(build(opts))
```

```python
from asmlib import *
from layout import *

S_WS, S_T0, S_T1, S_T2, S_DBG = 4, 8, 12, 16, 20
S_X, S_J, S_H, S_B, S_WAVE, S_STEP, S_TO = 24, 25, 26, 27, 28, 29, 31
S_A, S_B2, S_C, S_B1, S_B1BASE, S_KV, S_KM, S_TMP = 32, 33, 34, 35, 36, 37, 38, 39
S_TMP2, S_TMP3 = 40, 41
S_CLR = 42
S_PQ, S_PK, S_PV, S_PM, S_PO = 46, 48, 50, 52, 54
S_TCH, S_TO0, S_TST, S_TRS = 56, 60, 61, 62
S_U = 64
S_ST = 72
NSTEP = 64
TIMEOUT = 1 << 20

L_QK  = 0
QK_WS, QK_RS = 2176, 272
L_V   = 8704
L_S3  = 12800
S3_WS, S3_RS = 1152, 144
L_MISC= 17408
L_KV  = 18432
L_RO  = 32768
L_ST1 = 32768
L_ST3 = 131072

class Rec:
    def __init__(self, A, stamps=False, plain=True, abort='L_abort', opts=(), tag=''):
        self.A, self.stamps, self.abort, self.tag = A, stamps, abort, tag
        self.pl = '' if plain else ' sc1'
        self.opts = set(opts)
        self.kvwait = 'nokvwait' not in self.opts
        self.absstep, self.late, self.cold = 40, (), []
        self.done, self.done_y2 = f'L_rec_done{tag}', f'L_rec_done_y2{tag}'

    def stamp(self, k):
        if self.stamps != 'abs': return
        A = self.A
        A(f's_memrealtime s[{S_ST+2}:{S_ST+3}]'); A('s_waitcnt lgkmcnt(0)')
        A(f's_cmp_eq_u32 s{S_STEP}, {self.absstep + (1 if k in self.late else 0)}')
        A(f's_cselect_b32 s{S_ST+4+k}, s{S_ST+2}, s{S_ST+4+k}')
    def pst(self, k):
        if self.stamps != 'pro': return
        self.A(f's_memrealtime s[{S_ST}:{S_ST+1}]'); self.A('s_waitcnt lgkmcnt(0)'); self.A(f's_mov_b32 s{S_ST+4+k}, s{S_ST}')
    def stamp0(self):
        self.pst(5)
        if self.stamps not in ('abs', 'light'): return
        A = self.A
        for k in range(4, 17): A(f's_mov_b32 s{S_ST+k}, 0')
        A(f's_memrealtime s[{S_ST+2}:{S_ST+3}]'); A(f's_memtime s[{S_ST}:{S_ST+1}]'); A('s_waitcnt lgkmcnt(0)')
        if self.stamps == 'light': A(f's_mov_b32 s{S_ST+4}, s{S_ST+2}'); A(f's_mov_b32 s{S_ST+6}, s98')
    def count_retry(self):
        if self.stamps: self.A(f's_add_u32 s{S_ST+16}, s{S_ST+16}, 1')

    def timeout(self, again):
        A = self.A
        self.count_retry()
        A(f's_add_u32 s{S_TO}, s{S_TO}, 1')
        A(f's_cmp_lt_u32 s{S_TO}, {TIMEOUT}')
        A(f's_cbranch_scc1 {again}')
        A(f's_branch {self.abort}')

    def gather(self, loads, t, name):
        A = self.A
        wait, retry = A.label(name + 'wait'), A.label(name + 'retry')
        for ins, _ in loads: A(ins)
        A(f'{wait}:')
        A('s_waitcnt vmcnt(0)')
        regs = [r for _, r in loads]
        A(f'v_max3_u32 v{t}, v{regs[0]}, v{regs[1]}, v{regs[2]}')
        i = 3
        while i + 1 < len(regs):
            A(f'v_max3_u32 v{t}, v{t}, v{regs[i]}, v{regs[i+1]}'); i += 2
        if i < len(regs): A(f'v_max_u32 v{t}, v{t}, v{regs[i]}')
        A(f'v_cmp_eq_u32 vcc, -1, v{t}')
        A(f's_cbranch_vccnz {retry}')
        def cold():
            A(f'{retry}:')
            for ins, _ in loads: A(ins)
            self.timeout(wait)
        self.cold.append(cold)

    def gather_staged(self, loads, work, name):
        A = self.A
        n = len(loads)
        for ins, _ in loads: A(ins)
        for u, (_, r) in enumerate(loads):
            retry, back = A.label(name + 'retry'), A.label(name + 'back')
            A(f's_waitcnt vmcnt({n - 1 - u})')
            A(f'v_cmp_eq_u32 vcc, -1, v{r}')
            A(f's_cbranch_vccnz {retry}')
            A(f'{back}:')
            work(u)
            def cold(u=u, r=r, retry=retry, back=back):
                A(f'{retry}:')
                for ins, _ in loads[u:]: A(ins)
                A(f's_waitcnt vmcnt({n - 1 - u})')
                A(f'v_cmp_eq_u32 vcc, -1, v{r}')
                A(f's_cbranch_vccz {back}')
                self.timeout(retry)
            self.cold.append(cold)

    def poll_ge(self, srd_, soff, target, sleep=4):
        A = self.A
        loop, ok = A.label('poll'), A.label('pollok')
        A('v_mov_b32 v8, 0')
        A(f's_mov_b32 s{S_TMP3}, {hx(target)}')
        A(f'{loop}:')
        A(f'buffer_load_dword v6, v8, s[{srd_}:{srd_+3}], s{soff} offen sc1')
        A('s_waitcnt vmcnt(0)')
        A(f'v_cmp_le_u32 vcc, s{S_TMP3}, v6')
        A(f's_cbranch_vccnz {ok}')
        A(f's_sleep {sleep}')
        self.timeout(loop)
        A(f'{ok}:')

    def flush_cold(self):
        for f in self.cold: f()
        self.cold = []

    def ring(self, dst, base, step_add, xstride, sstride):
        A = self.A
        A(f's_add_u32 s{S_TMP}, s{S_STEP}, {step_add & 3}'); A(f's_and_b32 s{S_TMP}, s{S_TMP}, 3')
        A(f's_mul_i32 s{S_TMP}, s{S_TMP}, {hx(sstride)}')
        A(f's_mul_i32 s{dst}, s{S_X}, {hx(xstride)}'); A(f's_add_u32 s{dst}, s{dst}, s{S_TMP}'); A(f's_add_u32 s{dst}, s{dst}, {hx(base)}')
    def ringA(self, dst, add): self.ring(dst, RA, add, 65536, 16384)
    def ringB2(self, dst, add): self.ring(dst, RB2, add, 65536, 16384)
    def ringC(self, dst, add): self.ring(dst, RC, add, 262144, 65536)
    def ringB1(self, dst, add):
        A = self.A
        A(f's_add_u32 s{S_TMP}, s{S_STEP}, {add & 3}'); A(f's_and_b32 s{S_TMP}, s{S_TMP}, 3'); A(f's_lshl_b32 s{S_TMP}, s{S_TMP}, 18')
        A(f's_add_u32 s{dst}, s{S_B1BASE}, s{S_TMP}')

    def mask_oob(self, reg, cmp):
        A = self.A
        A(cmp); A(f'v_mov_b32 v6, {hx(OOB)}'); A('s_nop 0'); A(f'v_cndmask_b32 v{reg}, v6, v{reg}, vcc')

    def load_weights(self, stage, between=None):
        A = self.A
        nm = 3 if stage == 1 else 1
        rowb = 8192 if stage == 1 else 2048
        ustep = 256 if stage == 1 else 64
        VG, VL, VT, VG2, VL2 = 4, 5, 12, 10, 11
        SL, SO = S_TMP2, S_KM
        A(f's_and_b32 s{SO}, s{S_J}, 1')
        if stage == 1:
            A(f's_lshl_b32 s{S_TMP}, s{S_H}, 8'); A(f's_and_b32 s{S_TMP3}, s{S_B}, 2'); A(f's_lshl_b32 s{S_TMP3}, s{S_TMP3}, 6'); A(f's_add_u32 s{S_TMP}, s{S_TMP}, s{S_TMP3}')
            A(f's_lshl_b32 s{S_TMP3}, s{S_WAVE}, 19'); A(f's_add_u32 s{S_TMP}, s{S_TMP}, s{S_TMP3}')
            A(f's_mul_i32 s{SL}, s{S_WAVE}, 24576'); A(f's_add_u32 s{SL}, s{SL}, {L_ST1}')
        else:
            A(f's_lshl_b32 s{S_TMP}, s{S_X}, 21')
            A(f's_sub_u32 s{S_TMP3}, s{S_WAVE}, 4'); A(f's_lshl_b32 s{SL}, s{S_TMP3}, 13'); A(f's_add_u32 s{SL}, s{SL}, {L_ST3}')
            A(f's_lshl_b32 s{S_TMP3}, s{S_TMP3}, 19'); A(f's_add_u32 s{S_TMP}, s{S_TMP}, s{S_TMP3}')
            A(f's_lshr_b32 s{S_TMP3}, s{S_J}, 1'); A(f's_lshl_b32 s{S_TMP3}, s{S_TMP3}, 7'); A(f's_add_u32 s{S_TMP}, s{S_TMP}, s{S_TMP3}')
        A(f's_mul_i32 s{S_TMP3}, s{SO}, {32 * rowb}'); A(f's_add_u32 s{S_TMP3}, s{S_TMP3}, s{S_TMP}')
        A(f'v_lshrrev_b32 v{VG}, 3, v1'); A(f'v_mul_u32_u24 v{VG}, {rowb}, v{VG}'); A(f'v_and_b32 v6, 7, v1'); A(f'v_lshl_add_u32 v{VG}, v6, 4, v{VG}')
        A(f'v_add_u32 v{VG}, s{S_TMP3}, v{VG}')
        A(f's_xor_b32 s{S_TMP3}, s{SO}, 1'); A(f's_mul_i32 s{S_TMP3}, s{S_TMP3}, {32 * rowb}'); A(f's_add_u32 s{S_TMP}, s{S_TMP}, s{S_TMP3}')
        A(f's_lshl_b32 s{S_TMP3}, s{SO}, 6'); A(f's_add_u32 s{S_TMP}, s{S_TMP}, s{S_TMP3}')
        A(f'v_lshrrev_b32 v{VG2}, 2, v1'); A(f'v_mul_u32_u24 v{VG2}, {rowb}, v{VG2}'); A(f'v_and_b32 v6, 3, v1'); A(f'v_lshl_add_u32 v{VG2}, v6, 4, v{VG2}')
        A(f'v_add_u32 v{VG2}, s{S_TMP}, v{VG2}')
        A('v_lshrrev_b32 v6, 1, v3'); A('v_and_b32 v7, 1, v3')
        if stage == 1: A('v_lshlrev_b32 v6, 4, v6'); A('v_lshl_add_u32 v6, v7, 2, v6')
        else: A('v_lshlrev_b32 v6, 3, v6'); A('v_lshl_add_u32 v6, v7, 4, v6')
        A('v_lshrrev_b32 v7, 2, v2'); A('v_add_u32 v6, v6, v7'); A('v_and_b32 v7, 3, v2'); A('v_lshlrev_b32 v7, 3, v7')
        A(f'v_lshl_add_u32 v{VL2}, v6, 6, v7'); A(f'v_add_u32 v{VL2}, s{SL}, v{VL2}')
        A(f'v_lshl_add_u32 v{VL}, v6, 7, v7'); A(f's_lshl_b32 s{S_TMP3}, s{SO}, 6'); A(f's_add_u32 s{S_TMP3}, s{S_TMP3}, s{SL}'); A(f'v_add_u32 v{VL}, s{S_TMP3}, v{VL}')
        srds = [S_T0, S_T1, S_T2]
        bufsz = nm * 4096
        def dest(f, d):
            if stage == 3 or f < 8: return ('a', 8 * f + d)
            return ('v', 64 + 8 * (f - 8) + d)
        phr = 8 if stage == 1 else 4
        def body(par):
            def issue(n):
                if n < 4:
                    for m in range(nm):
                        for q in range(4):
                            A(f's_add_u32 m0, s{SL}, {(n & 1) * bufsz + m * 4096 + q * 1024}'); A(f's_mov_b32 s{S_TMP}, {hx((ustep * n + 8 * q) * rowb)}')
                            A(f'buffer_load_dwordx4 v{VG}, s[{srds[m]}:{srds[m]+3}], s{S_TMP} offen lds')
                else:
                    for m in range(nm):
                        for q in range(4):
                            u = 2 * (n - 4) + (q >> 1)
                            A(f's_add_u32 m0, s{SL}, {(n & 1) * bufsz + m * 4096 + q * 1024}'); A(f's_mov_b32 s{S_TMP}, {hx((ustep * u + 16 * (q & 1)) * rowb)}')
                            A(f'buffer_load_dwordx4 v{VG2}, s[{srds[m]}:{srds[m]+3}], s{S_TMP} offen lds')
            issue(0); issue(1)
            for n in range(6):
                if between and n < 4: between(n)
                A(f's_waitcnt vmcnt({4 * nm if n < 5 and not (between and n == 3) else 0})')
                for m in range(nm):
                    jobs = []
                    for uu in ([n] if n < 4 else [2 * (n - 4), 2 * (n - 4) + 1]):
                        for tau in range(2):
                            for ph in range(2):
                                if n < 4: jobs.append((uu, par, tau, ph, VL, (n & 1) * bufsz + m * 4096 + ph * phr * 128 + tau * 32))
                                else: jobs.append((uu, par ^ 1, tau, ph, VL2, (n & 1) * bufsz + m * 4096 + (uu & 1) * 2048 + ph * phr * 64 + tau * 32))
                    for k, (uu, dh, tau, ph, va, off) in enumerate(jobs):
                        A(f'ds_read_b64_tr_b16 v[{VT+2*k}:{VT+2*k+1}], v{va} offset:{off}')
                    A('s_waitcnt lgkmcnt(0)')
                    if m == nm - 1 and n + 2 < 6: issue(n + 2)
                    for k, (uu, dh, tau, ph, va, off) in enumerate(jobs):
                        f = uu * 2 * nm + 2 * m + tau
                        for z in range(2):
                            kind, r = dest(f, 4 * dh + ph + 2 * z)
                            if kind == 'a': A(f'v_accvgpr_write_b32 a{r}, v{VT+2*k+z}')
                            else: A(f'v_mov_b32 v{r}, v{VT+2*k+z}')
        odd, done = A.label('wodd'), A.label('wdone')
        A(f's_cmp_lg_u32 s{SO}, 0'); A(f's_cbranch_scc1 {odd}')
        body(0)
        A(f's_branch {done}')
        A(f'{odd}:')
        body(1)
        A(f'{done}:')
        self.pst(2)

    def wfrag(self, stage, f):
        if stage == 3 or f < 8: return a(8 * f, 8)
        return v(64 + 8 * (f - 8), 8)

    def idx_reg(self, r):
        A = self.A
        A(f'v_and_b32 v{r}, 8, v1'); A(f'v_cmp_eq_u32 vcc, 0, v{r}')
        A(f'v_mov_b32 v{r}, 0xeeee'); A(f'v_mov_b32 v6, 0x4444'); A(f'v_cndmask_b32 v{r}, v{r}, v6, vcc')

    def combine(self, da, db):
        A = self.A
        for r in range(4): A(f'v_permlane32_swap_b32 v{da+r}, v{db+r}')
        for r in (0, 2): A(f'v_pk_add_f32 v[{da+r}:{da+r+1}], v[{da+r}:{da+r+1}], v[{db+r}:{db+r+1}]')
    def pk(self, d, x, y): self.A(f'v_pk_add_f32 v[{d}:{d+1}], v[{x}:{x+1}], v[{y}:{y+1}]')

    def s1(self):
        A = self.A
        VIDX, VG, VWQ, VWV = 4, 5, 7, 8
        VA, VD = 12, 28
        srd(A, S_T0, S_PQ, 1024 * 8192); srd(A, S_T1, S_PK, 1024 * 8192); srd(A, S_T2, S_PV, 1024 * 8192)
        self.load_weights(1)
        self.idx_reg(VIDX)
        srd(A, S_T0, S_PM, 8 * 2048)
        A('v_and_b32 v6, 7, v1'); A('v_lshlrev_b32 v6, 11, v6'); A('v_lshrrev_b32 v9, 3, v1'); A('v_lshl_add_u32 v6, v9, 4, v6')
        A(f's_lshl_b32 s{S_TMP}, s{S_WAVE}, 7'); A(f'v_add_u32 v6, s{S_TMP}, v6')
        for u in range(4):
            A(f'buffer_load_dwordx4 v[{VA+4*u}:{VA+4*u+3}], v6, s[{S_T0}:{S_T0+3}], 0 offen offset:{512*u}')
        A(f's_lshl_b32 s{S_TMP}, s{S_WAVE}, 10'); A(f'v_lshl_add_u32 v{VG}, v1, 4, s{S_TMP}')
        A('v_and_b32 v6, 1, v3'); A(f'v_mul_u32_u24 v{VWQ}, {4*QK_RS}, v6')
        A('v_lshrrev_b32 v6, 5, v1'); A(f'v_lshl_add_u32 v6, v6, 4, v2'); A(f'v_lshl_add_u32 v{VWQ}, v6, 2, v{VWQ}')
        A(f's_mul_i32 s{S_TMP}, s{S_WAVE}, {QK_WS}'); A(f'v_add_u32 v{VWQ}, s{S_TMP}, v{VWQ}')
        A(f's_lshl_b32 s{S_TMP}, s{S_WAVE}, 10'); A(f's_add_u32 s{S_TMP}, s{S_TMP}, {L_V}'); A(f'v_lshl_add_u32 v{VWV}, v1, 4, s{S_TMP}')
        for r in range(24): A(f'v_mov_b32 v{VD+r}, 0')
        A('s_barrier')
        A('s_barrier')
        A('s_waitcnt vmcnt(0)')
        self.stamp0()
        def sm(t, u):
            A(f'v_smfmac_f32_16x16x64_bf16 v[{VD+4*t}:{VD+4*t+3}], v[{VA+4*u}:{VA+4*u+3}], {self.wfrag(1, 6*u+t)}, v{VIDX}')
        def work(u):
            if u == 3: self.stamp(1)
            sm(0, u)
            if u == 3: A('s_barrier')
            sm(1, u); sm(2, u); sm(3, u)
        loop, rest = A.label('s1loop'), A.label('s1rest')
        for u in range(4): work(u)
        A(f's_branch {rest}')
        A(f'{loop}:')
        A('s_barrier')
        self.stamp(0)
        for r in range(24): A(f'v_mov_b32 v{VD+r}, 0')
        self.gather_staged([(f'buffer_load_dwordx4 v[{VA+4*u}:{VA+4*u+3}], v{VG}, s[{S_WS}:{S_WS+3}], s{S_U+u} offen sc1', VA + 4*u + 3)
                            for u in range(4)], work, 'b2')
        A(f'{rest}:')
        sm(4, 0)
        self.combine(VD, VD + 4)
        A(f'ds_write2_b32 v{VWQ}, v{VD}, v{VD+1} offset0:0 offset1:68')
        A(f'ds_write2_b32 v{VWQ}, v{VD+2}, v{VD+3} offset0:136 offset1:204')
        self.combine(VD + 8, VD + 12)
        A(f'ds_write2_b32 v{VWQ}, v{VD+8}, v{VD+9} offset0:32 offset1:100')
        A(f'ds_write2_b32 v{VWQ}, v{VD+10}, v{VD+11} offset0:168 offset1:236')
        sm(5, 0)
        A('s_waitcnt lgkmcnt(0)')
        A('s_barrier')
        for u in range(1, 4): sm(4, u); sm(5, u)
        self.stamp(2)
        A('s_nop 7')
        self.combine(VD + 16, VD + 20)
        A(f'ds_write_b128 v{VWV}, v[{VD+16}:{VD+19}]')
        A('s_waitcnt lgkmcnt(0)')
        A('s_barrier')
        A(f's_cmp_eq_u32 s{S_STEP}, {NSTEP-1}'); A(f's_cbranch_scc1 {self.done}')
        A(f's_add_u32 s{S_STEP}, s{S_STEP}, 1')
        self.ringB2(S_U, 0)
        for u in range(1, 4): A(f's_add_u32 s{S_U+u}, s{S_U}, {4096*u}')
        A('s_barrier')
        A('s_barrier')
        self.stamp(3)
        A(f's_branch {loop}')
        self.flush_cold()

    def s3_setup(self, between=None):
        A = self.A
        srd(A, S_T0, S_PO, 4096 * 2048)
        self.load_weights(3, between)
        self.idx_reg(4)
        A(f's_sub_u32 s{S_TMP2}, s{S_WAVE}, 4'); A(f's_lshl_b32 s{S_TMP}, s{S_TMP2}, 12'); A(f'v_lshl_add_u32 v5, v1, 4, s{S_TMP}')
        A('v_and_b32 v6, 1, v3'); A(f'v_mul_u32_u24 v7, {4*S3_RS}, v6')
        A('v_lshrrev_b32 v6, 5, v1'); A(f'v_lshl_add_u32 v6, v6, 4, v2'); A(f'v_lshl_add_u32 v7, v6, 2, v7')
        A(f's_mul_i32 s{S_TMP}, s{S_TMP2}, {S3_WS}'); A(f's_add_u32 s{S_TMP}, s{S_TMP}, {L_S3}'); A(f'v_add_u32 v7, s{S_TMP}, v7')

    def s3_body(self, st):
        A = self.A
        VA, VD = 12, 28
        for r in range(8): A(f'v_mov_b32 v{VD+r}, 0')
        def work(u):
            if u == 3: self.stamp(st)
            for t in range(2):
                A(f'v_smfmac_f32_16x16x64_bf16 v[{VD+4*t}:{VD+4*t+3}], v[{VA+4*u}:{VA+4*u+3}], {self.wfrag(3, 2*u+t)}, v4')
        self.gather_staged([(f'buffer_load_dwordx4 v[{VA+4*u}:{VA+4*u+3}], v5, s[{S_WS}:{S_WS+3}], s{S_A} offen offset:{1024*u} sc1', VA + 4*u + 3)
                            for u in range(4)], work, 'a')
        A('s_nop 7')
        self.combine(VD, VD + 4)
        A(f'ds_write2_b32 v7, v{VD}, v{VD+1} offset0:0 offset1:36')
        A(f'ds_write2_b32 v7, v{VD+2}, v{VD+3} offset0:72 offset1:108')
        A('s_waitcnt lgkmcnt(0)')
        A('s_barrier')
        self.stamp(st + 1)

    def w4(self):
        A, pk = self.A, self.pk
        VRQ, VCX, VCM, VG1, VG2, VG3, VGM, VRV, VAO, VLN = 36, 37, 38, 39, 40, 41, 42, 43, 44, 45
        KX0, KX1, VX0, VX1 = 48, 52, 56, 60
        P, RR, D0, D1, DM, G = 64, 96, 100, 104, 108, 112
        VM0, VM1, ONE, BX, BM = 128, 130, 132, 136, 140
        O0, O1, SU, T = 144, 148, 152, 156
        SC, SJ = 46, 48
        self.s3_setup()
        A('v_and_b32 v6, 7, v2'); A(f'v_mul_u32_u24 v{VRQ}, {QK_RS}, v6')
        A('v_lshrrev_b32 v6, 3, v2'); A(f'v_lshl_add_u32 v{VRQ}, v6, 7, v{VRQ}'); A(f'v_lshl_add_u32 v{VRQ}, v3, 4, v{VRQ}')
        A(f's_lshl_b32 s{S_TMP}, s{S_J}, 11'); A(f'v_lshl_add_u32 v{VCX}, v1, 4, s{S_TMP}')
        for k, r in ((1, VG1), (2, VG2), (3, VG3)):
            A(f's_xor_b32 s{S_TMP2}, s{S_J}, {k}'); A(f's_lshl_b32 s{S_TMP2}, s{S_TMP2}, 11'); A(f'v_lshl_add_u32 v{r}, v1, 4, s{S_TMP2}')
        A('v_and_b32 v6, 1, v3'); A('v_lshlrev_b32 v6, 3, v6'); A('v_add_u32 v6, v6, v2')
        A(f's_add_u32 s{S_TMP2}, s{S_TMP}, 1024'); A(f'v_lshl_add_u32 v{VCM}, v6, 4, s{S_TMP2}')
        A('v_and_b32 v6, 0x28, v1'); self.mask_oob(VCM, 'v_cmp_eq_u32 vcc, 0x20, v6')
        A(f'v_lshlrev_b32 v6, 4, v2'); A(f'v_lshl_add_u32 v6, v3, 2, v6'); A(f'v_add_u32 v{VGM}, 1024, v6'); A(f'v_add_u32 v{VRV}, {L_V}, v6')
        A(f'v_lshlrev_b32 v6, 7, v3'); A(f'v_lshl_add_u32 v6, v2, 4, v6'); A(f's_lshl_b32 s{S_TMP}, s{S_J}, 9'); A(f'v_add_u32 v{VAO}, s{S_TMP}, v6')
        self.mask_oob(VAO, 'v_cmp_gt_u32 vcc, 8, v2')
        A(f'v_lshlrev_b32 v{VLN}, 4, v1')
        for r in range(4): A(f'v_mov_b32 v{ONE+r}, 0x3f803f80')
        A(f'v_mov_b32 v{VM0+1}, 0'); A(f'v_mov_b32 v{VM1+1}, 0'); A(f'v_mov_b32 v{BM+1}, 0')
        A(f's_mov_b32 s{SC}, 0x3e0293ee')
        for k in range(4): A(f's_xor_b32 s{SJ+k}, s{S_J}, {k}'); A(f's_lshl_b32 s{SJ+k}, s{SJ+k}, 11')
        A('s_barrier')
        A('s_barrier')
        self.stamp0()
        loop = A.label('w4loop')
        A(f'{loop}:')
        A(f's_and_b32 s{S_TMP}, s{S_STEP}, 1'); A(f's_lshl_b32 s{S_TMP}, s{S_TMP}, 12'); A(f'v_add_u32 v6, s{S_TMP}, v{VLN}')
        for k, r in enumerate((KX0, KX1, VX0, VX1)): A(f'ds_read_b128 v[{r}:{r+3}], v6 offset:{L_KV + 1024*k}')
        self.ringC(S_C, 0); self.ringA(S_A, 0)
        for k in range(4): A(f's_add_u32 s{S_U+k}, s{SJ+k}, s{S_C}')
        A('s_waitcnt lgkmcnt(0)')
        A('s_barrier')
        A(f's_cmp_eq_u32 s{S_STEP}, {NSTEP-1}'); A(f's_cbranch_scc1 {self.done_y2}_y')
        A('s_barrier')
        self.stamp(0)
        for w in range(4):
            A(f'ds_read_b128 v[{P+8*w}:{P+8*w+3}], v{VRQ} offset:{L_QK + w*QK_WS}')
            A(f'ds_read_b128 v[{P+8*w+4}:{P+8*w+7}], v{VRQ} offset:{L_QK + w*QK_WS + 64}')
        A('s_waitcnt lgkmcnt(4)')
        for r in range(0, 8, 2): pk(P + r, P + r, P + 8 + r)
        A('s_waitcnt lgkmcnt(2)')
        for r in range(0, 8, 2): pk(P + r, P + r, P + 16 + r)
        A('s_waitcnt lgkmcnt(0)')
        for r in range(0, 8, 2): pk(P + r, P + r, P + 24 + r)
        for r in range(4): A(f'v_cvt_pk_bf16_f32 v{RR+r}, v{P+2*r}, v{P+2*r+1}')
        A('s_nop 1')
        A(f'v_mfma_f32_16x16x32_bf16 v[{D1}:{D1+3}], v[{KX1}:{KX1+3}], v[{RR}:{RR+3}], 0')
        A(f'v_mfma_f32_16x16x32_bf16 v[{D0}:{D0+3}], v[{KX0}:{KX0+3}], v[{RR}:{RR+3}], 0')
        A(f'v_mfma_f32_16x16x32_bf16 v[{DM}:{DM+3}], v[{RR}:{RR+3}], v[{RR}:{RR+3}], 0')
        A('s_nop 6')
        for r in range(4): A(f'v_mov_b32_dpp v{D0+r}, v{D1+r} row_shr:8 row_mask:0xf bank_mask:0xc')
        A(f'buffer_store_dwordx4 v[{D0}:{D0+3}], v{VCX}, s[{S_WS}:{S_WS+3}], s{S_C} offen{self.pl}')
        A(f'buffer_store_dwordx4 v[{DM}:{DM+3}], v{VCM}, s[{S_WS}:{S_WS+3}], s{S_C} offen{self.pl}')
        self.stamp(1)
        A('s_barrier')
        for w in range(4):
            for t in range(2):
                A(f'ds_read2st64_b32 v[{P+4*w+2*t}:{P+4*w+2*t+1}], v{VRV} offset0:{4*w+2*t} offset1:{4*w+2*t+1}')
        A('s_waitcnt lgkmcnt(0)')
        pk(P, P, P + 4); pk(P + 2, P + 2, P + 6); pk(P + 8, P + 8, P + 12); pk(P + 10, P + 10, P + 14)
        pk(P, P, P + 8); pk(P + 2, P + 2, P + 10)
        A(f'v_cvt_pk_bf16_f32 v{VM0}, v{P}, v{P+1}'); A(f'v_cvt_pk_bf16_f32 v{VM1}, v{P+2}, v{P+3}')
        cl = [(f'buffer_load_dwordx4 v[{G+4*k}:{G+4*k+3}], v{r}, s[{S_WS}:{S_WS+3}], s{S_C} offen sc1', G + 4*k + 3) for k, r in enumerate((VG1, VG2, VG3))]
        cl += [(f'buffer_load_dword v{G+12+k}, v{VGM}, s[{S_WS}:{S_WS+3}], s{S_U+k} offen sc1', G + 12 + k) for k in range(4)]
        self.gather(cl, 9, 'c')
        self.stamp(2)
        SM = G + 12
        pk(G + 4, G + 4, G + 8); pk(G + 6, G + 6, G + 10); pk(D0, D0, G); pk(D0 + 2, D0 + 2, G + 2)
        pk(SM, SM, G + 14)
        pk(D0, D0, G + 4); pk(D0 + 2, D0 + 2, G + 6)
        A(f'v_add_f32 v{SM}, v{SM}, v{SM+1}')
        A(f'v_max3_f32 v{T}, v{D0}, v{D0+1}, v{D0+2}')
        A(f'v_max3_f32 v{T}, v{T}, v{D0+3}, v{SM}')
        A('s_nop 1')
        A(f'v_max_f32_dpp v{T+1}, v{T}, v{T} row_ror:8 row_mask:0xf bank_mask:0xf')
        A(f'v_max_f32_dpp v{T}, v{T}, v{T} row_ror:8 row_mask:0xf bank_mask:0xf')
        A('s_nop 1')
        A(f'v_permlane16_swap_b32 v{T}, v{T+1}')
        A(f'v_max_f32 v{T+2}, v{T}, v{T+1}'); A(f'v_max_f32 v{T+1}, v{T}, v{T+1}')
        A('s_nop 1')
        A(f'v_permlane32_swap_b32 v{T+2}, v{T+1}')
        A(f'v_max_f32 v{T}, v{T+2}, v{T+1}')
        A(f'v_mul_f32 v{T}, s{SC}, v{T}')
        A(f'v_fma_f32 v{SM}, v{SM}, s{SC}, -v{T}')
        for r in range(4): A(f'v_fma_f32 v{D0+r}, v{D0+r}, s{SC}, -v{T}')
        A(f'v_exp_f32 v{SM}, v{SM}')
        for r in range(4): A(f'v_exp_f32 v{D0+r}, v{D0+r}')
        A(f'v_mov_b32_dpp v{T+1}, v{SM} row_shl:8 row_mask:0xf bank_mask:0xf')
        A(f'v_cvt_pk_bf16_f32 v{BX}, v{D0}, v{D0+1}')
        A(f'v_cvt_pk_bf16_f32 v{BX+1}, v{D0+2}, v{D0+3}')
        A(f'v_cvt_pk_bf16_f32 v{BM}, v{SM}, v{T+1}')
        A(f'v_mov_b32_dpp v{BX+2}, v{BX} row_shl:8 row_mask:0xf bank_mask:0xf')
        A(f'v_mov_b32_dpp v{BX+3}, v{BX+1} row_shl:8 row_mask:0xf bank_mask:0xf')
        A(f'v_mfma_f32_16x16x16_bf16 v[{SU}:{SU+3}], v[{ONE}:{ONE+1}], v[{BM}:{BM+1}], 0')
        A(f'v_mfma_f32_16x16x16_bf16 v[{O0}:{O0+3}], v[{VM0}:{VM0+1}], v[{BM}:{BM+1}], 0')
        A(f'v_mfma_f32_16x16x16_bf16 v[{O1}:{O1+3}], v[{VM1}:{VM1+1}], v[{BM}:{BM+1}], 0')
        A(f'v_mfma_f32_16x16x32_bf16 v[{SU}:{SU+3}], v[{ONE}:{ONE+3}], v[{BX}:{BX+3}], v[{SU}:{SU+3}]')
        A(f'v_mfma_f32_16x16x32_bf16 v[{O0}:{O0+3}], v[{VX0}:{VX0+3}], v[{BX}:{BX+3}], v[{O0}:{O0+3}]')
        A(f'v_mfma_f32_16x16x32_bf16 v[{O1}:{O1+3}], v[{VX1}:{VX1+3}], v[{BX}:{BX+3}], v[{O1}:{O1+3}]')
        A('s_nop 5')
        A(f'v_rcp_f32 v{T}, v{SU}')
        A('s_nop 0')
        for o in (O0, O1):
            for r in (0, 2): A(f'v_pk_mul_f32 v[{o+r}:{o+r+1}], v[{o+r}:{o+r+1}], v[{T}:{T+1}] op_sel_hi:[1,0]')
        for r in range(4): A(f'v_cvt_pk_bf16_f32 v{RR+r}, v{O0+2*r}, v{O0+2*r+1}')
        A(f'buffer_store_dwordx4 v[{RR}:{RR+3}], v{VAO}, s[{S_WS}:{S_WS+3}], s{S_A} offen{self.pl}')
        A('s_barrier')
        self.stamp(3)
        self.s3_body(4)
        A(f's_add_u32 s{S_STEP}, s{S_STEP}, 1')
        A('s_barrier')
        self.stamp(6)
        A(f's_branch {loop}')
        self.flush_cold()

    def kv_prefetch(self, add, VK, VV):
        A = self.A
        A(f's_add_u32 s{S_TMP}, s{S_STEP}, {add}'); A(f's_min_u32 s{S_KV}, s{S_TMP}, {NSTEP-1}'); A(f's_lshl_b32 s{S_KV}, s{S_KV}, 18')
        A(f's_and_b32 s{S_TMP}, s{S_TMP}, 1'); A(f's_lshl_b32 s{S_TMP}, s{S_TMP}, 12')
        for k, r in enumerate((VK, VK + 1, VV, VV + 1)):
            A(f's_add_u32 m0, s{S_TMP}, {L_KV + 1024*k}'); A('s_nop 0')
            A(f'buffer_load_dwordx4 v{r}, s[{S_WS}:{S_WS+3}], s{S_KV} offen sc1 lds')

    def progress_addr(self, reg, base):
        A = self.A
        A(f's_lshl_b32 s{S_TMP}, s{S_X}, 5'); A(f's_add_u32 s{S_TMP}, s{S_TMP}, s{S_J}'); A(f's_lshl_b32 s{S_TMP}, s{S_TMP}, 7')
        A(f's_add_u32 s{S_TMP}, s{S_TMP}, {hx(base)}'); A(f'v_mov_b32 v{reg}, s{S_TMP}')
        self.mask_oob(reg, 'v_cmp_eq_u32 vcc, 0, v1')

    def w5(self):
        A, pk = self.A, self.pk
        VK, VV, VRK, VRV, VKM, VVM, VPR = 36, 38, 40, 41, 42, 43, 44
        P, PV, OK_, OV = 48, 80, 96, 100
        self.s3_setup()
        A(f's_lshl_b32 s{S_TMP2}, s{S_H}, 12'); A(f's_lshl_b32 s{S_TMP}, s{S_B}, 10'); A(f's_add_u32 s{S_TMP2}, s{S_TMP2}, s{S_TMP}')
        A(f'v_lshl_add_u32 v{VK}, v1, 4, s{S_TMP2}'); A(f'v_add_u32 v{VK+1}, 131072, v{VK}')
        A(f's_lshl_b32 s{S_TMP2}, s{S_TMP2}, 1'); A(f's_add_u32 s{S_TMP2}, s{S_TMP2}, {hx(VX)}')
        A(f'v_lshl_add_u32 v{VV}, v1, 4, s{S_TMP2}'); A(f'v_add_u32 v{VV+1}, 1024, v{VV}')
        assert KX == 0
        A('v_and_b32 v6, 7, v1'); A(f'v_mul_u32_u24 v{VRK}, {QK_RS}, v6'); A(f'v_add_u32 v{VRK}, 128, v{VRK}')
        A('v_bfe_u32 v6, v1, 3, 2'); A(f'v_lshl_add_u32 v{VRK}, v6, 4, v{VRK}')
        A(f's_lshl_b32 s{S_TMP2}, s{S_H}, 11'); A(f's_lshl_b32 s{S_TMP}, s{S_B}, 9'); A(f's_add_u32 s{S_TMP2}, s{S_TMP2}, s{S_TMP}')
        A(f's_add_u32 s{S_TMP}, s{S_TMP2}, {hx(KM)}'); A(f'v_lshl_add_u32 v{VKM}, v1, 4, s{S_TMP}')
        self.mask_oob(VKM, 'v_cmp_gt_u32 vcc, 32, v1')
        A(f'v_lshlrev_b32 v{VRV}, 4, v1'); A(f'v_add_u32 v{VRV}, {L_V}, v{VRV}')
        A(f's_add_u32 s{S_TMP}, s{S_TMP2}, {hx(VM)}'); A(f'v_lshl_add_u32 v{VVM}, v1, 3, s{S_TMP}')
        self.progress_addr(VPR, FLG)
        if self.kvwait:
            A(f's_mov_b32 s{S_TMP2}, {4*DBG_INIT}'); self.poll_ge(S_DBG, S_TMP2, 256)
            A(f's_mov_b32 s{S_TMP2}, {hx(CNT + 128*C_KV)}'); self.poll_ge(S_WS, S_TMP2, 128)
        self.kv_prefetch(0, VK, VV); self.kv_prefetch(1, VK, VV)
        A('s_waitcnt vmcnt(0)')
        A('s_barrier')
        A('s_barrier')
        self.stamp0()
        def prepare():
            for w in range(4):
                A(f'ds_read_b128 v[{P+8*w}:{P+8*w+3}], v{VRK} offset:{L_QK + w*QK_WS}')
                A(f'ds_read_b128 v[{P+8*w+4}:{P+8*w+7}], v{VRK} offset:{L_QK + w*QK_WS + 64}')
            for w in range(4): A(f'ds_read_b128 v[{PV+4*w}:{PV+4*w+3}], v{VRV} offset:{1024*w}')
            A(f's_lshl_b32 s{S_KM}, s{S_STEP}, 16')
            A('s_waitcnt lgkmcnt(0)')
            for q in (8, 16, 24):
                for r in range(0, 8, 2): pk(P + r, P + r, P + q + r)
            for r in range(4): A(f'v_cvt_pk_bf16_f32 v{OK_+r}, v{P+2*r}, v{P+2*r+1}')
            for q in (4, 8, 12): pk(PV, PV, PV + q); pk(PV + 2, PV + 2, PV + q + 2)
            A(f'v_cvt_pk_bf16_f32 v{OV}, v{PV}, v{PV+1}'); A(f'v_cvt_pk_bf16_f32 v{OV+1}, v{PV+2}, v{PV+3}')
        def publish():
            A(f'buffer_store_dwordx4 v[{OK_}:{OK_+3}], v{VKM}, s[{S_WS}:{S_WS+3}], s{S_KM} offen sc1')
            A(f'buffer_store_dwordx2 v[{OV}:{OV+1}], v{VVM}, s[{S_WS}:{S_WS+3}], s{S_KM} offen sc1')
        def progress(val):
            A(f'v_mov_b32 v6, {val}'); A(f'buffer_store_dword v6, v{VPR}, s[{S_WS}:{S_WS+3}], 0 offen sc1')
        loop, last, first = A.label('w5loop'), A.label('w5last'), A.label('w5first')
        A('s_barrier')
        A(f's_branch {first}')
        A(f'{loop}:')
        A('s_barrier')
        A(f's_sub_u32 s{S_TMP}, s{S_STEP}, 1')
        if 'nokm' not in self.opts:
            progress(f's{S_TMP}')
            publish()
        if self.kvwait:
            skip = A.label('kvok')
            A(f's_add_u32 s{S_TMP2}, s{S_STEP}, 1'); A(f's_and_b32 s{S_TMP}, s{S_TMP2}, 0x47')
            A(f's_cmp_lg_u32 s{S_TMP}, 0'); A(f's_cbranch_scc1 {skip}')
            A(f's_lshl_b32 s{S_TMP2}, s{S_TMP2}, 4'); A(f's_add_u32 s{S_TMP2}, s{S_TMP2}, {hx(CNT + 128*C_KV)}')
            self.poll_ge(S_WS, S_TMP2, 128)
            A(f'{skip}:')
        if 'nokv' not in self.opts: self.kv_prefetch(1, VK, VV)
        A(f'{first}:')
        self.ringA(S_A, 0)
        A('s_barrier')
        A('s_barrier')
        prepare()
        A(f's_cmp_eq_u32 s{S_STEP}, {NSTEP-1}'); A(f's_cbranch_scc1 {last}')
        A('s_barrier')
        self.stamp(3)
        self.s3_body(4)
        A(f's_add_u32 s{S_STEP}, s{S_STEP}, 1')
        A('s_barrier')
        self.stamp(6)
        A(f's_branch {loop}')
        A(f'{last}:')
        publish()
        A('s_waitcnt vmcnt(0)')
        progress(NSTEP)
        A(f's_branch {self.done}')
        self.flush_cold()

    def b1_offsets(self, regs):
        A = self.A
        A(f's_lshr_b32 s{S_TMP2}, s{S_J}, 3'); A(f's_lshl_b32 s{S_TMP2}, s{S_TMP2}, 14')
        A(f's_and_b32 s{S_TMP}, s{S_J}, 7'); A(f's_lshl_b32 s{S_TMP}, s{S_TMP}, 10'); A(f's_add_u32 s{S_TMP2}, s{S_TMP2}, s{S_TMP}')
        for k, r in enumerate(regs):
            A(f's_xor_b32 s{S_TMP}, s{S_X}, {k}'); A(f's_lshl_b32 s{S_TMP}, s{S_TMP}, 16'); A(f's_add_u32 s{S_TMP}, s{S_TMP}, s{S_TMP2}')
            A(f'v_lshl_add_u32 v{r}, v1, 4, s{S_TMP}')

    def w6(self):
        A, pk = self.A, self.pk
        VR, VB, VM2 = 36, 37, 41
        P, G, O = 48, 64, 76
        self.s3_setup()
        A('v_and_b32 v6, 7, v1'); A(f'v_mul_u32_u24 v{VR}, {S3_RS}, v6'); A('v_lshrrev_b32 v8, 3, v1'); A(f'v_lshl_add_u32 v{VR}, v8, 4, v{VR}')
        self.b1_offsets([VB, VB + 1, VB + 2, VB + 3])
        A(f'v_lshlrev_b32 v{VM2}, 4, v6'); A(f'v_lshrrev_b32 v9, 1, v8'); A(f'v_lshl_add_u32 v{VM2}, v9, 7, v{VM2}')
        A(f'v_and_b32 v9, 1, v8'); A(f'v_lshl_add_u32 v{VM2}, v9, 3, v{VM2}')
        A(f's_lshl_b32 s{S_TMP}, s{S_J}, 9'); A(f'v_add_u32 v{VM2}, s{S_TMP}, v{VM2}')
        A('s_barrier')
        A('s_barrier')
        A(f'v_mov_b32 v6, {L_MISC+8}'); A('ds_read_b32 v6, v6'); A('s_waitcnt lgkmcnt(0)')
        A(f'v_readfirstlane_b32 s{S_TMP}, v6'); A('s_nop 3'); A(f's_add_u32 s{S_B1BASE}, s{S_B1BASE}, s{S_TMP}')
        self.stamp0()
        loop = A.label('w6loop')
        A(f'{loop}:')
        self.ringA(S_A, 0); self.ringB2(S_B2, 1); self.ringB1(S_B1, 0)
        A('s_barrier')
        A('s_barrier')
        A('s_barrier')
        A(f's_cmp_eq_u32 s{S_STEP}, {NSTEP-1}'); A(f's_cbranch_scc1 {self.done}')
        A('s_barrier')
        self.stamp(3)
        self.s3_body(4)
        for w in range(4): A(f'ds_read_b128 v[{P+4*w}:{P+4*w+3}], v{VR} offset:{L_S3 + w*S3_WS}')
        A('s_waitcnt lgkmcnt(2)')
        pk(P, P, P + 4); pk(P + 2, P + 2, P + 6)
        A('s_waitcnt lgkmcnt(0)')
        pk(P + 8, P + 8, P + 12); pk(P + 10, P + 10, P + 14)
        pk(P, P, P + 8); pk(P + 2, P + 2, P + 10)
        A(f'buffer_store_dwordx4 v[{P}:{P+3}], v{VB}, s[{S_WS}:{S_WS+3}], s{S_B1} offen sc1')
        self.stamp(6)
        A('s_waitcnt vmcnt(0)')
        self.gather([(f'buffer_load_dwordx4 v[{G+4*k}:{G+4*k+3}], v{VB+1+k}, s[{S_WS}:{S_WS+3}], s{S_B1} offen sc1', G + 4*k + 3) for k in range(3)], 9, 'b1')
        self.stamp(7)
        pk(G + 4, G + 4, G + 8); pk(G + 6, G + 6, G + 10); pk(P, P, G); pk(P + 2, P + 2, G + 2)
        pk(P, P, G + 4); pk(P + 2, P + 2, G + 6)
        A(f'v_cvt_pk_bf16_f32 v{O}, v{P}, v{P+1}'); A(f'v_cvt_pk_bf16_f32 v{O+1}, v{P+2}, v{P+3}')
        A(f'buffer_store_dwordx2 v[{O}:{O+1}], v{VM2}, s[{S_WS}:{S_WS+3}], s{S_B2} offen{self.pl}')
        A(f's_add_u32 s{S_STEP}, s{S_STEP}, 1')
        A('s_barrier')
        self.stamp(8)
        A(f's_branch {loop}')
        self.flush_cold()

    def w7(self):
        A = self.A
        VS, VA_, VC0, VC1, VB, VRO = 36, 40, 41, 42, 43, 44
        PM = 68
        for r in range(4): A(f'v_mov_b32 v{VS+r}, -1')
        A(f's_lshl_b32 s{S_TMP}, s{S_J}, 9'); A(f'v_lshl_add_u32 v{VA_}, v1, 4, s{S_TMP}')
        self.mask_oob(VA_, 'v_cmp_gt_u32 vcc, 32, v1')
        A(f's_lshl_b32 s{S_TMP}, s{S_J}, 11'); A(f'v_lshl_add_u32 v{VC0}, v1, 4, s{S_TMP}'); A(f'v_add_u32 v{VC1}, 1024, v{VC0}')
        self.b1_offsets([VB])
        def clr(sreg, vreg, pol, off=0):
            A(f'buffer_store_dwordx4 v[{VS}:{VS+3}], v{vreg}, s[{S_WS}:{S_WS+3}], s{sreg} offen{pol}')
        def dbg_add(val, word):
            A(f'v_mov_b32 v9, {val}'); A(f'v_mov_b32 v8, {4*word}')
            self.mask_oob(8, 'v_cmp_eq_u32 vcc, 0, v1')
            A(f'buffer_atomic_add v9, v8, s[{S_DBG}:{S_DBG+3}], 0 offen')
        self.pst(3)
        A(f's_mov_b32 s{PM}, -1'); A(f's_mov_b32 s{PM+1}, -1')
        def probe(u):
            if u == 3:
                A(f's_cmp_lt_u32 s{PM+1}, s{PM}'); A(f's_cselect_b32 s{S_TMP}, 1, 0'); A(f's_or_b32 s{S_TMP}, s{S_TMP}, 0x10000')
                dbg_add(f's{S_TMP}', DBG_VOTE)
                self.pst(4)
                return
            for par in range(2):
                A(f's_lshl_b32 s{S_TMP}, s{S_X}, 5'); A(f's_add_u32 s{S_TMP}, s{S_TMP}, s{S_J}')
                A(f's_and_b32 s{S_TMP3}, s{S_TMP}, 63'); A(f's_lshl_b32 s{S_TMP3}, s{S_TMP3}, 7')
                A(f's_lshr_b32 s{S_TMP}, s{S_TMP}, 6'); A(f's_lshl_b32 s{S_TMP}, s{S_TMP}, 14'); A(f's_add_u32 s{S_TMP}, s{S_TMP}, s{S_TMP3}')
                A(f's_add_u32 s{S_TMP}, s{S_TMP}, s{S_B1BASE}'); A(f's_add_u32 s{S_TMP}, s{S_TMP}, {0x100000 + u * 0x8000 + par * 8192}')
                A(f's_add_u32 s{PM+2}, s{S_WS}, s{S_TMP}'); A(f's_addc_u32 s{PM+3}, s{S_WS+1}, 0')
                A(f's_memtime s[{S_CLR}:{S_CLR+1}]'); A('s_waitcnt lgkmcnt(0)')
                A(f's_load_dword s{S_TMP}, s[{PM+2}:{PM+3}], 0'); A('s_waitcnt lgkmcnt(0)')
                A(f's_memtime s[{S_CLR+2}:{S_CLR+3}]'); A('s_waitcnt lgkmcnt(0)')
                A(f's_sub_u32 s{S_CLR+2}, s{S_CLR+2}, s{S_CLR}'); A(f's_min_u32 s{PM+par}, s{PM+par}, s{S_CLR+2}')
        self.s3_setup(probe)
        A('s_barrier')
        A(f's_mov_b32 s{S_TMP2}, {4*DBG_INIT}'); self.poll_ge(S_DBG, S_TMP2, 256, sleep=1)
        A(f's_mov_b32 s{S_TMP2}, {4*DBG_VOTE}'); self.poll_ge(S_DBG, S_TMP2, 128 << 16, sleep=1)
        A(f'v_readfirstlane_b32 s{S_TMP2}, v6'); A('s_nop 3')
        A(f's_and_b32 s{S_TMP2}, s{S_TMP2}, 0xffff'); A(f's_cmp_gt_u32 s{S_TMP2}, 64'); A(f's_cselect_b32 s{S_TMP}, 8192, 0')
        if 'par0' in self.opts: A(f's_mov_b32 s{S_TMP}, 0')
        if 'par1' in self.opts: A(f's_mov_b32 s{S_TMP}, 8192')
        A(f'v_mov_b32 v6, s{S_TMP}'); A(f'v_mov_b32 v8, {L_MISC+8}'); A('ds_write_b32 v8, v6'); A('s_waitcnt lgkmcnt(0)')
        A('s_barrier')
        A(f's_add_u32 s{S_B1BASE}, s{S_B1BASE}, s{S_TMP}')
        A(f'v_lshlrev_b32 v{VRO}, 4, v1')
        A(f's_lshl_b32 s{S_U}, s{S_X}, 15'); A(f's_lshl_b32 s{S_TMP}, s{S_J}, 10'); A(f's_add_u32 s{S_U}, s{S_U}, s{S_TMP}'); A(f's_add_u32 s{S_U}, s{S_U}, {hx(RO)}')
        self.stamp0()
        loop = A.label('w7loop')
        A(f'{loop}:')
        self.ringA(S_A, 0); self.ringA(S_CLR, -1); self.ringC(S_CLR + 1, -1); self.ringB2(S_CLR + 2, -1); self.ringB1(S_CLR + 3, -2)
        A('s_barrier')
        if NRO:
            nc = A.label('noro')
            A(f's_cmp_ge_u32 s{S_STEP}, {4*NRO}'); A(f's_cbranch_scc1 {nc}')
            A(f's_lshl_b32 s{S_TMP}, s{S_STEP}, 17'); A(f's_add_u32 s{S_TMP}, s{S_TMP}, s{S_U}')
            A(f'buffer_store_dwordx4 v[{VS}:{VS+3}], v{VRO}, s[{S_WS}:{S_WS+3}], s{S_TMP} offen sc1')
            A(f'{nc}:')
        clr(S_CLR + 3, VB, ' sc1'); clr(S_CLR, VA_, self.pl); clr(S_CLR + 1, VC0, self.pl); clr(S_CLR + 1, VC1, self.pl); clr(S_CLR + 2, VA_, self.pl)
        A('s_barrier')
        A('s_barrier')
        A(f's_cmp_eq_u32 s{S_STEP}, {NSTEP-1}'); A(f's_cbranch_scc1 {self.done}')
        A('s_barrier')
        self.stamp(3)
        self.s3_body(4)
        A(f's_add_u32 s{S_STEP}, s{S_STEP}, 1')
        A('s_barrier')
        self.stamp(6)
        A(f's_branch {loop}')
        self.flush_cold()

    def final_rows(self):
        A, pk = self.A, self.pk
        fin, out = A.label('rofin'), A.label('roout')
        A(f's_mov_b32 s{S_STEP}, 0')
        A(f's_cmp_lt_u32 s{S_WAVE}, 4'); A(f's_cbranch_scc1 {fin}')
        VO, VA, VD, VW = 36, 64, 128, 38
        A('v_lshrrev_b32 v6, 5, v1'); A(f'v_lshlrev_b32 v{VO}, 10, v6'); A('v_bfe_u32 v6, v1, 3, 2'); A(f'v_lshl_add_u32 v{VO}, v6, 8, v{VO}')
        A('v_and_b32 v6, 7, v1'); A(f'v_lshl_add_u32 v{VO}, v6, 4, v{VO}')
        A(f's_lshl_b32 s{S_TMP}, s{S_X}, 2'); A(f's_add_u32 s{S_TMP}, s{S_TMP}, s{S_WAVE}'); A(f's_sub_u32 s{S_TMP}, s{S_TMP}, 4'); A(f's_lshl_b32 s{S_TMP}, s{S_TMP}, 13')
        A(f's_add_u32 s{S_TMP}, s{S_TMP}, {hx(OO + (64 - NRO) * 262144)}')
        A(f'v_add_u32 v{VO}, s{S_TMP}, v{VO}'); A(f'v_add_u32 v{VO+1}, 4096, v{VO}')
        loop = A.label('romm')
        A(f'{loop}:')
        A(f's_lshl_b32 s{S_TMP2}, s{S_STEP}, 2'); A(f's_add_u32 s{S_TMP2}, s{S_TMP2}, s{S_X}'); A(f's_lshl_b32 s{S_TMP2}, s{S_TMP2}, 7')
        A(f's_add_u32 s{S_TMP2}, s{S_TMP2}, {hx(CNT + 128 * C_RO)}')
        self.poll_ge(S_WS, S_TMP2, 8, sleep=2)
        A(f's_lshl_b32 s{S_A}, s{S_STEP}, 18'); A(f's_add_u32 s{S_B2}, s{S_A}, 131072')
        for p in range(4):
            for u in range(4):
                r = VA + 16 * p + 4 * u
                A(f'buffer_load_dwordx4 v[{r}:{r+3}], v{VO + (u >> 1)}, s[{S_WS}:{S_WS+3}], s{S_A if p < 2 else S_B2} offen offset:{(p & 1) * 128 + (u & 1) * 2048} sc1')
        for r in range(32): A(f'v_mov_b32 v{VD+r}, 0')
        A(f's_and_b32 s{S_TMP}, s{S_STEP}, 1'); A(f's_mul_i32 s{S_TMP}, s{S_TMP}, 18432'); A(f's_add_u32 s{S_TMP}, s{S_TMP}, {L_RO - L_S3}')
        for p in range(4): A(f'v_add_u32 v{VW+p}, s{S_TMP}, v7'); A(f's_add_u32 s{S_TMP}, s{S_TMP}, 4608')
        for p in range(4):
            A(f's_waitcnt vmcnt({12 - 4 * p})')
            for u in range(4):
                for t in range(2):
                    d = VD + 8 * p + 4 * t; r = VA + 16 * p + 4 * u
                    A(f'v_smfmac_f32_16x16x64_bf16 v[{d}:{d+3}], v[{r}:{r+3}], {self.wfrag(3, 2*u+t)}, v4')
        for p in range(4):
            if p == 3: A('s_nop 7')
            d = VD + 8 * p
            self.combine(d, d + 4)
            A(f'ds_write2_b32 v{VW+p}, v{d}, v{d+1} offset0:0 offset1:36')
            A(f'ds_write2_b32 v{VW+p}, v{d+2}, v{d+3} offset0:72 offset1:108')
        A('s_waitcnt lgkmcnt(0)')
        A('s_barrier')
        A(f's_add_u32 s{S_STEP}, s{S_STEP}, 1'); A(f's_cmp_lt_u32 s{S_STEP}, {NRO}'); A(f's_cbranch_scc1 {loop}')
        A(f's_branch {out}')
        A(f'{fin}:')
        VR, VS_, VB_, VG_, VOUT, P, G, B, T = 12, 13, 16, 17, 18, 20, 36, 48, 52
        mine, snd = A.label('romine'), A.label('rosend')
        A('v_and_b32 v6, 7, v1'); A(f'v_mul_u32_u24 v{VR}, {S3_RS}, v6'); A('v_lshrrev_b32 v8, 3, v1'); A(f'v_lshl_add_u32 v{VR}, v8, 4, v{VR}')
        A(f's_mul_i32 s{S_TMP}, s{S_WAVE}, 4608'); A(f's_add_u32 s{S_TMP}, s{S_TMP}, {L_RO}'); A(f'v_add_u32 v{VR}, s{S_TMP}, v{VR}')
        for k in range(4):
            A(f's_xor_b32 s{S_TMP}, s{S_X}, {k}'); A(f's_lshl_b32 s{S_TMP}, s{S_TMP}, 15'); A(f's_lshl_b32 s{S_TMP2}, s{S_WAVE}, 17'); A(f's_add_u32 s{S_TMP}, s{S_TMP}, s{S_TMP2}')
            A(f's_lshl_b32 s{S_TMP2}, s{S_J}, 10'); A(f's_add_u32 s{S_TMP}, s{S_TMP}, s{S_TMP2}'); A(f's_add_u32 s{S_TMP}, s{S_TMP}, {hx(RO)}')
            A(f'v_lshl_add_u32 v{VS_ + k if k < 3 else 19}, v1, 4, s{S_TMP}')
        A(f's_cmp_eq_u32 s{S_WAVE}, s{S_X}'); A(f's_cbranch_scc1 {mine}')
        A(f'{snd}:')
        A('s_barrier')
        A(f's_and_b32 s{S_TMP}, s{S_STEP}, 1'); A(f's_mul_i32 s{S_TMP}, s{S_TMP}, 18432'); A(f'v_add_u32 v9, s{S_TMP}, v{VR}')
        for w in range(4): A(f'ds_read_b128 v[{P+4*w}:{P+4*w+3}], v9 offset:{w*S3_WS}')
        A(f's_lshl_b32 s{S_A}, s{S_STEP}, 19')
        A('s_waitcnt lgkmcnt(0)')
        for q in (4, 8, 12): pk(P, P, P + q); pk(P + 2, P + 2, P + q + 2)
        A(f'buffer_store_dwordx4 v[{P}:{P+3}], v{VS_}, s[{S_WS}:{S_WS+3}], s{S_A} offen sc1')
        A(f's_add_u32 s{S_STEP}, s{S_STEP}, 1'); A(f's_cmp_lt_u32 s{S_STEP}, {NRO}'); A(f's_cbranch_scc1 {snd}')
        A(f's_branch {out}')
        A(f'{mine}:')
        A(f's_load_dwordx2 s[{S_PM}:{S_PM+1}], s[0:1], {KA_OUT}'); A('s_waitcnt lgkmcnt(0)')
        srd(A, S_T1, S_PM, 2048 * 2048)
        A(f's_lshl_b32 s{S_TMP}, s{S_X}, 3'); A(f's_add_u32 s{S_TMP}, s{S_TMP}, {32 * (64 - NRO)}'); A(f'v_add_u32 v9, s{S_TMP}, v6')
        A(f'v_lshlrev_b32 v{VG_}, 2, v9'); A(f'v_add_u32 v{VG_}, {hx(GG)}, v{VG_}')
        A(f'v_lshlrev_b32 v{VOUT}, 11, v9'); A(f'v_lshl_add_u32 v{VOUT}, v8, 3, v{VOUT}'); A(f's_lshl_b32 s{S_TMP}, s{S_J}, 6'); A(f'v_add_u32 v{VOUT}, s{S_TMP}, v{VOUT}')
        A(f'v_lshrrev_b32 v10, 4, v9'); A(f'v_lshlrev_b32 v{VB_}, 15, v10'); A('v_and_b32 v10, 15, v9'); A(f'v_lshl_add_u32 v{VB_}, v10, 4, v{VB_}')
        A('v_and_b32 v10, 3, v8'); A(f'v_lshl_add_u32 v{VB_}, v10, 8, v{VB_}'); A('v_lshrrev_b32 v10, 2, v8'); A(f'v_lshl_add_u32 v{VB_}, v10, 3, v{VB_}')
        A(f's_lshl_b32 s{S_TMP}, s{S_J}, 10'); A(f's_add_u32 s{S_TMP}, s{S_TMP}, {hx(BB)}'); A(f'v_add_u32 v{VB_}, s{S_TMP}, v{VB_}')
        A(f's_mov_b32 s{S_TMP2}, {hx(CNT + 128 * (C_B + 7))}'); self.poll_ge(S_WS, S_TMP2, 64)
        loop = A.label('romine')
        A(f'{loop}:')
        A(f's_lshl_b32 s{S_B2}, s{S_STEP}, 16'); A(f's_lshl_b32 s{S_C}, s{S_STEP}, 7')
        A(f'buffer_load_dwordx2 v[{B}:{B+1}], v{VB_}, s[{S_WS}:{S_WS+3}], s{S_B2} offen sc1')
        A(f'buffer_load_dword v{B+2}, v{VG_}, s[{S_WS}:{S_WS+3}], s{S_C} offen sc1')
        A('s_barrier')
        A(f's_and_b32 s{S_TMP}, s{S_STEP}, 1'); A(f's_mul_i32 s{S_TMP}, s{S_TMP}, 18432'); A(f'v_add_u32 v9, s{S_TMP}, v{VR}')
        for w in range(4): A(f'ds_read_b128 v[{P+4*w}:{P+4*w+3}], v9 offset:{w*S3_WS}')
        A(f's_lshl_b32 s{S_A}, s{S_STEP}, 19')
        A('s_waitcnt lgkmcnt(0)')
        for q in (4, 8, 12): pk(P, P, P + q); pk(P + 2, P + 2, P + q + 2)
        self.gather([(f'buffer_load_dwordx4 v[{G+4*k}:{G+4*k+3}], v{(VS_ + 1, VS_ + 2, 19)[k]}, s[{S_WS}:{S_WS+3}], s{S_A} offen sc1', G + 4*k + 3) for k in range(3)], 9, 'ro')
        for q in (0, 4, 8): pk(P, P, G + q); pk(P + 2, P + 2, G + q + 2)
        A(f'v_sub_f32 v{T}, 1.0, v{B+2}'); A(f'v_cvt_pk_bf16_f32 v{T}, v{T}, v{T}'); A(f'v_and_b32 v{T}, 0xffff0000, v{T}')
        def rnd(r, t):
            A(f'v_cvt_pk_bf16_f32 v{t}, v{r}, v{r+1}'); A(f'v_lshlrev_b32 v{r}, 16, v{t}'); A(f'v_and_b32 v{r+1}, 0xffff0000, v{t}')
        for h in range(2):
            a0, b0 = P + 2 * h, G + 2 * h
            rnd(a0, T + 2)
            A(f'v_pk_mul_f32 v[{a0}:{a0+1}], v[{a0}:{a0+1}], v[{B+2}:{B+3}] op_sel_hi:[1,0]')
            A(f'v_lshlrev_b32 v{b0}, 16, v{B+h}'); A(f'v_and_b32 v{b0+1}, 0xffff0000, v{B+h}')
            A(f'v_pk_mul_f32 v[{b0}:{b0+1}], v[{b0}:{b0+1}], v[{T}:{T+1}] op_sel_hi:[1,0]')
            rnd(a0, T + 2); rnd(b0, T + 2)
            pk(a0, a0, b0)
            for o in self.opts:
                if o.startswith('inject=') and h == 0:
                    import struct
                    A(f'v_add_f32 v{a0}, {hx(struct.unpack("<I", struct.pack("<f", float(o[7:])))[0])}, v{a0}')
            A(f'v_cvt_pk_bf16_f32 v{T+4+h}, v{a0}, v{a0+1}')
        A(f'buffer_store_dwordx2 v[{T+4}:{T+5}], v{VOUT}, s[{S_T1}:{S_T1+3}], s{S_B2} offen')
        A(f's_add_u32 s{S_STEP}, s{S_STEP}, 1'); A(f's_cmp_lt_u32 s{S_STEP}, {NRO}'); A(f's_cbranch_scc1 {loop}')
        A(f's_branch {out}')
        self.flush_cold()
        A(f'{out}:')

    def emit(self):
        A = self.A
        A(f's_lshl_b32 s{S_H}, s{S_X}, 3'); A(f's_lshr_b32 s{S_TMP}, s{S_J}, 2'); A(f's_add_u32 s{S_H}, s{S_H}, s{S_TMP}')
        A(f's_and_b32 s{S_B}, s{S_J}, 3')
        A(f's_mov_b32 s{S_STEP}, 0'); A(f's_mov_b32 s{S_TO}, 0')
        A(f's_add_u32 s{S_TMP}, s{S_WS}, {hx(RB1 + 0x1fffff)}'); A(f's_and_b32 s{S_TMP}, s{S_TMP}, 0xffe00000'); A(f's_sub_u32 s{S_B1BASE}, s{S_TMP}, s{S_WS}')
        self.pst(1)
        if self.stamps == 'pro': A(f's_mov_b32 s{S_ST+4}, s98')
        A('v_and_b32 v1, 63, v0'); A('v_and_b32 v2, 15, v1'); A('v_lshrrev_b32 v3, 4, v1')
        labs = {w: A.label(f'w{w}') for w in (4, 5, 6, 7)}
        for w in labs: A(f's_cmp_eq_u32 s{S_WAVE}, {w}'); A(f's_cbranch_scc1 {labs[w]}')
        self.late = (3,); self.s1()
        for w, f, late in ((4, self.w4, (6,)), (5, self.w5, (6,)), (6, self.w6, (8,)), (7, self.w7, (6,))):
            A(f'{labs[w]}:'); self.late = late; f()
        A(f'{self.done_y2}_y:')
        A('s_barrier')
        A('s_barrier')
        A(f'{self.done}:')
        if self.stamps:
            if self.stamps == 'light':
                A(f's_memtime s[{S_ST+2}:{S_ST+3}]'); A('s_waitcnt lgkmcnt(0)'); A(f's_sub_u32 s{S_ST+15}, s{S_ST+2}, s{S_ST}')
                A(f's_memrealtime s[{S_ST}:{S_ST+1}]'); A('s_waitcnt lgkmcnt(0)'); A(f's_mov_b32 s{S_ST+5}, s{S_ST}')
            A(f's_lshl_b32 s{S_TMP}, s{S_X}, 5'); A(f's_add_u32 s{S_TMP}, s{S_TMP}, s{S_J}'); A(f's_lshl_b32 s{S_TMP}, s{S_TMP}, 3')
            A(f's_add_u32 s{S_TMP}, s{S_TMP}, s{S_WAVE}'); A(f's_lshl_b32 s{S_TMP}, s{S_TMP}, 6'); A(f's_add_u32 s{S_TMP}, s{S_TMP}, {hx(STAMP)}')
            A(f'v_mov_b32 v8, s{S_TMP}')
            A(f's_mov_b32 s{S_ST+3}, s{S_B1BASE}')
            for k in range(14):
                A(f'v_mov_b32 v6, s{S_ST+3+k}')
                A(f'buffer_store_dword v6, v8, s[{S_WS}:{S_WS+3}], 0 offen offset:{4*k}')
        if NRO and 'noro' not in self.opts: self.final_rows()
```
